```python
import torch

def _softmax(x, axis=-1):
    return torch.softmax(x, dim=axis)
def _gelu(x):
    return torch.nn.functional.gelu(x, approximate="tanh")
def _silu(x):
    return torch.nn.functional.silu(x)
def _sigmoid(x):
    return torch.sigmoid(x)
def _layernorm(x, axis=-1, eps=1e-5):
    m = x.mean(dim=axis, keepdim=True)
    v = x.var(dim=axis, keepdim=True, unbiased=False)
    return (x - m) / torch.sqrt(v + eps)
def _scatter_add(tgt, idx, src, axis=0):
    return tgt.clone().index_add_(axis, idx, src)
def _segment_sum(src, seg, n):
    out = torch.zeros((n,) + src.shape[1:], dtype=src.dtype)
    return out.index_add_(0, seg, src)
def _pad(x, pw):
    flat = tuple(v for pair in reversed(pw) for v in pair)
    return torch.nn.functional.pad(x, flat)

kernel_name = 'gated_mix__sliding_block__moe_arch_mod__prompt'

def setup_inputs():

    _w = (lambda a: (lambda t: t.to(torch.bfloat16) if t.is_floating_point() else t)(torch.as_tensor(a)))
    def _A_setup():
        B, S, D = 1, 2048, 576
        return {
            "x": _w((lambda *s: torch.randn(*s, dtype=torch.bfloat16) * 0.05)(B, S, D)),
            "wqkv": _w((lambda *s: torch.randn(*s, dtype=torch.bfloat16) * 0.8)(D, 3 * D)),
            "wo": _w((lambda *s: torch.randn(*s, dtype=torch.bfloat16) * 0.05)(D, D)),
        }
    _A_in = _A_setup()

    def _B_setup():
        B, S, D, F, C = 1, 2048, 576, 4608, 1
        return {
            "x": _w((lambda *s: torch.randn(*s, dtype=torch.bfloat16) * 0.05)(B, S, D)),
            "w_r": _w((lambda *s: torch.randn(*s, dtype=torch.bfloat16) * 3.2)(D)),
            "w_gate": _w((lambda *s: torch.randn(*s, dtype=torch.bfloat16) * 0.2)(D, F)),
            "w_up": _w((lambda *s: torch.randn(*s, dtype=torch.bfloat16) * 0.2)(D, F)),
            "w_down": _w((lambda *s: torch.randn(*s, dtype=torch.bfloat16) * 0.2)(F, D)),
        }
    _B_in = _B_setup()

    return {
        "A_x": _A_in["x"],
        "A_wqkv": _A_in["wqkv"],
        "A_wo": _A_in["wo"],
        "B_x": _B_in["x"],
        "B_w_r": _B_in["w_r"],
        "B_w_gate": _B_in["w_gate"],
        "B_w_up": _B_in["w_up"],
        "B_w_down": _B_in["w_down"],
        "gate_w": _w((lambda *s: torch.randn(*s, dtype=torch.bfloat16) * 0.05)(576) * 16.0),
    }

def reference(A_x, A_wqkv, A_wo, B_x, B_w_r, B_w_gate, B_w_up, B_w_down, gate_w):
    def _A_ref(x, wqkv, wo):
        B, S, D = x.shape
        H = 32; Dh = D // H; W = 256
        qkv = (lambda x, *d: x.permute(*d))((x @ wqkv).reshape(B, S, 3, H, Dh), 2, 0, 3, 1, 4)
        q, k, v = qkv[0], qkv[1], qkv[2]
        scores = torch.einsum("bhqd,bhkd->bhqk", q, k) * (Dh ** -0.5)
        idx = torch.arange(S)
        mask = (idx[:, None] - idx[None, :] >= 0) & (idx[:, None] - idx[None, :] < W)
        scores = torch.where(mask[None, None], scores, -1e9)
        p = _softmax(scores, axis=-1)
        o = torch.einsum("bhqk,bhkd->bhqd", p, v)
        return (lambda x, *d: x.permute(*d))(o, 0, 2, 1, 3).reshape(B, S, D) @ wo

    def _B_ref(x, w_r, w_gate, w_up, w_down):
        B, S, D = x.shape
        C = 1
        r = x @ w_r
        idx = torch.argsort(-r, axis=-1)[:, :C]
        idx_e = (lambda x, n, axis: torch.repeat_interleave(x, n, dim=axis))(idx.reshape(B, C, 1), D, axis=2)
        x_sel = (lambda x, i, axis: torch.take_along_dim(x, i, dim=axis))(x, idx_e, axis=1)
        g = _silu(x_sel @ w_gate)
        u = x_sel @ w_up
        y = (g * u) @ w_down
        r_sel = _sigmoid((lambda x, i, axis: torch.take_along_dim(x, i, dim=axis))(r, idx, axis=1))
        y = y * r_sel.reshape(B, C, 1)
        b_off = (torch.arange(B) * S).reshape(B, 1)
        flat_idx = (idx + b_off).reshape(B * C)
        zero = (x * 0.0).reshape(B * S, D)
        upd = _scatter_add(zero, flat_idx, y.reshape(B * C, D), axis=0)
        return x + upd.reshape(B, S, D)

    x = A_x
    g = _sigmoid((x * gate_w).sum(-1, keepdims=True))
    a = _A_ref(x, A_wqkv, A_wo)
    b = _B_ref(x, B_w_r, B_w_gate, B_w_up, B_w_down)
    return g * a + (1 - g) * b
```

```python
import re, sys

TRANS = ("v_exp_", "v_log_", "v_rcp_", "v_rsq_", "v_sqrt_", "v_sin_", "v_cos_")
def regs(tok):
    tok = tok.strip()
    tok = re.sub(r"^-|^abs\(|\)$|^\|", "", tok).rstrip("|")
    m = re.fullmatch(r"([vsa])\[(\d+):(\d+)\]", tok)
    if m: return {(m.group(1), i) for i in range(int(m.group(2)), int(m.group(3))+1)}
    m = re.fullmatch(r"([vsa])(\d+)", tok)
    if m: return {(m.group(1), int(m.group(2)))}
    if tok in ("vcc",): return {("s", "vcc_lo"), ("s", "vcc_hi")}
    if tok in ("vcc_lo", "vcc_hi"): return {("s", tok)}
    if tok == "exec": return {("s", "exec_lo"), ("s", "exec_hi")}
    if tok in ("exec_lo", "exec_hi"): return {("s", tok)}
    if tok == "m0": return {("s", "m0")}
    return set()

class I:
    pass
def parse(lines):
    out = []
    for ln, raw in enumerate(lines, 1):
        s = raw.split(";")[0].strip()
        if not s or s.startswith("."): continue
        if s.endswith(":"):
            x = I(); x.label = s[:-1]; x.op = None; x.ln = ln; out.append(x); continue
        parts = s.split(None, 1)
        op = parts[0]; ops = []
        if len(parts) > 1:
            ops = [t.strip() for t in re.split(r",(?![^\[\(]*[\]\)])", parts[1])]
            last = ops[-1].split()
            mods = last[1:] ; ops[-1] = last[0] if last else ""
        else: mods = []
        x = I(); x.label = None; x.op = op; x.ops = ops; x.mods = mods; x.ln = ln; x.text = s
        x.valu = op.startswith("v_") and not op.startswith("v_mfma")
        x.mfma = op.startswith("v_mfma")
        x.ds = op.startswith("ds_")
        x.vmem = op.startswith(("buffer_", "global_", "flat_"))
        x.salu = op.startswith("s_")
        x.trans = op.startswith(TRANS)
        W = set(); R = set()
        if x.mfma:
            W = regs(ops[0]); x.A = regs(ops[1]); x.B = regs(ops[2]); x.C = regs(ops[3]); R = x.A | x.B | x.C
            x.passes = 8 if "32x32" in op else 4
        elif x.valu:
            if op.startswith("v_cmp"):
                W = regs(ops[0]); R = set().union(*[regs(o) for o in ops[1:]])
                if op.startswith("v_cmpx"): W |= regs("exec")
            elif op.startswith(("v_permlane16_swap", "v_permlane32_swap", "v_swap")):
                W = regs(ops[0]) | regs(ops[1]); R = set(W)
            elif op.startswith(("v_add_co", "v_sub_co", "v_addc_co", "v_subb_co", "v_subrev_co")):
                W = regs(ops[0]) | regs(ops[1]); R = set().union(*[regs(o) for o in ops[2:]])
            else:
                W = regs(ops[0]); R = set().union(*[regs(o) for o in ops[1:]]) if len(ops) > 1 else set()
                if op.startswith(("v_fmac", "v_dot2c", "v_writelane", "v_pk_fmac")): R |= W
                if op.startswith("v_cndmask") and len(ops) == 3: R |= regs("vcc")
            x.dpp = any(m.startswith(("row_", "quad_perm", "wave_", "row_bcast")) for m in mods)
        elif x.ds:
            if op.startswith(("ds_read", "ds_bpermute", "ds_permute", "ds_swizzle")):
                W = regs(ops[0]); R = set().union(*[regs(o) for o in ops[1:]])
            else:
                R = set().union(*[regs(o) for o in ops])
        elif x.vmem:
            lds = "lds" in mods
            x.ldsdma = lds
            if "load" in op and not lds:
                W = regs(ops[0]); R = set().union(*[regs(o) for o in ops[1:]])
            else:
                R = set().union(*[regs(o) for o in ops])
            x.widestore = ("store" in op) and op.endswith(("x3", "x4"))
            if x.widestore:
                x.data = regs(ops[0]) if op.startswith("buffer") else regs(ops[1])
        elif x.salu:
            if op.startswith(("s_cmp", "s_cbranch", "s_branch", "s_waitcnt", "s_barrier", "s_nop", "s_endpgm", "s_setprio", "s_sleep", "s_bitcmp")):
                R = set().union(*[regs(o) for o in ops]) if ops else set()
            else:
                W = regs(ops[0]); R = set().union(*[regs(o) for o in ops[1:]]) if len(ops) > 1 else set()
                if "saveexec" in op: W |= regs("exec")
        x.W = W; x.R = R
        x.states = 1
        if op == "s_nop": x.states = int(ops[0], 0) + 1
        out.append(x)
    return out

def need(p, c):
    n = 0; why = ""
    def up(k, w):
        nonlocal n, why
        if k > n: n = k; why = w
    vW = {r for r in p.W if r[0] in "va"}
    sW = {r for r in p.W if r[0] == "s"}
    if p.valu:
        if c.mfma and vW & c.R: up(2, "valu->mfma")
        if c.valu and c.op.startswith("v_permlane") and vW & c.R: up(2, "valu->permlane")
        if c.valu and c.op.startswith(("v_readlane", "v_readfirstlane")) and vW & c.R: up(1, "valu->readlane")
        if c.valu and getattr(c, "dpp", False) and vW & c.R: up(2, "valu->dpp")
        if p.trans and c.valu and not c.trans and vW & c.R: up(1, "trans->valu")
        if p.trans and c.valu and c.trans and vW & c.R: up(1, "trans->trans(conservative)")
        if sW:
            if c.vmem and sW & c.R: up(5, "valu sgpr->vmem")
            if c.valu and sW & c.R:
                up(4 if c.op.startswith(("v_readlane", "v_writelane")) else 2, "valu sgpr->valu")
            if ("s", "exec_lo") in sW:
                if c.mfma: up(4, "valu exec->mfma")
                if c.valu and c.op.startswith(("v_readlane", "v_readfirstlane", "v_writelane", "v_permlane")): up(4, "cmpx->lane op")
                if c.valu and getattr(c, "dpp", False): up(5, "exec->dpp")
    if p.mfma:
        ps = p.passes
        D = p.W
        if c.mfma:
            if D & (c.A | c.B): up({4: 8, 8: 12}[ps], "mfma D->A/B")
            if D & c.C:
                if c.C == D and c.passes == ps: pass
                else: up({4: 6, 8: 10}[ps], "mfma D->C overlap")
            elif D & c.W:
                up({4: 6, 8: 10}[ps], "mfma D WAW w/o C (conservative)")
        elif c.valu or c.vmem or c.ds:
            if D & (c.R | c.W): up({4: 8, 8: 12}[ps], "mfma D->valu/mem")
        if c.valu and p.C & c.W and not (p.C == D): up({4: 3, 8: 7}[ps], "mfma C WAR")
    if p.salu and ("s", "m0") in p.W and c.vmem and getattr(c, "ldsdma", False): up(1, "m0->dma")
    if p.vmem and getattr(p, "widestore", False) and (c.valu or c.mfma) and p.data & c.W: up(2, "store data WAR")
    if p.vmem and getattr(p, "widestore", False) and (c.ds or c.vmem) and p.data & c.W: up(1, "store data WAR(mem)")
    return n, why

def check(text, maxdist=20):
    ins = parse(text.split("\n"))
    labels = {x.label: i for i, x in enumerate(ins) if x.label}
    errs = []
    def succ(i):
        x = ins[i]
        res = []
        if x.op in ("s_endpgm",): return res
        if x.op and x.op.startswith(("s_branch", "s_cbranch")):
            t = x.ops[0]
            if t in labels: res.append(labels[t])
            if x.op.startswith("s_branch"): return res
        if i + 1 < len(ins): res.append(i + 1)
        return res
    for i, p in enumerate(ins):
        if p.op is None: continue
        if not (p.valu or p.mfma or (p.salu and ("s", "m0") in p.W) or (p.vmem and getattr(p, "widestore", False))): continue
        stack = [(j, 0) for j in succ(i)]
        seen = {}
        while stack:
            j, d = stack.pop()
            if d >= maxdist or seen.get(j, 99) <= d: continue
            seen[j] = d
            c = ins[j]
            if c.op is None:
                for k in succ(j): stack.append((k, d))
                continue
            n, why = need(p, c)
            if n > d: errs.append(f"line {p.ln}: '{p.text}' -> line {c.ln}: '{c.text}' needs {n} has {d} ({why})")
            for k in succ(j): stack.append((k, d + c.states))
    return sorted(set(errs))

if __name__ == "__main__":
    e = check(open(sys.argv[1]).read())
    print("\n".join(e) if e else "no hazards found")
```

```python
import sys, math, struct
import hazard

NAME = "gated_mix__sliding_block__moe_arch_mod__prompt"
PROF = "--prof" in sys.argv
NOLOAD = "--noload" in sys.argv
NOCOMP = "--nocomp" in sys.argv
NOMFMA = "--nomfma" in sys.argv
NOREAD = "--noread" in sys.argv
XNOSWZ = "--xnoswz" in sys.argv
NOX = "--nox" in sys.argv
NOW = "--now" in sys.argv
WAL = "--wal" in sys.argv
STOP = None
for a in sys.argv:
    if a.startswith("--stop="): STOP = a.split("=")[1]

F1, F2, CAND, FY, GG, PP, YY = 0x0, 0x8000, 0x10000, 0x11000, 0x14000, 0x18000, 0x28000
QKV, XP, OM, OX = 0x100000, 0x700000, 0x880000, 0xA80000
PROFB = 0xB00000
WS_SIZE = 0xC00000
BIGOFF = 0x40000000
SPIN = 200000

SLOT = 34816
KP0, KP1, KX = 0, 8192, 16384
VB = 24576
VP0, VP1, VX = VB, VB + 8192 + 64, VB + 16384 + 128
BULK = 49408
R0, R1, YR = 0, 21504, 43008
RP = 336
LDS_TOTAL = 163840

def f32bits(x): return struct.unpack("<I", struct.pack("<f", x))[0]
QSCALE = f32bits(18 ** -0.5 * math.log2(math.e))
NEGBIG = f32bits(-1e30)
LOG2E = f32bits(math.log2(math.e))

L = []
def e(s): L.append("  " + s)
def lab(s): L.append(s + ":")
def c(s): L.append("  ; " + s)
def v(a, n=1): return f"v{a}" if n == 1 else f"v[{a}:{a+n-1}]"
def s_(a, n=1): return f"s{a}" if n == 1 else f"s[{a}:{a+n-1}]"
_uid = [0]
def ul(p):
    _uid[0] += 1
    return f"L_{p}_{_uid[0]}"

sWAVE, sXCD, sSLOT, sRB, sCB = 3, 4, 5, 6, 7
SX, SW, SWS, SOUT, SA, SB = 8, 12, 40, 44, 48, 52
pX, pWQKV, pWO, pWR, pWG, pWU, pWD, pGW, pOUT, pDBG, pWS = 16, 18, 20, 24, 26, 28, 30, 32, 34, 36, 38
sTAG = 56
sT = 57
sH, sJ, sI, sTB, sCS, sISS = 76, 77, 78, 79, 80, 81
sDMIN, sIDX, sKEY, sFLAG = 82, 83, 84, 85
sSTAMP = 86

def stamp(k):
    if PROF:
        e(f"s_memtime s[100:101]")
        e("s_waitcnt lgkmcnt(0)")
        e(f"v_writelane_b32 v255, s100, {k}")

def srd(base, ptr, size):
    e(f"s_mov_b32 s{base}, s{ptr}")
    e(f"s_mov_b32 s{base+1}, s{ptr+1}")
    e(f"s_mov_b32 s{base+2}, {size}")
    e(f"s_mov_b32 s{base+3}, 0x20000")

def divmod_const(dq, dr, src, d, maxv, tmp_s):
    for sh in range(16, 25):
        m = -(-(1 << sh) // d)
        if m < (1 << 24) and maxv * m < (1 << 32) and all((x * m) >> sh == x // d for x in range(maxv + 1)):
            break
    else:
        raise Exception("no magic")
    e(f"v_mul_u32_u24 v{dq}, {m}, v{src}")
    e(f"v_lshrrev_b32 v{dq}, {sh}, v{dq}")
    e(f"v_mul_u32_u24 v{dr}, {d}, v{dq}")
    e(f"v_sub_u32 v{dr}, v{src}, v{dr}")

def tag_issue(vt, vz):
    e(f"v_mov_b32 v{vz}, 0")
    e(f"global_load_dword v{vt}, v{vz}, {s_(pDBG,2)} sc1")

def tag_check(vt, vz):
    lp, done = ul("tag"), ul("tagd")
    e(f"s_mov_b32 s{sT}, 0")
    lab(lp)
    e(f"v_readfirstlane_b32 s{sTAG}, v{vt}")
    e(f"s_cmp_lg_u32 s{sTAG}, 0")
    e(f"s_cbranch_scc1 {done}")
    e(f"s_add_u32 s{sT}, s{sT}, 1")
    e(f"s_cmp_gt_u32 s{sT}, {SPIN}")
    e(f"s_cbranch_scc1 L_end")
    e(f"global_load_dword v{vt}, v{vz}, {s_(pDBG,2)} sc1")
    e("s_waitcnt vmcnt(0)")
    e(f"s_branch {lp}")
    lab(done)


def bound(cnt):
    e(f"s_add_u32 s{cnt}, s{cnt}, 1")
    e(f"s_cmp_gt_u32 s{cnt}, {SPIN}")
    e("s_cbranch_scc1 L_end")

def bf16r(r, t=None):
    e(f"v_cvt_pk_bf16_f32 v{r}, v{r}, v{r}")
    e(f"v_and_b32 v{r}, 0xffff0000, v{r}")

def sigmoid(d, x):
    e(f"v_mul_f32 v{d}, {(LOG2E ^ 0x80000000):#x}, v{x}")
    e(f"v_exp_f32 v{d}, v{d}")
    e("s_nop 0")
    e(f"v_add_f32 v{d}, 1.0, v{d}")
    e(f"v_rcp_f32 v{d}, v{d}")
    e("s_nop 0")

def row_max_u32(r):
    for k in (8, 4, 2, 1):
        e("s_nop 1")
        e(f"v_max_u32_dpp v{r}, v{r}, v{r} row_ror:{k} row_mask:0xf bank_mask:0xf")

def cross_rows(op, r, t):
    for sw in ("v_permlane16_swap_b32", "v_permlane32_swap_b32"):
        e(f"v_mov_b32 v{t}, v{r}")
        e("s_nop 1")
        e(f"{sw} v{r}, v{t}")
        e(f"{op} v{r}, v{r}, v{t}")

def cand_issue(R, va):
    e(f"v_lshlrev_b32 v{va}, 4, v1")
    e(f"s_mov_b32 s{sT}, {CAND}")
    e(f"buffer_load_dwordx4 {v(R,4)}, v{va}, {s_(SWS,4)}, s{sT} offen sc1")

def cand_check(R, va, vtag):
    lp, done = ul("cand"), ul("candd")
    e(f"s_mov_b32 s{sT+1}, 0")
    lab(lp)
    e(f"v_xor_b32 v{R+1}, v{vtag}, v{R+1}")
    e(f"v_xor_b32 v{R+3}, v{vtag}, v{R+3}")
    e(f"v_or_b32 v{R+1}, v{R+1}, v{R+3}")
    e(f"v_cmp_eq_u32 vcc, 0, v{R+1}")
    e("s_cmp_eq_u64 vcc, -1")
    e(f"s_cbranch_scc1 {done}")
    bound(sT+1)
    e(f"s_mov_b32 s{sT}, {CAND}")
    e(f"buffer_load_dwordx4 {v(R,4)}, v{va}, {s_(SWS,4)}, s{sT} offen sc1")
    e("s_waitcnt vmcnt(0)")
    e(f"s_branch {lp}")
    lab(done)
    e(f"v_max_u32 v{R}, v{R}, v{R+2}")
    row_max_u32(R)
    cross_rows("v_max_u32", R, R+1)
    e("s_nop 0")
    e(f"v_readfirstlane_b32 s{sKEY}, v{R}")
    e(f"s_and_b32 s{sIDX}, s{sKEY}, 0xffff")
    e(f"s_sub_u32 s{sIDX}, 2047, s{sIDX}")

lab(f"{NAME}_kernel")
e(f"s_load_dwordx16 s[16:31], s[0:1], 0")
e(f"s_load_dwordx8 s[32:39], s[0:1], 64")
if PROF:
    e(f"s_memrealtime s[98:99]")
    e(f"s_memtime s[96:97]")
    e("v_mov_b32 v255, 0")
e("s_cmp_ge_u32 s2, 256")
e("s_cbranch_scc1 L_end")
e("v_lshrrev_b32 v2, 6, v0")
e("v_and_b32 v1, 63, v0")
e(f"v_readfirstlane_b32 s{sWAVE}, v2")
e(f"s_and_b32 s{sXCD}, s2, 7")
e(f"s_lshr_b32 s{sSLOT}, s2, 3")
e(f"s_and_b32 s{sRB}, s{sXCD}, 3")
e(f"s_lshl_b32 s{sRB}, s{sRB}, 2")
e(f"s_and_b32 s{sT}, s{sSLOT}, 3")
e(f"s_add_u32 s{sRB}, s{sRB}, s{sT}")
e(f"s_lshr_b32 s{sCB}, s{sXCD}, 2")
e(f"s_mul_i32 s{sCB}, s{sCB}, 6")
e(f"s_lshr_b32 s{sT+1}, s{sSLOT}, 2")
e(f"s_add_u32 s{sCB}, s{sCB}, s{sT+1}")
e("s_waitcnt lgkmcnt(0)")
if PROF:
    e("v_writelane_b32 v255, s96, 0")
    e("v_writelane_b32 v255, s98, 31")
srd(SX, pX, 2048 * 1152)
srd(SW, pWQKV, 576 * 3456)
srd(SWS, pWS, WS_SIZE)
srd(SOUT, pOUT, 2048 * 1152)
e(f"s_cmp_ge_u32 s{sSLOT}, 24")
e("s_cbranch_scc1 L_sphase")
e(f"s_mov_b32 s{sISS}, 0")
e(f"s_cmp_lt_u32 s{sWAVE}, 4")
e("s_cbranch_scc1 L_compute")

c("---- P1 loader ----")
sLW, sSIG, sLS, sXB, sWB, sCNT = sT+2, sT+3, sT+4, sT+5, sT+6, sT+7
e(f"s_sub_u32 s{sLW}, s{sWAVE}, 4")
e("v_lshrrev_b32 v2, 3, v1")
e("v_mul_u32_u24 v2, 1152, v2")
e("v_lshrrev_b32 v3, 4, v1")
e(f"s_and_b32 s{sT}, s{sLW}, 1")
e(f"s_lshl_b32 s{sT}, s{sT}, 2")
e(f"v_add_u32 v3, s{sT}, v3")
e("v_and_b32 v4, 7, v1")
e("v_xor_b32 v3, v3, v4" if not XNOSWZ else "v_mov_b32 v3, v4")
e("v_lshl_add_u32 v2, v3, 4, v2")
e(f"s_and_b32 s{sT}, s{sSLOT}, 3")
e(f"s_lshl_b32 s{sT}, s{sT}, 1")
e(f"s_mul_i32 s{sSIG}, s{sT+1}, 3")
e(f"s_add_u32 s{sSIG}, s{sSIG}, s{sT}")
e(f"s_cmp_ge_u32 s{sT+1}, 3")
e(f"s_addc_u32 s{sSIG}, s{sSIG}, 0")
for _ in range(2):
    e(f"s_cmp_ge_u32 s{sSIG}, 9")
    e(f"s_cselect_b32 s{sT}, 9, 0")
    e(f"s_sub_u32 s{sSIG}, s{sSIG}, s{sT}")
e(f"s_mul_i32 s{sXB}, s{sRB}, {128*1152}")
e(f"s_mul_i32 s{sT}, s{sLW}, 9216")
e(f"s_add_u32 s{sXB}, s{sXB}, s{sT}")
e(f"s_mul_i32 s{sWB}, s{sCB}, {288 if not WAL else 256}")
e(f"s_lshl_b32 s{sLS}, s{sLW}, 10")
e(f"s_lshl_b32 s{sT}, s{sLW}, 6")
e(f"v_add_u32 v5, s{sT}, v1")
for n in range(5):
    if n: e(f"v_add_u32 v5, 256, v5")
    divmod_const(6, 7, 5, 18 if not WAL else 16, 64*20+63, sT)
    e(f"v_mul_u32_u24 v6, 3456, v6")
    e(f"v_lshl_add_u32 v{8+n}, v7, 4, v6")
e(f"s_mov_b32 s{sCNT}, 0")
stamp(1)
lab("L_ld_loop")
e(f"s_lshl_b32 s{sT}, s{sSIG}, 7")
e(f"s_add_u32 s{sT}, s{sT}, s{sXB}")
e(f"s_mul_i32 s{sT+1}, s{sSIG}, {64*3456}")
e(f"s_add_u32 s{sT+1}, s{sT+1}, s{sWB}")
e(f"s_mov_b32 m0, s{sLS}")
for n in range(4):
    if n:
        e(f"s_add_u32 s{sT}, s{sT}, 36864")
        e(f"s_add_u32 m0, m0, 4096")
        e("s_nop 0")
    else:
        e("s_nop 0")
    if not NOLOAD and not NOX: e(f"buffer_load_dwordx4 v2, {s_(SX,4)}, s{sT} offen lds")
for n in range(5):
    if n == 4:
        e(f"s_cmp_ge_u32 s{sLW}, 2")
        e("s_cbranch_scc1 L_ld_skip5")
    e(f"s_add_u32 m0, m0, 4096")
    e("s_nop 0")
    if not NOLOAD and not NOW: e(f"buffer_load_dwordx4 v{8+n}, {s_(SW,4)}, s{sT+1} offen lds")
lab("L_ld_skip5")
e(f"s_add_u32 s{sSIG}, s{sSIG}, 1")
e(f"s_cmp_eq_u32 s{sSIG}, 9")
e(f"s_cselect_b32 s{sSIG}, 0, s{sSIG}")
e(f"s_add_u32 s{sLS}, s{sLS}, {SLOT}")
e(f"s_cmp_ge_u32 s{sLS}, {4*SLOT}")
e(f"s_cselect_b32 s{sT}, {4*SLOT}, 0")
e(f"s_sub_u32 s{sLS}, s{sLS}, s{sT}")
e(f"s_add_u32 s{sCNT}, s{sCNT}, 1")
e(f"s_cmp_lt_u32 s{sCNT}, 4")
e("s_cbranch_scc1 L_ld_loop")
e(f"s_cmp_lg_u32 s{sCNT}, 4")
e("s_cbranch_scc1 L_ld_nb0")
stamp(2)
e("s_waitcnt vmcnt(24)")
e("s_barrier")
stamp(3)
lab("L_ld_nb0")
e(f"s_cmp_eq_u32 s{sCNT}, 9")
e("s_cbranch_scc1 L_ld_tail")
e("s_waitcnt vmcnt(16)")
e("s_barrier")
e("s_branch L_ld_loop")
lab("L_ld_tail")
for n in (16, 8, 0):
    e(f"s_waitcnt vmcnt({n})")
    e("s_barrier")
stamp(4)
tag_issue(17, 18)
e(f"s_mov_b32 s{sFLAG}, {BIGOFF}")
e("s_barrier")
e("s_branch L_p2")

ACC = 64
def acc(tt, ct): return ACC + (ct * 4 + tt) * 4
def xf(p, tt): return 144 + 36 * p + 4 * tt
def wf(p, ct): return 160 + 36 * p + 4 * ct
XA = 2
WA = 6

def reads(p, ks, NT):
    wr = []
    for ct in range(NT):
        for wh in range(2):
            if ct < 4:
                off = ks * 9216 + wh * 4608 + 72 * (ct >> 1) + 40 * (ct & 1)
                wr.append(f"ds_read_b64_tr_b16 {v(wf(p,ct)+2*wh,2)}, v{WA+2*ks} offset:{off}")
            else:
                off = ks * 9216 + wh * 4608
                wr.append(f"ds_read_b64_tr_b16 {v(wf(p,ct)+2*wh,2)}, v{WA+2*ks+1} offset:{off}")
    xr = []
    for tt in range(4):
        for wh in range(2):
            xr.append(f"ds_read_b64 {v(xf(p,tt)+2*wh,2)}, v{XA+2*ks+wh} offset:{tt*2048}")
    return wr[:2] + xr + wr[2:]

def kstep(p, ks_next, NT, fill, late, late_at):
    rd = reads(1 - p, ks_next, NT)
    if NOREAD: rd = []
    rd = rd + list(fill)
    n = 0
    for ct in range(NT):
        for tt in range(4):
            a = acc(tt, ct)
            if not NOMFMA: e(f"v_mfma_f32_16x16x32_bf16 {v(a,4)}, {v(wf(p,ct),4)}, {v(xf(p,tt),4)}, {v(a,4)}")
            n += 1
            if n == late_at:
                assert not rd, rd
                for x in late: e(x)
            for _ in range(2):
                if rd: e(rd.pop(0))
    assert not rd

lab("L_compute")
c("---- P1 compute ----")
e(f"s_or_b32 s{sT}, s2, s{sWAVE}")
e(f"s_cmp_lg_u32 s{sT}, 0")
e("s_cbranch_scc1 L_notag")
e(f"s_memrealtime {s_(sT+9,2)}")
e("v_mov_b32 v4, 0")
e("s_waitcnt lgkmcnt(0)")
e(f"s_or_b32 s{sT+9}, s{sT+9}, 1")
e(f"v_mov_b32 v3, s{sT+9}")
e("s_mov_b64 exec, 1")
e(f"global_store_dword v4, v3, {s_(pDBG,2)} sc1")
e("s_mov_b64 exec, -1")
lab("L_notag")
sMH, sNH, sDL, sIT, sSL = sT+2, sT+3, sT+4, sT+5, sT+6
e(f"s_and_b32 s{sMH}, s{sWAVE}, 1")
e(f"s_lshr_b32 s{sNH}, s{sWAVE}, 1")
e("v_and_b32 v18, 15, v1")
e("v_lshrrev_b32 v19, 4, v1")
e(f"s_lshl_b32 s{sT}, s{sMH}, 13")
e(f"v_lshl_add_u32 v10, v18, 7, s{sT}")
e("v_and_b32 v11, 1, v19")
e("v_lshl_add_u32 v10, v11, 3, v10")
e("v_lshrrev_b32 v11, 1, v19")
e("v_lshrrev_b32 v12, 1, v18")
e("v_xor_b32 v11, v11, v12")
for i in range(4):
    e(f"v_xor_b32 v12, {2*i}, v11")
    e(f"v_lshl_add_u32 v{XA+i}, v12, 4, v10")
e("v_lshrrev_b32 v10, 2, v1")
e("v_mul_u32_u24 v10, 288, v10")
e("v_and_b32 v11, 3, v1")
e(f"s_mul_i32 s{sT}, s{sNH}, 144")
e(f"s_add_u32 s{sT}, s{sT}, 16384")
e(f"v_lshl_add_u32 v{WA}, v11, 3, v10")
e(f"v_add_u32 v{WA}, s{sT}, v{WA}")
e("v_mul_u32_u24 v11, 72, v11")
e(f"v_add_u32 v{WA+1}, v10, v11")
e(f"v_add_u32 v{WA+1}, {16384+32}, v{WA+1}")
e(f"v_mov_b32 v{WA+2}, v{WA}")
e(f"v_mov_b32 v{WA+3}, v{WA+1}")
for r in range(ACC, ACC + 80): e(f"v_mov_b32 v{r}, 0")
VE, VXO = 13, 14
e(f"v_lshrrev_b32 v10, 1, v19")
e(f"v_lshlrev_b32 v{VE}, 15, v10")
e("v_and_b32 v10, 1, v19")
e(f"v_lshl_add_u32 v{VE}, v10, 8, v{VE}")
e(f"v_lshl_add_u32 v{VE}, v18, 4, v{VE}")
e(f"v_lshlrev_b32 v{VXO}, 15, v19")
e(f"v_lshl_add_u32 v{VXO}, v18, 4, v{VXO}")
e(f"s_mov_b32 s{sIT}, 0")
e(f"s_mov_b32 s{sSL}, 0")
e(f"s_cmp_eq_u32 s{sNH}, 0")
e("s_cbranch_scc0 L_cmp4")
for NT in (5, 4):
    if NT == 4: lab("L_cmp4")
    e("s_barrier")
    stamp(1)
    for r in reads(0, 0, NT): e(r)
    e("s_waitcnt lgkmcnt(0)")
    lab(f"L_cloop{NT}")
    fillA = [f"s_add_u32 s{sSL}, s{sSL}, 1", f"s_cmp_eq_u32 s{sSL}, 4", f"s_cselect_b32 s{sSL}, 0, s{sSL}",
             f"s_cselect_b32 s{sDL}, {(-4*SLOT) & 0xffffffff}, 0", f"s_add_u32 s{sDL}, s{sDL}, {SLOT}"] + \
            [f"v_add_u32 v{r}, s{sDL}, v{r}" for r in (XA, XA+1, WA, WA+1)]
    kstep(0, 1, NT, fillA, ["s_waitcnt lgkmcnt(0)", "s_barrier"], 4*NT - 1)
    fillB = [f"v_add_u32 v{r}, s{sDL}, v{r}" for r in (XA+2, XA+3, WA+2, WA+3)] + \
            [f"s_add_u32 s{sIT}, s{sIT}, 1", f"s_cmp_lt_u32 s{sIT}, 9"]
    kstep(1, 0, NT, fillB, ["s_waitcnt lgkmcnt(0)"], 4*NT - 1)
    e(f"s_cbranch_scc1 L_cloop{NT}")
    if NT == 5: e("s_branch L_cepi")
lab("L_cepi")
stamp(2)
tag_issue(17, 18)
sSO, sSC = sT+7, sT+9
assert sSC % 2 == 0
e(f"s_lshl_b32 s{sT}, s{sRB}, 11")
e(f"s_lshl_b32 s{sT+1}, s{sMH}, 10")
e(f"s_add_u32 s{sT}, s{sT}, s{sT+1}")
e(f"s_lshl_b32 s{sSO}, s{sCB}, 3")
e(f"s_lshl_b32 s{sT+1}, s{sNH}, 2")
e(f"s_add_u32 s{sSO}, s{sSO}, s{sT+1}")
e(f"s_lshl_b32 s{sSO}, s{sSO}, 16")
e(f"s_add_u32 s{sSO}, s{sSO}, s{sT}")
e(f"s_add_u32 s{sSO}, s{sSO}, {QKV}")
e(f"s_lshl_b32 s{sT+8}, s{sCB}, 17")
e(f"s_add_u32 s{sT+8}, s{sT+8}, s{sT}")
e(f"s_add_u32 s{sT+8}, s{sT+8}, {XP}")
e(f"s_cmp_lt_u32 s{sCB}, 4")
e("s_cbranch_scc0 L_noscale")
e(f"s_mov_b32 s{sSC}, {QSCALE}")
e(f"s_mov_b32 s{sSC+1}, {QSCALE}")
for r in range(ACC, ACC + 80, 2):
    e(f"v_pk_mul_f32 {v(r,2)}, {v(r,2)}, {s_(sSC,2)}")
lab("L_noscale")
q = 0
for ct in range(4):
    for pr in range(2):
        R = 20 + 4 * (q % 4); q += 1
        a, b = acc(2*pr, ct), acc(2*pr+1, ct)
        e(f"v_cvt_pk_bf16_f32 v{R}, v{a}, v{a+1}")
        e(f"v_cvt_pk_bf16_f32 v{R+2}, v{b}, v{b+1}")
        e(f"v_cvt_pk_bf16_f32 v{R+1}, v{a+2}, v{a+3}")
        e(f"v_cvt_pk_bf16_f32 v{R+3}, v{b+2}, v{b+3}")
        e("s_nop 0")
        e(f"v_permlane16_swap_b32 v{R}, v{R+2}")
        e(f"v_permlane16_swap_b32 v{R+1}, v{R+3}")
        e(f"buffer_store_dwordx4 {v(R,4)}, v{VE}, {s_(SWS,4)}, s{sSO} offen offset:{512*pr} sc1")
    e(f"s_add_u32 s{sSO}, s{sSO}, 65536")
e(f"s_cmp_eq_u32 s{sNH}, 0")
e("s_cbranch_scc0 L_noextra")
for tt in range(4):
    R = 36 + 4 * tt
    a = acc(tt, 4)
    e(f"v_cvt_pk_bf16_f32 v{R}, v{a}, v{a+1}")
    e(f"v_mov_b32 v{R+1}, 0x3f803f80")
    e(f"v_cvt_pk_bf16_f32 v{R+2}, v{a+2}, v{a+3}")
    e(f"v_mov_b32 v{R+3}, 0x3f803f80")
    e(f"buffer_store_dwordx4 {v(R,4)}, v{VXO}, {s_(SWS,4)}, s{sT+8} offen offset:{256*tt} sc1")
lab("L_noextra")
stamp(3)
e(f"s_mul_i32 s{sFLAG}, s{sRB}, 12")
e(f"s_add_u32 s{sFLAG}, s{sFLAG}, s{sCB}")
e(f"s_lshl_b32 s{sFLAG}, s{sFLAG}, 7")
e(f"s_lshl_b32 s{sT+1}, s{sWAVE}, 2")
e(f"s_add_u32 s{sFLAG}, s{sFLAG}, s{sT+1}")
e("s_branch L_p2")

lab("L_sphase")
e(f"s_mov_b32 s{sISS}, 1")

XR, WV, XS, GATE, UPA, UPB, HS = 0, 36864, 40960, 44032, 117760, 0, 147712
sS = sRB
e(f"s_lshl_b32 s{sS}, s{sXCD}, 3")
e(f"s_add_u32 s{sS}, s{sS}, s{sSLOT}")
e(f"s_sub_u32 s{sS}, s{sS}, 24")
srd(SA, pWG, 576 * 9216)
srd(SB, pWU, 576 * 9216)
e(f"s_cmp_lt_u32 s{sWAVE}, 4")
e("s_cbranch_scc1 L_s_ctl")
c("---- S streamers (waves 4..7) ----")
sLW2 = sT+2
e(f"s_sub_u32 s{sLW2}, s{sWAVE}, 4")
e(f"s_lshl_b32 s{sT}, s{sLW2}, 6")
e(f"v_add_u32 v2, s{sT}, v1")
e(f"s_mul_i32 s{sT+3}, s{sS}, {32*1152}")
e(f"s_lshl_b32 s{sT+4}, s{sLW2}, 10")
e(f"s_mov_b32 m0, s{sT+4}")
for n in range(9):
    if n:
        e("v_add_u32 v2, 256, v2")
        e("s_add_u32 m0, m0, 4096")
    divmod_const(3, 4, 2, 72, 2303, sT)
    e("v_bfe_u32 v5, v3, 1, 3")
    e("v_xor_b32 v4, v4, v5")
    e("v_mul_u32_u24 v3, 1152, v3")
    e("v_lshl_add_u32 v3, v4, 4, v3")
    e(f"buffer_load_dwordx4 v3, {s_(SX,4)}, s{sT+3} offen lds")
e(f"s_cmp_lt_u32 s{sLW2}, 2")
e(f"s_cselect_b32 s{SW}, s{pWR}, s{pGW}")
e(f"s_cselect_b32 s{SW+1}, s{pWR+1}, s{pGW+1}")
e(f"s_mov_b32 s{SW+2}, 1152")
e(f"s_and_b32 s{sT}, s{sLW2}, 1")
e(f"s_lshl_b32 s{sT}, s{sT}, 10")
e(f"s_add_u32 m0, s{sT+4}, {WV}")
e("v_lshlrev_b32 v3, 4, v1")
e(f"buffer_load_dwordx4 v3, {s_(SW,4)}, s{sT} offen lds")
e("v_lshrrev_b32 v2, 3, v1")
e("v_and_b32 v3, 6, v2")
e("v_and_b32 v4, 7, v1")
e("v_xor_b32 v3, v3, v4")
e("v_mul_u32_u24 v2, 9216, v2")
e("v_lshl_add_u32 v2, v3, 4, v2")
e(f"s_mul_i32 s{sT+5}, s{sLW2}, {8*9216}")
e(f"s_lshl_b32 s{sT}, s{sS}, 7")
e(f"s_add_u32 s{sT+5}, s{sT+5}, s{sT}")
def stream(srdr, n, lds, row0):
    lp = ul("st")
    e(f"s_add_u32 m0, s{sT+4}, {lds}")
    e(f"s_add_u32 s{sT}, s{sT+5}, {row0*9216}")
    e(f"s_mov_b32 s{sT+1}, 0")
    lab(lp)
    e(f"buffer_load_dwordx4 v2, {s_(srdr,4)}, s{sT} offen nt lds")
    e("s_add_u32 m0, m0, 4096")
    e(f"s_add_u32 s{sT}, s{sT}, {32*9216}")
    e(f"s_add_u32 s{sT+1}, s{sT+1}, 1")
    e(f"s_cmp_lt_u32 s{sT+1}, {n}")
    e(f"s_cbranch_scc1 {lp}")
stream(SA, 18, GATE, 0)
stream(SB, 11, UPA, 0)
e("s_waitcnt vmcnt(29)")
e("s_barrier")
e("s_barrier")
stream(SB, 7, UPB, 352)
e("s_waitcnt vmcnt(18)")
e("s_barrier")
e("s_barrier")
e(f"s_cmp_lt_u32 s{sLW2}, 2")
e(f"s_cselect_b32 s{SW}, s{pWG}, s{pWU}")
e(f"s_cselect_b32 s{SW+1}, s{pWG+1}, s{pWU+1}")
e(f"s_mov_b32 s{SW+2}, {576*9216}")
e(f"s_and_b32 s{sT}, s{sS}, 7")
e(f"s_mul_i32 s{sT}, s{sT}, {72*9216}")
e(f"s_lshr_b32 s{sT+1}, s{sS}, 3")
e(f"s_lshl_b32 s{sT+1}, s{sT+1}, 7")
e(f"s_add_u32 s{sT}, s{sT}, s{sT+1}")
e(f"s_add_u32 s{sT}, s{sT}, {64*128}")
e(f"s_and_b32 s{sT+1}, s{sLW2}, 1")
e(f"s_mul_i32 s{sT+3}, s{sT+1}, {8*9216}")
e(f"s_add_u32 s{sT}, s{sT}, s{sT+3}")
e(f"s_lshl_b32 s{sT+3}, s{sT+1}, 10")
e(f"s_lshr_b32 s{sT+6}, s{sLW2}, 1")
e(f"s_mul_i32 s{sT+6}, s{sT+6}, 10240")
e(f"s_add_u32 s{sT+3}, s{sT+3}, s{sT+6}")
e(f"s_add_u32 m0, s{sT+3}, {GATE}")
for n in range(5):
    if n:
        e("s_add_u32 m0, m0, 2048")
        e(f"s_add_u32 s{sT}, s{sT}, {16*9216}")
    if n == 4:
        e(f"s_cmp_eq_u32 s{sT+1}, 1")
        e(f"s_cselect_b32 s{sT}, {BIGOFF}, s{sT}")
    if n == 0: e("s_nop 0")
    e(f"buffer_load_dwordx4 v2, {s_(SW,4)}, s{sT} offen nt lds")
e("s_waitcnt vmcnt(5)")
e("s_barrier")
e("s_waitcnt vmcnt(0)")
e("s_barrier")
e("s_branch L_s_done")

lab("L_s_ctl")
c("---- S control waves (0..3) ----")
tag_issue(17, 18)
e(f"s_cmp_lt_u32 s{sWAVE}, 2")
e("s_cbranch_scc1 L_s_nopf")
e(f"s_getpc_b64 {s_(sT+1,2)}")
lab("L_pc")
e(f"s_sub_u32 s{sT+1}, s{sT+1}, L_pc-{NAME}_kernel")
e(f"s_subb_u32 s{sT+2}, s{sT+2}, 0")
e(f"s_sub_u32 s{sT}, s{sWAVE}, 2")
e(f"s_lshl_b32 s{sT}, s{sT}, 6")
e(f"v_add_u32 v2, s{sT}, v1")
e("v_lshlrev_b32 v2, 7, v2")
for n in range(2):
    e(f"v_min_u32 v3, L_end-{NAME}_kernel, v2")
    e(f"global_load_dword v4, v3, {s_(sT+1,2)}")
    e("v_add_u32 v2, 16384, v2")
lab("L_s_nopf")
e("v_and_b32 v10, 15, v1")
e("v_lshrrev_b32 v11, 4, v1")
e("v_and_b32 v2, 1, v10")
e("v_lshlrev_b32 v2, 11, v2")
e("v_lshl_add_u32 v2, v11, 4, v2")
e(f"v_add_u32 v2, {WV}, v2")
e(f"s_lshl_b32 s{sT}, s{sWAVE}, 4")
e(f"v_add_u32 v3, s{sT}, v10")
e("v_mul_u32_u24 v3, 1152, v3")
e("v_lshrrev_b32 v4, 1, v10")
e("v_xor_b32 v4, v4, v11")
e("v_xor_b32 v5, 4, v4")
e("v_lshl_add_u32 v4, v4, 4, v3")
e("v_lshl_add_u32 v5, v5, 4, v3")
e("v_lshrrev_b32 v6, 2, v1")
e("v_and_b32 v7, 6, v6")
e("v_bfe_u32 v8, v1, 1, 1")
e(f"s_lshl_b32 s{sT}, s{sWAVE}, 1")
e(f"v_add_u32 v8, s{sT}, v8")
e("v_xor_b32 v7, v7, v8")
e("v_and_b32 v8, 1, v1")
e("v_lshlrev_b32 v8, 3, v8")
e("v_lshl_add_u32 v7, v7, 4, v8")
e("v_and_b32 v9, 7, v6")
e("v_lshl_add_u32 v9, v9, 7, v7")
e("v_lshl_add_u32 v6, v6, 7, v7")
e("v_lshlrev_b32 v7, 3, v11")
e(f"v_add_u32 v7, {XS}, v7")
e("v_subrev_u32 v8, 2, v11")
e("v_ashrrev_i32 v8, 31, v8")
e("s_waitcnt vmcnt(0)")
tag_check(17, 18)
e(f"v_mov_b32 v17, s{sTAG}")
e("s_barrier")
stamp(1)
e(f"s_cmp_lt_u32 s{sWAVE}, 2")
e("s_cbranch_scc0 L_s_nort")
for ks in range(18):
    e(f"ds_read_b128 {v(64+8*ks,4)}, v2 offset:{ks*64}")
    e(f"ds_read_b128 {v(68+8*ks,4)}, v{4+(ks&1)} offset:{(ks>>1)*128}")
    if ks % 6 == 5:
        e("s_waitcnt lgkmcnt(0)")
        for k2 in range(ks-5, ks+1):
            e(f"v_mfma_f32_16x16x32_bf16 v[20:23], {v(64+8*k2,4)}, {v(68+8*k2,4)}, {'0' if k2 == 0 else 'v[20:23]'}")
e(f"s_lshl_b32 s{sT}, s{sS}, 5")
e(f"s_lshl_b32 s{sT+1}, s{sWAVE}, 4")
e(f"s_add_u32 s{sT}, s{sT}, s{sT+1}")
e(f"v_add_u32 v24, s{sT}, v10")
e("s_nop 4")
e("v_cvt_pk_bf16_f32 v20, v20, v20")
e("v_lshrrev_b32 v20, 16, v20")
e("v_bfe_i32 v22, v20, 15, 1")
e("v_and_b32 v22, 0x7fff, v22")
e("v_xor_b32 v20, 0x8000, v20")
e("v_xor_b32 v20, v20, v22")
e("v_sub_u32 v22, 2047, v24")
e("v_lshl_add_u32 v20, v20, 16, v22")
bf16r(21)
sigmoid(26, 21)
bf16r(26)
e("v_mov_b32 v27, v17")
e("v_lshlrev_b32 v24, 3, v24")
row_max_u32(20)
e("v_mov_b32 v21, v17")
e(f"s_lshr_b32 s{sT}, s{sT}, 1")
e(f"s_add_u32 s{sT}, s{sT}, {CAND}")
e(f"s_mov_b32 s{sT+1}, {GG}")
e("s_mov_b64 exec, 1")
e(f"buffer_store_dwordx2 v[20:21], v18, {s_(SWS,4)}, s{sT} offen sc1")
e("s_mov_b64 exec, 0xffff")
e(f"buffer_store_dwordx2 v[26:27], v24, {s_(SWS,4)}, s{sT+1} offen sc1")
e("s_mov_b64 exec, -1")
lab("L_s_nort")
e("s_barrier")
e(f"s_cmp_eq_u32 s{sWAVE}, 0")
e("s_cbranch_scc0 L_s_nocand")
cand_issue(20, 24)
e("s_waitcnt vmcnt(0)")
cand_check(20, 24, 17)
e(f"s_mul_i32 s{sT}, s{sIDX}, 1152")
e(f"s_mov_b32 m0, {XS}")
e("s_nop 0")
e(f"buffer_load_dwordx4 v24, {s_(SX,4)}, s{sT} offen lds")
e(f"buffer_load_dwordx4 v24, {s_(SX,4)}, s{sT} offen offset:1024 lds")
e("s_waitcnt vmcnt(0)")
lab("L_s_nocand")
stamp(2)
e("s_barrier")
stamp(3)
XF = 64
for ks in range(18):
    e(f"ds_read_b64 {v(XF+4*ks,2)}, v7 offset:{ks*64}")
    e(f"ds_read_b64 {v(XF+4*ks+2,2)}, v7 offset:{ks*64+32}")
    if ks % 6 == 5: e("s_waitcnt lgkmcnt(0)")
WF = 140
def gemv(dst, steps):
    for g0 in range(0, len(steps), 6):
        grp = steps[g0:g0+6]
        for i, (ar, off) in enumerate(grp):
            e(f"ds_read_b64_tr_b16 {v(WF+4*i,2)}, v{ar} offset:{off}")
            e(f"ds_read_b64_tr_b16 {v(WF+4*i+2,2)}, v{ar} offset:{off+2048}")
        e("s_waitcnt lgkmcnt(0)")
        for i in range(len(grp)):
            ks = g0 + i
            e(f"v_mfma_f32_16x16x32_bf16 {v(dst,4)}, {v(WF+4*i,4)}, {v(XF+4*ks,4)}, {'0' if ks == 0 else v(dst,4)}")
e(f"v_add_u32 v12, {GATE}, v6")
e(f"v_add_u32 v13, {GATE+36864}, v6")
gemv(20, [(12, ks*4096) if ks < 9 else (13, (ks-9)*4096) for ks in range(18)])
e("s_barrier")
e(f"v_add_u32 v12, {UPA}, v6")
e("s_barrier")
gemv(24, [(12, ks*4096) if ks < 11 else (6, UPB + (ks-11)*4096) for ks in range(18)])
e(f"s_and_b32 s{sT}, s{sS}, 7")
e(f"s_mul_i32 s{sT}, s{sT}, 144")
e(f"v_add_u32 v7, s{sT}, v7")
for ks in range(2):
    e(f"ds_read_b64 {v(XF+4*ks,2)}, v7 offset:{ks*64}")
    e(f"ds_read_b64 {v(XF+4*ks+2,2)}, v7 offset:{ks*64+32}")
e(f"ds_read_b64 {v(XF+8,2)}, v7 offset:128")
e(f"v_mov_b32 v{XF+10}, 0")
e(f"v_mov_b32 v{XF+11}, 0")
for r in range(4):
    bf16r(20+r)
    bf16r(24+r)
    sigmoid(28, 20+r)
    e(f"v_mul_f32 v{20+r}, v{20+r}, v28")
    bf16r(20+r)
    e(f"v_mul_f32 v{20+r}, v{20+r}, v{24+r}")
e("v_cvt_pk_bf16_f32 v20, v20, v21")
e("v_cvt_pk_bf16_f32 v21, v22, v23")
e(f"s_lshl_b32 s{sT}, s{sWAVE}, 5")
e(f"s_add_u32 s{sT}, s{sT}, {HS}")
e(f"v_lshl_add_u32 v22, v11, 3, s{sT}")
e("s_waitcnt lgkmcnt(0)")
e(f"v_and_b32 v{XF+8}, v8, v{XF+8}")
e(f"v_and_b32 v{XF+9}, v8, v{XF+9}")
e("s_barrier")
e("ds_write_b64 v22, v[20:21]")
e(f"v_add_u32 v12, {GATE}, v6")
e(f"v_add_u32 v13, {GATE+8192}, v9")
for m in range(2):
    o = m * 10240
    e(f"ds_read_b64_tr_b16 {v(WF+12*m,2)}, v12 offset:{o}")
    e(f"ds_read_b64_tr_b16 {v(WF+12*m+2,2)}, v12 offset:{o+2048}")
    e(f"ds_read_b64_tr_b16 {v(WF+12*m+4,2)}, v12 offset:{o+4096}")
    e(f"ds_read_b64_tr_b16 {v(WF+12*m+6,2)}, v12 offset:{o+6144}")
    e(f"ds_read_b64_tr_b16 {v(WF+12*m+8,2)}, v13 offset:{o}")
    e(f"ds_read_b64_tr_b16 {v(WF+12*m+10,2)}, v13 offset:{o}")
e("s_waitcnt lgkmcnt(0)")
for ks in range(3):
    for m in range(2):
        d = 24 + 4*m
        e(f"v_mfma_f32_16x16x32_bf16 {v(d,4)}, {v(WF+12*m+4*ks,4)}, {v(XF+4*ks,4)}, {'0' if ks == 0 else v(d,4)}")
e(f"s_lshl_b32 s{sT}, s{sS}, 10")
e(f"s_lshl_b32 s{sT+1}, s{sWAVE}, 7")
e(f"s_add_u32 s{sT}, s{sT}, s{sT+1}")
e(f"s_add_u32 s{sT}, s{sT}, {PP}")
e("v_lshlrev_b32 v22, 5, v11")
e("v_cmp_eq_u32 vcc, 0, v10")
e("s_nop 2")
for m in range(2):
    for hf in range(2):
        R = 32 + 4*(2*m+hf)
        e(f"v_mov_b32 v{R}, v{24+4*m+2*hf}")
        e(f"v_mov_b32 v{R+1}, v17")
        e(f"v_mov_b32 v{R+2}, v{24+4*m+2*hf+1}")
        e(f"v_mov_b32 v{R+3}, v17")
e("s_mov_b64 exec, vcc")
for m in range(2):
    for hf in range(2):
        R = 32 + 4*(2*m+hf)
        e(f"buffer_store_dwordx4 {v(R,4)}, v22, {s_(SWS,4)}, s{sT} offen offset:{512*m+16*hf} sc1")
e("s_mov_b64 exec, -1")
lab("L_s_done")
e("s_waitcnt lgkmcnt(0)")
e("s_barrier")
stamp(4)
srd(SW, pWD, 4608 * 1152)
e(f"s_mov_b32 s{sT+13}, 0")
e(f"s_lshl_b32 s{sT}, s{sWAVE}, 6")
e(f"v_add_u32 v10, s{sT}, v1")
e(f"s_lshl_b32 s{sT+1}, s{sS}, 6")
e(f"s_mul_i32 s{sT+2}, s{sS}, 56")
e(f"s_sub_u32 s{sT+2}, 4032, s{sT+2}")
for n in range(12):
    if n: e("v_add_u32 v10, 512, v10")
    divmod_const(11, 12, 10, 74, 6143, sT)
    e("v_subrev_u32 v13, 64, v11")
    e("v_ashrrev_i32 v13, 31, v13")
    e(f"v_bfi_b32 v13, v13, 0, s{sT+2}")
    e(f"v_add3_u32 v13, v13, v11, s{sT+1}")
    e("v_mul_u32_u24 v13, 1152, v13")
    e("v_lshl_add_u32 v13, v12, 4, v13")
    e("v_subrev_u32 v11, 72, v11")
    e("v_ashrrev_i32 v11, 31, v11")
    e(f"v_bfi_b32 v{144+n}, v11, v13, 2.0")

tag_issue(17, 18)
e(f"s_mov_b32 s{sFLAG}, {BIGOFF}")

vQ, vL16, vKA, vKX, vVA, vHM, vQX, vOX = 2, 3, 4, 5, 6, 7, 8, 9
Q1, Q2, K1, K2, VF, PB, MX = 20, 24, 28, 32, 36, 44, 52
SB0, SB1, OA, M8, M0, BV = 64, 80, 96, 112, 128, 144
sOQ, sOK, sOKX, sBS = sT+10, sT+11, sT+12, sT+13
def SBUF(d): return SB0 if d % 2 == 0 else SB1

def bulk_wo():
    srd(SW, pWO, 576 * 1152)
    e(f"s_mul_i32 s{sBS}, s{sCS}, 144")
    e(f"s_lshl_b32 s{sT}, s{sWAVE}, 6")
    e(f"v_add_u32 v10, s{sT}, v1")
    for n in range(12):
        if n: e("v_add_u32 v10, 512, v10")
        divmod_const(11, 12, 10, 10, 6143, sT)
        e("v_mul_u32_u24 v11, 1152, v11")
        e(f"v_lshl_add_u32 v{BV+n}, v12, 4, v11")

def bulk_issue(flags=""):
    e(f"s_lshl_b32 s{sT}, s{sWAVE}, 10")
    e(f"s_add_u32 m0, s{sT}, {BULK}")
    for n in range(12):
        if n: e("s_add_u32 m0, m0, 8192")
        e("s_nop 0")
        e(f"buffer_load_dwordx4 v{BV+n}, {s_(SW,4)}, s{sBS} offen {flags}lds")

lab("L_p2")
e(f"s_and_b32 s{sT}, s{sSLOT}, 3")
e(f"s_lshl_b32 s{sH}, s{sXCD}, 2")
e(f"s_add_u32 s{sH}, s{sH}, s{sT}")
e(f"s_lshr_b32 s{sCS}, s{sSLOT}, 2")
e(f"s_add_u32 s{sJ}, s{sCS}, 1")
e(f"s_and_b32 s{sJ}, s{sJ}, 7")
e(f"s_sub_u32 s{sI}, 11, s{sWAVE}")
e(f"s_cmp_lt_u32 s{sWAVE}, 4")
e(f"s_cselect_b32 s{sI}, s{sWAVE}, s{sI}")
e(f"s_lshl_b32 s{sTB}, s{sT}, 6")
e(f"s_and_b32 s{sT}, s{sXCD}, 3")
e(f"s_lshl_b32 s{sT}, s{sT}, 9")
e(f"s_add_u32 s{sTB}, s{sTB}, s{sT}")
e(f"s_lshr_b32 s{sT}, s{sXCD}, 2")
e(f"s_lshl_b32 s{sT}, s{sT}, 8")
e(f"s_add_u32 s{sTB}, s{sTB}, s{sT}")
e(f"s_sub_u32 s{sDMIN}, 8, s{sI}")
e(f"s_cmp_eq_u32 s{sJ}, 0")
e(f"s_cselect_b32 s{sDMIN}, s{sDMIN}, 0")
e(f"s_lshr_b32 s{sT}, s{sH}, 3")
e(f"s_lshr_b32 s{sT+1}, s{sI}, 2")
e(f"s_lshl_b32 s{sT+2}, s{sJ}, 1")
e(f"s_add_u32 s{sT+1}, s{sT+1}, s{sT+2}")
e(f"s_mul_i32 s{sT+1}, s{sT+1}, 12")
e(f"s_add_u32 s{sT+1}, s{sT+1}, s{sT}")
e(f"s_lshl_b32 s{sT+1}, s{sT+1}, 7")
e(f"s_lshr_b32 s{sT+3}, s{sWAVE}, 1")
e(f"s_add_u32 s{sT+3}, s{sT+3}, s{sT+2}")
e(f"s_sub_u32 s{sT+3}, s{sT+3}, 2")
e(f"s_mul_i32 s{sT+4}, s{sT+3}, 12")
e(f"s_add_u32 s{sT+4}, s{sT+4}, s{sT}")
e(f"s_add_u32 s{sT+4}, s{sT+4}, 4")
e(f"s_lshl_b32 s{sT+4}, s{sT+4}, 7")
e(f"s_add_u32 s{sT+5}, s{sT+4}, 512")
e(f"s_lshl_b32 s{sT+6}, s{sJ}, 12")
e(f"s_lshl_b32 s{sT+7}, s{sI}, 9")
e(f"s_add_u32 s{sOQ}, s{sT+6}, s{sT+7}")
e(f"s_lshl_b32 s{sT+7}, s{sWAVE}, 10")
e(f"s_add_u32 s{sT+6}, s{sT+6}, s{sT+7}")
e(f"s_sub_u32 s{sT+6}, s{sT+6}, 4096")
e(f"s_lshl_b32 s{sT+7}, s{sH}, 16")
e(f"s_add_u32 s{sOK}, s{sT+6}, s{sT+7}")
e(f"s_add_u32 s{sOK}, s{sOK}, {QKV + 32*65536}")
e(f"s_lshr_b32 s{sT+8}, s{sH}, 1")
e(f"s_lshl_b32 s{sT+8}, s{sT+8}, 15")
e(f"s_add_u32 s{sOKX}, s{sT+6}, s{sT+8}")
e(f"s_add_u32 s{sOKX}, s{sOKX}, {XP + 16*32768}")
e(f"s_cmp_lt_i32 s{sT+3}, 0")
e(f"s_cselect_b32 s{sOK}, {BIGOFF}, s{sOK}")
e(f"s_cselect_b32 s{sOKX}, {BIGOFF}, s{sOKX}")
e(f"s_cselect_b32 s{sT+4}, s{sT+1}, s{sT+4}")
e(f"s_cselect_b32 s{sT+5}, s{sT+1}, s{sT+5}")
e(f"v_mov_b32 v16, s{sT+1}")
e(f"v_writelane_b32 v16, s{sT+4}, 1")
e(f"v_writelane_b32 v16, s{sT+5}, 2")
e("v_and_b32 v10, 31, v1")
e("v_lshrrev_b32 v11, 5, v1")
e(f"v_lshlrev_b32 v{vL16}, 4, v1")
e(f"v_lshlrev_b32 v{vQ}, 15, v11")
e(f"v_lshl_add_u32 v{vQ}, v10, 4, v{vQ}")
e(f"v_lshlrev_b32 v{vKA}, 13, v11")
e(f"v_lshl_add_u32 v{vKA}, v10, 4, v{vKA}")
e(f"s_lshl_b32 s{sT}, s{sI}, 9")
e(f"v_add_u32 v{vKA}, s{sT}, v{vKA}")
e(f"s_and_b32 s{sT+2}, s{sH}, 1")
e(f"s_lshl_b32 s{sT+2}, s{sT+2}, 3")
e(f"s_add_u32 s{sT+3}, s{sT}, s{sT+2}")
e(f"s_add_u32 s{sT+4}, s{sT+3}, {KX}")
e(f"v_lshl_add_u32 v{vKX}, v10, 4, s{sT+4}")
e(f"v_subrev_u32 v{vHM}, 1, v11")
e(f"v_lshlrev_b32 v12, 30, v11")
e(f"v_lshl_add_u32 v{vQX}, v10, 4, v12")
e(f"v_lshl_add_u32 v{vOX}, v10, 2, v12")
e("v_bfe_u32 v12, v1, 2, 2")
e("v_lshl_add_u32 v12, v11, 2, v12")
e("v_lshlrev_b32 v12, 4, v12")
e("v_bfe_u32 v13, v1, 1, 1")
e(f"v_mul_u32_u24 v13, {VP1-VP0}, v13")
e("v_and_b32 v14, 1, v1")
e("v_lshl_add_u32 v13, v14, 3, v13")
e(f"v_add_u32 v13, {VP0}, v13")
e(f"s_add_u32 s{sT+4}, s{sT+2}, {VX}")
e(f"v_sub_u32 v14, s{sT+4}, v13")
e("v_bfe_u32 v15, v1, 4, 1")
e("v_mul_u32_u24 v14, v14, v15")
e("v_add_u32 v13, v13, v14")
e(f"v_add3_u32 v{vVA}, v12, v13, s{sT}")
e("v_lshlrev_b32 v12, 2, v11")
e("v_sub_u32 v12, v10, v12")
e(f"s_mov_b32 s{sT}, {NEGBIG}")
for r in range(16):
    ko = 8 * (r >> 2) + (r & 3)
    e(f"v_subrev_u32 v13, {ko}, v12")
    e(f"v_ashrrev_i32 v13, 31, v13")
    e(f"v_and_b32 v{M8+r}, s{sT}, v13")
    e(f"v_xor_b32 v{M0+r}, s{sT}, v{M8+r}")
for r in (Q2+1, Q2+2, Q2+3, K2+2, K2+3): e(f"v_mov_b32 v{r}, 0")
for r in range(16): e(f"v_mov_b32 v{OA+r}, 0")
e(f"s_cmp_eq_u32 s{sISS}, 0")
e("s_cbranch_scc0 L_p2_nobulk")
bulk_wo()
lab("L_p2_nobulk")
e("s_waitcnt vmcnt(0)")
tag_check(17, 18)
e(f"v_mov_b32 v17, s{sTAG}")
e("s_mov_b64 exec, 1")
e(f"buffer_store_dword v17, v18, {s_(SWS,4)}, s{sFLAG} offen sc1")
stamp(5)
e("s_mov_b64 exec, 7")
e(f"s_mov_b32 s{sT}, 0")
lab("L_poll1")
e(f"buffer_load_dwordx4 v[12:15], v16, {s_(SWS,4)}, 0 offen sc1")
e("s_waitcnt vmcnt(0)")
for r in range(12, 16): e(f"v_xor_b32 v{r}, v17, v{r}")
e("v_or_b32 v12, v12, v13")
e("v_or3_b32 v12, v12, v14, v15")
e("v_cmp_eq_u32 vcc, 0, v12")
e("s_cmp_eq_u32 vcc_lo, 7")
e("s_cbranch_scc1 L_poll1d")
bound(sT)
e("s_branch L_poll1")
lab("L_poll1d")
e("s_mov_b64 exec, -1")
stamp(6)
e(f"s_lshl_b32 s{sT}, s{sH}, 16")
e(f"s_add_u32 s{sT}, s{sT}, s{sOQ}")
e(f"s_add_u32 s{sT}, s{sT}, {QKV}")
e(f"buffer_load_dwordx4 {v(Q1,4)}, v{vQ}, {s_(SWS,4)}, s{sT} offen sc1")
e(f"s_add_u32 s{sT}, s{sT+8}, s{sOQ}")
e(f"s_add_u32 s{sT}, s{sT}, s{sT+2}")
e(f"s_add_u32 s{sT}, s{sT}, {XP}")
e(f"buffer_load_dword v{Q2}, v{vQX}, {s_(SWS,4)}, s{sT} offen sc1")
e(f"s_lshl_b32 s{sT+1}, s{sWAVE}, 10")
for (ld, so, add) in ((KP0, sOK, 0), (KP1, sOK, 32768), (KX, sOKX, 0), (VP0, sOK, 32*65536), (VP1, sOK, 32*65536+32768), (VX, sOKX, 16*32768)):
    e(f"s_add_u32 m0, s{sT+1}, {ld}")
    e(f"s_add_u32 s{sT}, s{so}, {add}")
    e(f"buffer_load_dwordx4 v{vL16}, {s_(SWS,4)}, s{sT} offen sc1 lds")
bulk_issue()
e("s_waitcnt vmcnt(15)")
e("s_barrier")
stamp(7)

def kread(d):
    e(f"ds_read_b128 {v(K1,4)}, v{vKA} offset:{d*512}")
    e(f"ds_read_b64 {v(K2,2)}, v{vKX} offset:{d*512}")
def qk(d):
    S = SBUF(d)
    cin = v(M8,16) if d == 8 else (v(M0,16) if d == 0 else "0")
    e(f"v_mfma_f32_32x32x16_bf16 {v(S,16)}, {v(K1,4)}, {v(Q1,4)}, {cin}")
    e(f"v_mfma_f32_32x32x16_bf16 {v(S,16)}, {v(K2,4)}, {v(Q2,4)}, {v(S,16)}")

c("pass 1: exact row max")
kread(8)
e(f"v_mov_b32 v{MX}, {NEGBIG}")
e(f"v_mov_b32 v{MX+1}, {NEGBIG}")
e("s_waitcnt lgkmcnt(0)")
qk(8)
kread(7)
e("s_nop 7")
for d in range(8, -1, -1):
    if d > 0:
        e("s_waitcnt lgkmcnt(0)")
        qk(d - 1)
        if d > 1: kread(d - 2)
        else: e("s_nop 1")
    else:
        e("s_nop 4")
    S = SBUF(d)
    for r in range(8):
        e(f"v_max3_f32 v{MX + (r & 1)}, v{MX + (r & 1)}, v{S+2*r}, v{S+2*r+1}")
    if d > 0:
        e(f"s_cmp_eq_u32 s{sDMIN}, {d}")
        e("s_cbranch_scc1 L_p1done")
lab("L_p1done")
e(f"v_max_f32 v{MX}, v{MX}, v{MX+1}")
e(f"s_waitcnt lgkmcnt(0)")
kread(8)
e(f"v_mov_b32 v{MX+1}, v{MX}")
e("s_nop 1")
e(f"v_permlane32_swap_b32 v{MX}, v{MX+1}")
e(f"v_max_f32 v{MX}, v{MX}, v{MX+1}")
e(f"v_sub_f32 v{MX}, 0, v{MX}")
e(f"v_cvt_pk_bf16_f32 v{MX+1}, v{MX}, v{MX}")
e(f"v_lshlrev_b32 v{MX+1}, 16, v{MX+1}")
e(f"v_sub_f32 v{MX+1}, v{MX}, v{MX+1}")
e(f"v_cvt_pk_bf16_f32 v{MX}, v{MX}, v{MX+1}")
e(f"v_and_b32 v{Q2+1}, v{vHM}, v{MX}")
stamp(8)
e("s_waitcnt vmcnt(12) lgkmcnt(0)")
e("s_barrier")
stamp(9)
c("pass 2")
qk(8)
kread(7)
e("s_nop 5")
for d in range(8, -1, -1):
    for u in range(2):
        for wh in range(2):
            e(f"ds_read_b64_tr_b16 {v(VF+4*u+2*wh,2)}, v{vVA} offset:{d*512+u*256+wh*128}")
    if d > 0:
        e("s_waitcnt lgkmcnt(4)")
        qk(d - 1)
        if d > 1: kread(d - 2)
    S = SBUF(d)
    nk = 2 if d > 1 else 0
    for u in range(2):
        b = S + 8*u
        seq = [f"v_exp_f32 v{b}, v{b}", f"v_exp_f32 v{b+1}, v{b+1}", f"v_exp_f32 v{b+2}, v{b+2}"]
        for k in range(4):
            seq.append(f"v_cvt_pk_bf16_f32 v{PB+4*u+k}, v{b+2*k}, v{b+2*k+1}")
            for r in (2*k+3, 2*k+4):
                if r < 8: seq.append(f"v_exp_f32 v{b+r}, v{b+r}")
        seq.insert(len(seq)-1, f"s_waitcnt lgkmcnt({nk})" if u == 0 else "s_nop 0")
        for x in seq: e(x)
        e("s_nop 1")
        e(f"v_mfma_f32_32x32x16_bf16 {v(OA,16)}, {v(VF+4*u,4)}, {v(PB+4*u,4)}, {v(OA,16)}")
    if d > 0:
        e(f"s_cmp_eq_u32 s{sDMIN}, {d}")
        e("s_cbranch_scc1 L_p2done")
lab("L_p2done")
e(f"s_lshl_b32 s{sT}, s{sH}, 16")
e(f"s_add_u32 s{sT}, s{sT}, s{sOQ}")
e(f"s_add_u32 s{sT}, s{sT}, {OM}")
e(f"s_lshl_b32 s{sT+1}, s{sH}, 13")
e(f"s_lshr_b32 s{sT+2}, s{sOQ}, 2")
e(f"s_add_u32 s{sT+1}, s{sT+1}, s{sT+2}")
e(f"s_add_u32 s{sT+1}, s{sT+1}, {OX}")
e(f"s_lshl_b32 s{sFLAG}, s{sJ}, 5")
e(f"s_add_u32 s{sFLAG}, s{sFLAG}, s{sH}")
e(f"s_lshl_b32 s{sFLAG}, s{sFLAG}, 5")
e(f"s_add_u32 s{sFLAG}, s{sFLAG}, s{sI}")
e(f"s_lshl_b32 s{sFLAG}, s{sFLAG}, 2")
e(f"s_add_u32 s{sFLAG}, s{sFLAG}, {F2}")
e(f"v_rcp_f32 v{MX}, v{OA+10}")
e("s_nop 0")
for r in range(10): e(f"v_mul_f32 v{OA+r}, v{MX}, v{OA+r}")
for k in range(5): e(f"v_cvt_pk_bf16_f32 v{PB+k}, v{OA+2*k}, v{OA+2*k+1}")
e(f"buffer_store_dwordx4 {v(PB,4)}, v{vQ}, {s_(SWS,4)}, s{sT} offen sc1")
e(f"buffer_store_dword v{PB+4}, v{vOX}, {s_(SWS,4)}, s{sT+1} offen sc1")
stamp(10)

vOM, vOXL, vWM, vWX, vRW, vT1, vT2, vX1, vX2, vF2, vG1, vG2 = 2, 3, 4, 5, 6, 7, 8, 9, 10, 11, 14, 15
X1, X2, G1, G2, CD = 20, 24, 28, 30, 32
OF, A3, WO = 36, 72, 92
sTT, sKH, sHASY = sT+10, sT+11, sT+12
e(f"s_and_b32 s{sTT}, s{sWAVE}, 3")
e(f"s_lshr_b32 s{sKH}, s{sWAVE}, 2")
e(f"s_mul_i32 s{sT}, s{sTB}, 1152")
e(f"s_mul_i32 s{sT+1}, s{sCS}, 144")
e(f"s_add_u32 s{sT}, s{sT}, s{sT+1}")
e(f"s_lshl_b32 s{sT+1}, s{sTB}, 3")
e(f"s_add_u32 s{sT+1}, s{sT+1}, {GG}")
e(f"s_cmp_eq_u32 s{sWAVE}, 7")
e(f"s_cselect_b32 s{sT+2}, 0, {BIGOFF}")
for (tau0, vt, vx, vg) in ((None, vT1, vX1, vG1), (512, vT2, vX2, vG2)):
    if tau0 is None: src = 0
    else:
        e(f"v_add_u32 v16, {tau0}, v1"); src = 16
    divmod_const(12, 13, src, 9, 575, sT)
    e(f"v_mul_u32_u24 v{vt}, {RP}, v12")
    e(f"v_lshl_add_u32 v{vt}, v13, 5, v{vt}")
    e(f"v_mul_u32_u24 v{vx}, 1152, v12")
    e(f"v_lshl_add_u32 v{vx}, v13, 4, v{vx}")
    e(f"v_add_u32 v{vx}, s{sT}, v{vx}")
    e(f"v_lshl_add_u32 v{vg}, v12, 3, s{sT+1}")
    if tau0 is not None:
        e(f"v_add_u32 v{vx}, s{sT+2}, v{vx}")
e(f"buffer_load_dwordx4 {v(X1,4)}, v{vX1}, {s_(SX,4)}, 0 offen")
e(f"buffer_load_dwordx4 {v(X2,4)}, v{vX2}, {s_(SX,4)}, 0 offen")
e(f"buffer_load_dwordx2 {v(G1,2)}, v{vG1}, {s_(SWS,4)}, 0 offen sc1")
e(f"buffer_load_dwordx2 {v(G2,2)}, v{vG2}, {s_(SWS,4)}, 0 offen sc1")
cand_issue(CD, 19)
e("v_and_b32 v12, 15, v1")
e("v_lshrrev_b32 v13, 4, v1")
e(f"v_lshlrev_b32 v{vOM}, 15, v13")
e(f"v_lshl_add_u32 v{vOXL}, v12, 2, v{vOM}")
e(f"v_lshl_add_u32 v{vOM}, v12, 4, v{vOM}")
e(f"s_lshl_b32 s{sT}, s{sTT}, 4")
e(f"v_add_u32 v{vRW}, s{sT}, v12")
e(f"v_mul_u32_u24 v{vRW}, {RP}, v{vRW}")
e(f"v_lshl_add_u32 v{vRW}, v13, 4, v{vRW}")
e(f"s_mul_i32 s{sT}, s{sKH}, {R1-R0}")
e(f"v_add_u32 v{vRW}, s{sT}, v{vRW}")
e(f"s_lshr_b32 s{sT}, s{sTB}, 8")
e(f"s_lshl_b32 s{sT}, s{sT}, 5")
e(f"s_lshl_b32 s{sT+1}, s{sKH}, 4")
e(f"s_add_u32 s{sT}, s{sT}, s{sT+1}")
e(f"s_lshl_b32 s{sT}, s{sT}, 7")
e(f"s_lshl_b32 s{sT+1}, s{sTT}, 4")
e(f"s_add_u32 s{sT+3}, s{sTB}, s{sT+1}")
e(f"s_bfe_u32 s{sT+1}, s{sT+3}, 0x30005")
e(f"s_lshl_b32 s{sT+1}, s{sT+1}, 2")
e(f"s_add_u32 s{sT}, s{sT}, s{sT+1}")
e(f"s_add_u32 s{sT}, s{sT}, {F2}")
e(f"v_lshl_add_u32 v{vF2}, v1, 7, s{sT}")
e("v_bfe_u32 v16, v1, 2, 2")
e(f"v_mul_u32_u24 v{vWX}, 72, v13")
e(f"v_add3_u32 v{vWX}, v{vWX}, v16, 16")
e(f"v_lshrrev_b32 v{vWM}, 1, v13")
e(f"v_mul_u32_u24 v{vWM}, 20, v{vWM}")
e("v_and_b32 v13, 1, v13")
e("v_lshl_add_u32 v13, v13, 2, v16")
e(f"v_add_u32 v{vWM}, v{vWM}, v13")
e("v_and_b32 v13, 3, v1")
e("v_lshlrev_b32 v13, 3, v13")
e(f"s_mul_i32 s{sT}, s{sKH}, {288*160}")
e(f"s_add_u32 s{sT}, s{sT}, {BULK}")
e(f"v_add_u32 v13, s{sT}, v13")
e(f"s_movk_i32 s{sT}, 160")
e(f"v_mad_u32_u24 v{vWM}, v{vWM}, s{sT}, v13")
e(f"v_mad_u32_u24 v{vWX}, v{vWX}, s{sT}, v13")
e("s_waitcnt vmcnt(5)")
e("s_mov_b64 exec, 1")
e(f"buffer_store_dword v17, v18, {s_(SWS,4)}, s{sFLAG} offen sc1")
e("s_mov_b64 exec, -1")
stamp(11)
e("s_barrier")
e(f"s_cmp_eq_u32 s{sISS}, 0")
e("s_cbranch_scc1 L_p3_main")

c("---- S workgroups: down projection of the routed token ----")
e(f"s_cmp_eq_u32 s{sWAVE}, 0")
e("s_cbranch_scc0 L_m2_nog")
e("v_lshrrev_b32 v36, 3, v1")
e("v_lshlrev_b32 v36, 10, v36")
e("v_bfe_u32 v37, v1, 2, 1")
e("v_lshl_add_u32 v36, v37, 9, v36")
e("v_and_b32 v37, 3, v1")
e("v_lshl_add_u32 v36, v37, 4, v36")
e(f"s_lshr_b32 s{sT}, s{sRB}, 3")
e(f"s_lshl_b32 s{sT}, s{sT}, 13")
e(f"s_and_b32 s{sT+1}, s{sRB}, 7")
e(f"s_lshl_b32 s{sT+1}, s{sT+1}, 6")
e(f"s_add_u32 s{sT}, s{sT}, s{sT+1}")
e(f"s_add_u32 s{sT}, s{sT}, {PP}")
e(f"s_mov_b32 s{sT+1}, 0")
lab("L_m2_poll")
e(f"buffer_load_dwordx4 v[40:43], v36, {s_(SWS,4)}, s{sT} offen sc1")
e("s_waitcnt vmcnt(0)")
e("v_xor_b32 v41, v17, v41")
e("v_xor_b32 v43, v17, v43")
e("v_or_b32 v41, v41, v43")
e("v_cmp_eq_u32 vcc, 0, v41")
e("s_cmp_eq_u64 vcc, -1")
e("s_cbranch_scc1 L_m2_got")
bound(sT+1)
e("s_branch L_m2_poll")
lab("L_m2_got")
for r in (40, 42):
    e("s_nop 1")
    e(f"v_add_f32_dpp v{r}, v{r}, v{r} row_ror:8 row_mask:0xf bank_mask:0xf")
    cross_rows("v_add_f32", r, 41)
    bf16r(r)
    e("s_nop 1")
    e(f"v_mov_b32_dpp v{r+1}, v{r} row_ror:12 row_mask:0xf bank_mask:0xf")
    sigmoid(44, r)
    e(f"v_mul_f32 v{r}, v{r}, v44")
    bf16r(r)
    e(f"v_mul_f32 v{r}, v{r}, v{r+1}")
e("v_cvt_pk_bf16_f32 v40, v40, v42")
e(f"v_lshlrev_b32 v41, 2, v1")
e("s_mov_b64 exec, 15")
e(f"ds_write_b32 v41, v40 offset:{(HS + 128) - 131072}" if False else f"v_add_u32 v41, {HS+128}, v41")
e("ds_write_b32 v41, v40")
e("s_mov_b64 exec, -1")
e("s_waitcnt lgkmcnt(0)")
lab("L_m2_nog")
e("s_barrier")
e("v_lshrrev_b32 v36, 4, v1")
e(f"v_mov_b32 v37, {HS}")
e("v_lshl_add_u32 v37, v36, 3, v37")
for ks in range(2):
    e(f"ds_read_b64 {v(40+4*ks,2)}, v37 offset:{64*ks}")
    e(f"ds_read_b64 {v(42+4*ks,2)}, v37 offset:{64*ks+32}")
e(f"ds_read_b64 v[48:49], v37 offset:128")
e("v_mov_b32 v50, 0")
e("v_mov_b32 v51, 0")
e("v_lshrrev_b32 v38, 2, v1")
e("v_and_b32 v39, 7, v38")
e("v_add_u32 v39, 64, v39")
e("v_and_b32 v37, 3, v1")
e("v_lshlrev_b32 v37, 3, v37")
e(f"s_lshl_b32 s{sT}, s{sWAVE}, 5")
e(f"s_add_u32 s{sT}, s{sT}, {BULK}")
e(f"v_add_u32 v37, s{sT}, v37")
e(f"s_movk_i32 s{sT}, 1184")
e(f"v_mad_u32_u24 v38, v38, s{sT}, v37")
e(f"v_mad_u32_u24 v39, v39, s{sT}, v37")
e("v_subrev_u32 v37, 2, v36")
e("v_ashrrev_i32 v37, 31, v37")
e("s_waitcnt lgkmcnt(0)")
e("v_and_b32 v48, v37, v48")
e("v_and_b32 v49, v37, v49")
for n in range(5):
    F = 92 + 12*n
    for ks in range(2):
        for wh in range(2):
            e(f"ds_read_b64_tr_b16 {v(F+4*ks+2*wh,2)}, v38 offset:{ks*37888+wh*18944+n*256}")
    e(f"ds_read_b64_tr_b16 {v(F+8,2)}, v39 offset:{n*256}")
    e(f"ds_read_b64_tr_b16 {v(F+10,2)}, v39 offset:{n*256}")
    if n % 2 == 1: e("s_waitcnt lgkmcnt(0)")
e("v_and_b32 v37, 15, v1")
e("v_subrev_u32 v37, 1, v37")
e("v_ashrrev_i32 v37, 31, v37")
e("v_lshlrev_b32 v36, 4, v36")
e("v_bfi_b32 v36, v37, v36, 2.0")
e(f"s_mul_i32 s{sT}, s{sRB}, 2304")
e(f"s_lshl_b32 s{sT+1}, s{sWAVE}, 6")
e(f"s_add_u32 s{sT}, s{sT}, s{sT+1}")
e(f"s_add_u32 s{sT}, s{sT}, {YY}")
e(f"s_cmp_lt_u32 s{sWAVE}, 4")
e(f"s_cselect_b32 s{sT+1}, s{sT}, {BIGOFF}")
e("s_waitcnt lgkmcnt(0)")
for ks in range(3):
    for n in range(5):
        e(f"v_mfma_f32_16x16x32_bf16 {v(72+4*n,4)}, {v(92+12*n+4*ks,4)}, {v(40+4*ks,4)}, {'0' if ks == 0 else v(72+4*n,4)}")
e("s_barrier")
e("s_nop 2")
for n in range(5):
    e(f"buffer_store_dwordx4 {v(72+4*n,4)}, v36, {s_(SWS,4)}, s{sT if n < 4 else sT+1} offen offset:{512*n} sc1")
e(f"s_lshl_b32 s{sT+4}, s{sRB}, 7")
e(f"s_lshl_b32 s{sT+5}, s{sWAVE}, 2")
e(f"s_add_u32 s{sT+4}, s{sT+4}, s{sT+5}")
e(f"s_add_u32 s{sT+4}, s{sT+4}, {FY}")
e("v_mov_b32 v60, v10")
e("v_mov_b32 v61, v11")
bulk_wo()
e("v_mov_b32 v10, v60")
e("v_mov_b32 v11, v61")
bulk_issue()
e("s_waitcnt vmcnt(12)")
e("s_mov_b64 exec, 1")
e(f"buffer_store_dword v17, v18, {s_(SWS,4)}, s{sT+4} offen sc1")
e("s_mov_b64 exec, -1")
e("s_waitcnt vmcnt(1)")
e("s_barrier")

lab("L_p3_main")
stamp(12)
def wo_reads(F, ar, off, second):
    for t in range(5):
        e(f"ds_read_b64_tr_b16 {v(F+4*t,2)}, v{ar} offset:{off+32*t}")
        e(f"ds_read_b64_tr_b16 {v(F+4*t+2,2)}, v{ar} offset:{off+second+32*t}")
for sp in range(8):
    wo_reads(WO + 20*sp, vWM, 5760*sp, 1280)
e("s_waitcnt vmcnt(1)")
cand_check(CD, 19, 17)
e(f"s_sub_u32 s{sHASY}, s{sIDX}, s{sTB}")
e("s_mov_b64 exec, 0xffff")
e(f"s_mov_b32 s{sT}, 0")
lab("L_poll2")
e(f"buffer_load_dword v12, v{vF2}, {s_(SWS,4)}, 0 offen sc1")
e("s_waitcnt vmcnt(0)")
e("v_cmp_eq_u32 vcc, v17, v12")
e("s_cmp_eq_u32 vcc_lo, 0xffff")
e("s_cbranch_scc1 L_poll2d")
bound(sT)
e("s_branch L_poll2")
lab("L_poll2d")
e("s_mov_b64 exec, -1")
stamp(13)
e(f"s_lshl_b32 s{sT}, s{sKH}, 20")
e(f"s_lshl_b32 s{sT+1}, s{sT+3}, 4")
e(f"s_add_u32 s{sT}, s{sT}, s{sT+1}")
e(f"s_add_u32 s{sT}, s{sT}, {OM}")
for sp in range(8):
    if sp: e(f"s_add_u32 s{sT}, s{sT}, 131072")
    e(f"buffer_load_dwordx4 {v(OF+4*sp,4)}, v{vOM}, {s_(SWS,4)}, s{sT} offen sc1")
e(f"s_lshl_b32 s{sT}, s{sKH}, 17")
e(f"s_lshl_b32 s{sT+1}, s{sT+3}, 2")
e(f"s_add_u32 s{sT}, s{sT}, s{sT+1}")
e(f"s_add_u32 s{sT}, s{sT}, {OX}")
for i in range(4):
    if i: e(f"s_add_u32 s{sT}, s{sT}, 8192")
    e(f"buffer_load_dword v{OF+32+i}, v{vOXL}, {s_(SWS,4)}, s{sT} offen sc1")
for sp in range(9):
    e(f"s_waitcnt vmcnt({11-sp if sp < 8 else 0}) lgkmcnt(0)")
    F = WO + 20*(sp % 8)
    for t in range(5):
        e(f"v_mfma_f32_16x16x32_bf16 {v(A3+4*t,4)}, {v(F+4*t,4)}, {v(OF+4*sp,4)}, {'0' if sp == 0 else v(A3+4*t,4)}")
    if sp == 0: wo_reads(WO, vWX, 0, 5760)
stamp(14)
e(f"s_cmp_lt_u32 s{sHASY}, 64")
e("s_cbranch_scc0 L_noy1")
c("gather the 64 partial y rows: wave w sums producers 8w..8w+7")
e(f"v_lshrrev_b32 v12, 3, v1")
e(f"v_lshlrev_b32 v12, 7, v12")
e(f"v_and_b32 v13, 7, v1")
e(f"v_lshl_add_u32 v12, v13, 2, v12")
e(f"s_lshl_b32 s{sT}, s{sWAVE}, 10")
e(f"s_add_u32 s{sT}, s{sT}, {FY}")
e(f"s_mov_b32 s{sT+1}, 0")
lab("L_polly")
e(f"buffer_load_dword v13, v12, {s_(SWS,4)}, s{sT} offen sc1")
e("s_waitcnt vmcnt(0)")
e("v_cmp_eq_u32 vcc, v17, v13")
e("s_cmp_eq_u64 vcc, -1")
e("s_cbranch_scc1 L_pollyd")
bound(sT+1)
e("s_branch L_polly")
lab("L_pollyd")
e(f"s_mul_i32 s{sT}, s{sWAVE}, {8*2304}")
e(f"s_mul_i32 s{sT+1}, s{sCS}, 288")
e(f"s_add_u32 s{sT}, s{sT}, s{sT+1}")
e(f"s_add_u32 s{sT}, s{sT}, {YY}")
e("s_mov_b64 exec, 0x3ffff")
for p in range(8):
    if p: e(f"s_add_u32 s{sT}, s{sT}, 2304")
    e(f"buffer_load_dwordx4 {v(100+4*p,4)}, v19, {s_(SWS,4)}, s{sT} offen sc1")
e("s_waitcnt vmcnt(0)")
for p in range(1, 8):
    for i in range(4): e(f"v_add_f32 v{100+i}, v{100+i}, v{100+4*p+i}")
e(f"s_mul_i32 s{sT}, s{sWAVE}, 288")
e(f"s_add_u32 s{sT}, s{sT}, {YR}")
e(f"v_add_u32 v12, s{sT}, v19")
e("ds_write_b128 v12, v[100:103]")
e("s_mov_b64 exec, -1")
lab("L_noy1")
e("s_nop 4")
for t in range(5):
    e(f"ds_write_b128 v{vRW}, {v(A3+4*t,4)} offset:{64*t}")
e("s_waitcnt lgkmcnt(0)")
e("s_barrier")
stamp(15)

def unpack(d, p):
    e(f"v_lshlrev_b32 v{d}, 16, v{p}")
    e(f"v_and_b32 v{d+1}, 0xffff0000, v{p}")
def round8(B, T):
    for k in range(4): e(f"v_cvt_pk_bf16_f32 v{T+k}, v{B+2*k}, v{B+2*k+1}")
    for k in range(4): unpack(B+2*k, T+k)

def task(vt, vx, vg, X, G, nm):
    A, Bq, T = 40, 56, 64
    e(f"ds_read_b128 {v(A,4)}, v{vt} offset:{R0}")
    e(f"ds_read_b128 {v(A+4,4)}, v{vt} offset:{R0+16}")
    e(f"ds_read_b128 {v(A+8,4)}, v{vt} offset:{R1}")
    e(f"ds_read_b128 {v(A+12,4)}, v{vt} offset:{R1+16}")
    lp, done = ul("g"), ul("gd")
    e(f"s_mov_b32 s{sT}, 0")
    lab(lp)
    e(f"v_cmp_eq_u32 vcc, v17, v{G+1}")
    e("s_cmp_eq_u64 vcc, -1")
    e(f"s_cbranch_scc1 {done}")
    bound(sT)
    e(f"buffer_load_dwordx2 {v(G,2)}, v{vg}, {s_(SWS,4)}, 0 offen sc1")
    e("s_waitcnt vmcnt(0)")
    e(f"s_branch {lp}")
    lab(done)
    for k in range(4): unpack(Bq+2*k, X+k)
    e(f"v_sub_f32 v{G+1}, 1.0, v{G}")
    bf16r(G+1)
    e(f"s_cmp_lt_u32 s{sHASY}, 64")
    e(f"s_cbranch_scc0 L_noy2{nm}")
    e(f"v_subrev_u32 v68, {GG}, v{vg}")
    e(f"v_lshrrev_b32 v68, 3, v68")
    e(f"s_mul_i32 s{sT}, s{sHASY}, {RP}")
    e(f"v_subrev_u32 v69, s{sT}, v{vt}")
    e(f"v_and_b32 v69, 0x1e0, v69")
    for w in range(8):
        e(f"ds_read_b128 {v(100+8*w,4)}, v69 offset:{YR+288*w}")
        e(f"ds_read_b128 {v(104+8*w,4)}, v69 offset:{YR+288*w+16}")
        if w % 4 == 3: e("s_waitcnt lgkmcnt(0)")
    for w in range(1, 8):
        for i in range(8): e(f"v_add_f32 v{100+i}, v{100+i}, v{100+8*w+i}")
    round8(100, 110)
    e(f"s_lshr_b32 s{sT}, s{sKEY}, 16")
    e(f"s_bitcmp1_b32 s{sT}, 15")
    e(f"s_cselect_b32 s{sT+1}, 0x8000, 0xffff") if False else None
    e(f"s_cselect_b32 s{sT+1}, 0, 0x7fff")
    e(f"s_xor_b32 s{sT}, s{sT}, s{sT+1}")
    e(f"s_xor_b32 s{sT}, s{sT}, 0x8000")
    e(f"s_lshl_b32 s{sT}, s{sT}, 16")
    e(f"v_mov_b32 v108, s{sT}")
    sigmoid(109, 108)
    bf16r(109)
    for i in range(8): e(f"v_mul_f32 v{100+i}, v109, v{100+i}")
    round8(100, 110)
    for i in range(8): e(f"v_add_f32 v{100+i}, v{Bq+i}, v{100+i}")
    round8(100, 110)
    e(f"v_cmp_eq_u32 vcc, s{sIDX}, v68")
    e("s_nop 1")
    for i in range(8): e(f"v_cndmask_b32 v{Bq+i}, v{Bq+i}, v{100+i}, vcc")
    lab(f"L_noy2{nm}")
    e("s_waitcnt lgkmcnt(0)")
    for i in range(8): e(f"v_add_f32 v{A+i}, v{A+i}, v{A+8+i}")
    round8(A, T)
    for i in range(8): e(f"v_mul_f32 v{A+i}, v{G}, v{A+i}")
    for i in range(8): e(f"v_mul_f32 v{Bq+i}, v{G+1}, v{Bq+i}")
    round8(A, T)
    round8(Bq, T)
    for i in range(8): e(f"v_add_f32 v{A+i}, v{A+i}, v{Bq+i}")
    for k in range(4): e(f"v_cvt_pk_bf16_f32 v{T+k}, v{A+2*k}, v{A+2*k+1}")
    e(f"buffer_store_dwordx4 {v(T,4)}, v{vx}, {s_(SOUT,4)}, 0 offen")
task(vT1, vX1, vG1, X1, G1, "a")
e(f"s_cmp_eq_u32 s{sWAVE}, 7")
e("s_cbranch_scc0 L_fin")
task(vT2, vX2, vG2, X2, G2, "b")
lab("L_fin")
stamp(16)

if PROF:
    e(f"s_lshl_b32 s{sT}, s2, 3")
    e(f"s_add_u32 s{sT}, s{sT}, s{sWAVE}")
    e(f"s_lshl_b32 s{sT}, s{sT}, 7")
    e(f"s_add_u32 s{sT}, s{sT}, {PROFB}")
    e("v_lshlrev_b32 v2, 2, v1")
    e("s_mov_b64 exec, 0xffffffff")
    e(f"buffer_store_dword v255, v2, {s_(SWS,4)}, s{sT} offen")
lab("L_end")
e("s_endpgm")

body = "\n".join(L)
hdr = open("cdna_kernels/" + NAME + ".s.ref").read().split("; Override launch")[0]
text = hdr + f"""; @launch grid=(256,1,1) block=(512,1,1) lds={LDS_TOTAL}
.amdgcn_target "amdgcn-amd-amdhsa--gfx950"
.text
.globl {NAME}_kernel
.p2align 8
.type {NAME}_kernel,@function
{body}
.section .rodata,"a"
.p2align 6
.amdhsa_kernel {NAME}_kernel
  .amdhsa_next_free_vgpr 256
  .amdhsa_next_free_sgpr 102
  .amdhsa_accum_offset 256
  .amdhsa_group_segment_fixed_size 0
  .amdhsa_kernarg_size 96
  .amdhsa_user_sgpr_count 2
  .amdhsa_user_sgpr_kernarg_segment_ptr 1
  .amdhsa_system_sgpr_workgroup_id_x 1
.end_amdhsa_kernel
"""
out = [a for a in sys.argv[1:] if not a.startswith("--")]
path = out[0] if out else "cdna_kernels/" + NAME + ".s"
open(path, "w").write(text)
errs = hazard.check(body)
print("\n".join(errs) if errs else "hazard check clean", file=sys.stderr)
```

```python
import sys, math, struct
import hazard

NAME = "gated_mix__sliding_block__moe_arch_mod__prompt"
DBGT = "--dbgt" in sys.argv
PROF = "--prof" in sys.argv or DBGT
NOLOAD = "--noload" in sys.argv
NOCOMP = "--nocomp" in sys.argv
NOMFMA = "--nomfma" in sys.argv
NOREAD = "--noread" in sys.argv
XNOSWZ = "--xnoswz" in sys.argv
NOX = "--nox" in sys.argv
NOW = "--now" in sys.argv
WAL = "--wal" in sys.argv
STOP = None
for a in sys.argv:
    if a.startswith("--stop="): STOP = a.split("=")[1]

F1, F2, CAND, FY, GG, PP, YY = 0x0, 0x8000, 0x10000, 0x11000, 0x14000, 0x18000, 0x28000
QKV, XP, OM, OX = 0x100000, 0x700000, 0x880000, 0xA80000
PROFB = 0xB00000
WS_SIZE = 0xC00000
BIGOFF = 0x40000000
SPIN = 200000

SLOT = 34816
KP0, KP1, KX = 0, 8192, 16384
VB = 24576
VP0, VP1, VX = VB, VB + 8192 + 64, VB + 16384 + 128
BULK = 49408
R0, R1, YR = 0, 21504, 43008
RP = 336
LDS_TOTAL = 163840

def f32bits(x): return struct.unpack("<I", struct.pack("<f", x))[0]
QSCALE = f32bits(18 ** -0.5 * math.log2(math.e))
NEGBIG = f32bits(-1e30)
LOG2E = f32bits(math.log2(math.e))

L = []
def e(s): L.append("  " + s)
def lab(s): L.append(s + ":")
def c(s): L.append("  ; " + s)
def v(a, n=1): return f"v{a}" if n == 1 else f"v[{a}:{a+n-1}]"
def s_(a, n=1): return f"s{a}" if n == 1 else f"s[{a}:{a+n-1}]"
_uid = [0]
def ul(p):
    _uid[0] += 1
    return f"L_{p}_{_uid[0]}"

sWAVE, sXCD, sSLOT, sRB, sCB = 3, 4, 5, 6, 7
SX, SW, SWS, SOUT, SA, SB = 8, 12, 40, 44, 48, 52
pX, pWQKV, pWO, pWR, pWG, pWU, pWD, pGW, pOUT, pDBG, pWS = 16, 18, 20, 24, 26, 28, 30, 32, 34, 36, 38
sTAG = 56
sT = 57
sH, sJ, sI, sTB, sCS, sISS = 76, 77, 78, 79, 80, 81
sDMIN, sIDX, sKEY, sFLAG = 82, 83, 84, 85
sSTAMP = 86

def stamp(k):
    if PROF:
        if DBGT:
            m = {1: 3, 2: 4, 5: 5, 6: 6, 7: 7, 10: 8, 12: 9, 13: 10, 15: 11, 16: 12}
            if k not in m: return
            k = m[k]
        e(f"s_memrealtime s[100:101]" if DBGT else f"s_memtime s[100:101]")
        e("s_waitcnt lgkmcnt(0)")
        e(f"v_writelane_b32 v255, s100, {k}")

def srd(base, ptr, size):
    e(f"s_mov_b32 s{base}, s{ptr}")
    e(f"s_mov_b32 s{base+1}, s{ptr+1}")
    e(f"s_mov_b32 s{base+2}, {size}")
    e(f"s_mov_b32 s{base+3}, 0x20000")

def divmod_const(dq, dr, src, d, maxv, tmp_s):
    for sh in range(16, 25):
        m = -(-(1 << sh) // d)
        if m < (1 << 24) and maxv * m < (1 << 32) and all((x * m) >> sh == x // d for x in range(maxv + 1)):
            break
    else:
        raise Exception("no magic")
    e(f"v_mul_u32_u24 v{dq}, {m}, v{src}")
    e(f"v_lshrrev_b32 v{dq}, {sh}, v{dq}")
    e(f"v_mul_u32_u24 v{dr}, {d}, v{dq}")
    e(f"v_sub_u32 v{dr}, v{src}, v{dr}")

def tag_issue(vt, vz):
    e(f"v_mov_b32 v{vz}, 0")
    e(f"global_load_dword v{vt}, v{vz}, {s_(pDBG,2)} sc1")

def tag_check(vt, vz):
    lp, done = ul("tag"), ul("tagd")
    e(f"s_mov_b32 s{sT}, 0")
    lab(lp)
    e(f"v_readfirstlane_b32 s{sTAG}, v{vt}")
    e(f"s_cmp_lg_u32 s{sTAG}, 0")
    e(f"s_cbranch_scc1 {done}")
    e(f"s_add_u32 s{sT}, s{sT}, 1")
    e(f"s_cmp_gt_u32 s{sT}, {SPIN}")
    e(f"s_cbranch_scc1 L_end")
    e(f"global_load_dword v{vt}, v{vz}, {s_(pDBG,2)} sc1")
    e("s_waitcnt vmcnt(0)")
    e(f"s_branch {lp}")
    lab(done)


def bound(cnt):
    e(f"s_add_u32 s{cnt}, s{cnt}, 1")
    e(f"s_cmp_gt_u32 s{cnt}, {SPIN}")
    e("s_cbranch_scc1 L_end")

def bf16r(r, t=None):
    e(f"v_cvt_pk_bf16_f32 v{r}, v{r}, v{r}")
    e(f"v_and_b32 v{r}, 0xffff0000, v{r}")

def sigmoid(d, x):
    e(f"v_mul_f32 v{d}, {(LOG2E ^ 0x80000000):#x}, v{x}")
    e(f"v_exp_f32 v{d}, v{d}")
    e("s_nop 0")
    e(f"v_add_f32 v{d}, 1.0, v{d}")
    e(f"v_rcp_f32 v{d}, v{d}")
    e("s_nop 0")

def row_max_u32(r):
    for k in (8, 4, 2, 1):
        e("s_nop 1")
        e(f"v_max_u32_dpp v{r}, v{r}, v{r} row_ror:{k} row_mask:0xf bank_mask:0xf")

def cross_rows(op, r, t):
    for sw in ("v_permlane16_swap_b32", "v_permlane32_swap_b32"):
        e(f"v_mov_b32 v{t}, v{r}")
        e("s_nop 1")
        e(f"{sw} v{r}, v{t}")
        e(f"{op} v{r}, v{r}, v{t}")

def cand_issue(R, va):
    e(f"v_lshlrev_b32 v{va}, 4, v1")
    e(f"s_mov_b32 s{sT}, {CAND}")
    e(f"buffer_load_dwordx4 {v(R,4)}, v{va}, {s_(SWS,4)}, s{sT} offen sc1")

def cand_check(R, va, vtag):
    lp, done = ul("cand"), ul("candd")
    e(f"s_mov_b32 s{sT+1}, 0")
    lab(lp)
    e(f"v_xor_b32 v{R+1}, v{vtag}, v{R+1}")
    e(f"v_xor_b32 v{R+3}, v{vtag}, v{R+3}")
    e(f"v_or_b32 v{R+1}, v{R+1}, v{R+3}")
    e(f"v_cmp_eq_u32 vcc, 0, v{R+1}")
    e("s_cmp_eq_u64 vcc, -1")
    e(f"s_cbranch_scc1 {done}")
    bound(sT+1)
    e(f"s_mov_b32 s{sT}, {CAND}")
    e(f"buffer_load_dwordx4 {v(R,4)}, v{va}, {s_(SWS,4)}, s{sT} offen sc1")
    e("s_waitcnt vmcnt(0)")
    e(f"s_branch {lp}")
    lab(done)
    e(f"v_max_u32 v{R}, v{R}, v{R+2}")
    row_max_u32(R)
    cross_rows("v_max_u32", R, R+1)
    e("s_nop 0")
    e(f"v_readfirstlane_b32 s{sKEY}, v{R}")
    e(f"s_and_b32 s{sIDX}, s{sKEY}, 0xffff")
    e(f"s_sub_u32 s{sIDX}, 2047, s{sIDX}")

lab(f"{NAME}_kernel")
e(f"s_load_dwordx16 s[16:31], s[0:1], 0")
e(f"s_load_dwordx8 s[32:39], s[0:1], 64")
if PROF:
    e(f"s_memrealtime s[98:99]")
    e(f"s_memtime s[96:97]")
    e("v_mov_b32 v255, 0")
e("s_cmp_ge_u32 s2, 256")
e("s_cbranch_scc1 L_end")
e("v_lshrrev_b32 v2, 6, v0")
e("v_and_b32 v1, 63, v0")
e(f"v_readfirstlane_b32 s{sWAVE}, v2")
e(f"s_and_b32 s{sXCD}, s2, 7")
e(f"s_lshr_b32 s{sSLOT}, s2, 3")
e(f"s_and_b32 s{sRB}, s{sXCD}, 3")
e(f"s_lshl_b32 s{sRB}, s{sRB}, 2")
e(f"s_and_b32 s{sT}, s{sSLOT}, 3")
e(f"s_add_u32 s{sRB}, s{sRB}, s{sT}")
e(f"s_lshr_b32 s{sCB}, s{sXCD}, 2")
e(f"s_mul_i32 s{sCB}, s{sCB}, 6")
e(f"s_lshr_b32 s{sT+1}, s{sSLOT}, 2")
e(f"s_add_u32 s{sCB}, s{sCB}, s{sT+1}")
e("s_waitcnt lgkmcnt(0)")
if PROF:
    if DBGT:
        e("s_not_b32 s96, s98")
        e("v_writelane_b32 v255, s96, 1")
        e("v_writelane_b32 v255, s98, 2")
    else:
        e("v_writelane_b32 v255, s96, 0")
        e("v_writelane_b32 v255, s98, 31")
srd(SX, pX, 2048 * 1152)
srd(SW, pWQKV, 576 * 3456)
srd(SWS, pWS, WS_SIZE)
srd(SOUT, pOUT, 2048 * 1152)
e(f"s_cmp_ge_u32 s{sSLOT}, 24")
e("s_cbranch_scc1 L_sphase")
e(f"s_mov_b32 s{sISS}, 0")
e(f"s_cmp_lt_u32 s{sWAVE}, 4")
e("s_cbranch_scc1 L_compute")

c("---- P1 loader ----")
sLW, sSIG, sLS, sXB, sWB, sCNT = sT+2, sT+3, sT+4, sT+5, sT+6, sT+7
e(f"s_sub_u32 s{sLW}, s{sWAVE}, 4")
e("v_lshrrev_b32 v2, 3, v1")
e("v_mul_u32_u24 v2, 1152, v2")
e("v_lshrrev_b32 v3, 4, v1")
e(f"s_and_b32 s{sT}, s{sLW}, 1")
e(f"s_lshl_b32 s{sT}, s{sT}, 2")
e(f"v_add_u32 v3, s{sT}, v3")
e("v_and_b32 v4, 7, v1")
e("v_xor_b32 v3, v3, v4" if not XNOSWZ else "v_mov_b32 v3, v4")
e("v_lshl_add_u32 v2, v3, 4, v2")
e(f"s_and_b32 s{sT}, s{sSLOT}, 3")
e(f"s_lshl_b32 s{sT}, s{sT}, 1")
e(f"s_mul_i32 s{sSIG}, s{sT+1}, 3")
e(f"s_add_u32 s{sSIG}, s{sSIG}, s{sT}")
e(f"s_cmp_ge_u32 s{sT+1}, 3")
e(f"s_addc_u32 s{sSIG}, s{sSIG}, 0")
for _ in range(2):
    e(f"s_cmp_ge_u32 s{sSIG}, 9")
    e(f"s_cselect_b32 s{sT}, 9, 0")
    e(f"s_sub_u32 s{sSIG}, s{sSIG}, s{sT}")
e(f"s_mul_i32 s{sXB}, s{sRB}, {128*1152}")
e(f"s_mul_i32 s{sT}, s{sLW}, 9216")
e(f"s_add_u32 s{sXB}, s{sXB}, s{sT}")
e(f"s_mul_i32 s{sWB}, s{sCB}, {288 if not WAL else 256}")
e(f"s_lshl_b32 s{sLS}, s{sLW}, 10")
e(f"s_lshl_b32 s{sT}, s{sLW}, 6")
e(f"v_add_u32 v5, s{sT}, v1")
for n in range(5):
    if n: e(f"v_add_u32 v5, 256, v5")
    divmod_const(6, 7, 5, 18 if not WAL else 16, 64*20+63, sT)
    e(f"v_mul_u32_u24 v6, 3456, v6")
    e(f"v_lshl_add_u32 v{8+n}, v7, 4, v6")
e(f"s_mov_b32 s{sCNT}, 0")
stamp(1)
lab("L_ld_loop")
e(f"s_lshl_b32 s{sT}, s{sSIG}, 7")
e(f"s_add_u32 s{sT}, s{sT}, s{sXB}")
e(f"s_mul_i32 s{sT+1}, s{sSIG}, {64*3456}")
e(f"s_add_u32 s{sT+1}, s{sT+1}, s{sWB}")
e(f"s_mov_b32 m0, s{sLS}")
for n in range(4):
    if n:
        e(f"s_add_u32 s{sT}, s{sT}, 36864")
        e(f"s_add_u32 m0, m0, 4096")
        e("s_nop 0")
    else:
        e("s_nop 0")
    if not NOLOAD and not NOX: e(f"buffer_load_dwordx4 v2, {s_(SX,4)}, s{sT} offen lds")
for n in range(5):
    if n == 4:
        e(f"s_cmp_ge_u32 s{sLW}, 2")
        e("s_cbranch_scc1 L_ld_skip5")
    e(f"s_add_u32 m0, m0, 4096")
    e("s_nop 0")
    if not NOLOAD and not NOW: e(f"buffer_load_dwordx4 v{8+n}, {s_(SW,4)}, s{sT+1} offen lds")
lab("L_ld_skip5")
e(f"s_add_u32 s{sSIG}, s{sSIG}, 1")
e(f"s_cmp_eq_u32 s{sSIG}, 9")
e(f"s_cselect_b32 s{sSIG}, 0, s{sSIG}")
e(f"s_add_u32 s{sLS}, s{sLS}, {SLOT}")
e(f"s_cmp_ge_u32 s{sLS}, {4*SLOT}")
e(f"s_cselect_b32 s{sT}, {4*SLOT}, 0")
e(f"s_sub_u32 s{sLS}, s{sLS}, s{sT}")
e(f"s_add_u32 s{sCNT}, s{sCNT}, 1")
e(f"s_cmp_lt_u32 s{sCNT}, 4")
e("s_cbranch_scc1 L_ld_loop")
e(f"s_cmp_lg_u32 s{sCNT}, 4")
e("s_cbranch_scc1 L_ld_nb0")
stamp(2)
e("s_waitcnt vmcnt(24)")
e("s_barrier")
stamp(3)
lab("L_ld_nb0")
e(f"s_cmp_eq_u32 s{sCNT}, 9")
e("s_cbranch_scc1 L_ld_tail")
e("s_waitcnt vmcnt(16)")
e("s_barrier")
e("s_branch L_ld_loop")
lab("L_ld_tail")
for n in (16, 8, 0):
    e(f"s_waitcnt vmcnt({n})")
    e("s_barrier")
stamp(4)
tag_issue(17, 18)
e(f"s_mov_b32 s{sFLAG}, {BIGOFF}")
e("s_barrier")
e("s_branch L_p2")

ACC = 64
def acc(tt, ct): return ACC + (ct * 4 + tt) * 4
def xf(p, tt): return 144 + 36 * p + 4 * tt
def wf(p, ct): return 160 + 36 * p + 4 * ct
XA = 2
WA = 6

def reads(p, ks, NT):
    wr = []
    for ct in range(NT):
        for wh in range(2):
            if ct < 4:
                off = ks * 9216 + wh * 4608 + 72 * (ct >> 1) + 40 * (ct & 1)
                wr.append(f"ds_read_b64_tr_b16 {v(wf(p,ct)+2*wh,2)}, v{WA+2*ks} offset:{off}")
            else:
                off = ks * 9216 + wh * 4608
                wr.append(f"ds_read_b64_tr_b16 {v(wf(p,ct)+2*wh,2)}, v{WA+2*ks+1} offset:{off}")
    xr = []
    for tt in range(4):
        for wh in range(2):
            xr.append(f"ds_read_b64 {v(xf(p,tt)+2*wh,2)}, v{XA+2*ks+wh} offset:{tt*2048}")
    return wr[:2] + xr + wr[2:]

def kstep(p, ks_next, NT, fill, late, late_at):
    rd = reads(1 - p, ks_next, NT)
    if NOREAD: rd = []
    rd = rd + list(fill)
    n = 0
    for ct in range(NT):
        for tt in range(4):
            a = acc(tt, ct)
            if not NOMFMA: e(f"v_mfma_f32_16x16x32_bf16 {v(a,4)}, {v(wf(p,ct),4)}, {v(xf(p,tt),4)}, {v(a,4)}")
            n += 1
            if n == late_at:
                assert not rd, rd
                for x in late: e(x)
            for _ in range(2):
                if rd: e(rd.pop(0))
    assert not rd

lab("L_compute")
c("---- P1 compute ----")
e(f"s_or_b32 s{sT}, s2, s{sWAVE}")
e(f"s_cmp_lg_u32 s{sT}, 0")
e("s_cbranch_scc1 L_notag")
e(f"s_memrealtime {s_(sT+9,2)}")
e("v_mov_b32 v4, 0")
e("s_waitcnt lgkmcnt(0)")
e(f"s_or_b32 s{sT+9}, s{sT+9}, 1")
e(f"v_mov_b32 v3, s{sT+9}")
e("s_mov_b64 exec, 1")
e(f"global_store_dword v4, v3, {s_(pDBG,2)} sc1")
e("s_mov_b64 exec, -1")
lab("L_notag")
sMH, sNH, sDL, sIT, sSL = sT+2, sT+3, sT+4, sT+5, sT+6
e(f"s_and_b32 s{sMH}, s{sWAVE}, 1")
e(f"s_lshr_b32 s{sNH}, s{sWAVE}, 1")
e("v_and_b32 v18, 15, v1")
e("v_lshrrev_b32 v19, 4, v1")
e(f"s_lshl_b32 s{sT}, s{sMH}, 13")
e(f"v_lshl_add_u32 v10, v18, 7, s{sT}")
e("v_and_b32 v11, 1, v19")
e("v_lshl_add_u32 v10, v11, 3, v10")
e("v_lshrrev_b32 v11, 1, v19")
e("v_lshrrev_b32 v12, 1, v18")
e("v_xor_b32 v11, v11, v12")
for i in range(4):
    e(f"v_xor_b32 v12, {2*i}, v11")
    e(f"v_lshl_add_u32 v{XA+i}, v12, 4, v10")
e("v_lshrrev_b32 v10, 2, v1")
e("v_mul_u32_u24 v10, 288, v10")
e("v_and_b32 v11, 3, v1")
e(f"s_mul_i32 s{sT}, s{sNH}, 144")
e(f"s_add_u32 s{sT}, s{sT}, 16384")
e(f"v_lshl_add_u32 v{WA}, v11, 3, v10")
e(f"v_add_u32 v{WA}, s{sT}, v{WA}")
e("v_mul_u32_u24 v11, 72, v11")
e(f"v_add_u32 v{WA+1}, v10, v11")
e(f"v_add_u32 v{WA+1}, {16384+32}, v{WA+1}")
e(f"v_mov_b32 v{WA+2}, v{WA}")
e(f"v_mov_b32 v{WA+3}, v{WA+1}")
for r in range(ACC, ACC + 80): e(f"v_mov_b32 v{r}, 0")
VE, VXO = 13, 14
e(f"v_lshrrev_b32 v10, 1, v19")
e(f"v_lshlrev_b32 v{VE}, 15, v10")
e("v_and_b32 v10, 1, v19")
e(f"v_lshl_add_u32 v{VE}, v10, 8, v{VE}")
e(f"v_lshl_add_u32 v{VE}, v18, 4, v{VE}")
e(f"v_lshlrev_b32 v{VXO}, 15, v19")
e(f"v_lshl_add_u32 v{VXO}, v18, 4, v{VXO}")
e(f"s_mov_b32 s{sIT}, 0")
e(f"s_mov_b32 s{sSL}, 0")
e(f"s_cmp_eq_u32 s{sNH}, 0")
e("s_cbranch_scc0 L_cmp4")
for NT in (5, 4):
    if NT == 4: lab("L_cmp4")
    e("s_barrier")
    stamp(1)
    for r in reads(0, 0, NT): e(r)
    e("s_waitcnt lgkmcnt(0)")
    lab(f"L_cloop{NT}")
    fillA = [f"s_add_u32 s{sSL}, s{sSL}, 1", f"s_cmp_eq_u32 s{sSL}, 4", f"s_cselect_b32 s{sSL}, 0, s{sSL}",
             f"s_cselect_b32 s{sDL}, {(-4*SLOT) & 0xffffffff}, 0", f"s_add_u32 s{sDL}, s{sDL}, {SLOT}"] + \
            [f"v_add_u32 v{r}, s{sDL}, v{r}" for r in (XA, XA+1, WA, WA+1)]
    kstep(0, 1, NT, fillA, ["s_waitcnt lgkmcnt(0)", "s_barrier"], 4*NT - 1)
    fillB = [f"v_add_u32 v{r}, s{sDL}, v{r}" for r in (XA+2, XA+3, WA+2, WA+3)] + \
            [f"s_add_u32 s{sIT}, s{sIT}, 1", f"s_cmp_lt_u32 s{sIT}, 9"]
    kstep(1, 0, NT, fillB, ["s_waitcnt lgkmcnt(0)"], 4*NT - 1)
    e(f"s_cbranch_scc1 L_cloop{NT}")
    if NT == 5: e("s_branch L_cepi")
lab("L_cepi")
stamp(2)
tag_issue(17, 18)
sSO, sSC = sT+7, sT+9
assert sSC % 2 == 0
e(f"s_lshl_b32 s{sT}, s{sRB}, 11")
e(f"s_lshl_b32 s{sT+1}, s{sMH}, 10")
e(f"s_add_u32 s{sT}, s{sT}, s{sT+1}")
e(f"s_lshl_b32 s{sSO}, s{sCB}, 3")
e(f"s_lshl_b32 s{sT+1}, s{sNH}, 2")
e(f"s_add_u32 s{sSO}, s{sSO}, s{sT+1}")
e(f"s_lshl_b32 s{sSO}, s{sSO}, 16")
e(f"s_add_u32 s{sSO}, s{sSO}, s{sT}")
e(f"s_add_u32 s{sSO}, s{sSO}, {QKV}")
e(f"s_lshl_b32 s{sT+8}, s{sCB}, 17")
e(f"s_add_u32 s{sT+8}, s{sT+8}, s{sT}")
e(f"s_add_u32 s{sT+8}, s{sT+8}, {XP}")
e(f"s_cmp_lt_u32 s{sCB}, 4")
e("s_cbranch_scc0 L_noscale")
e(f"s_mov_b32 s{sSC}, {QSCALE}")
e(f"s_mov_b32 s{sSC+1}, {QSCALE}")
for r in range(ACC, ACC + 80, 2):
    e(f"v_pk_mul_f32 {v(r,2)}, {v(r,2)}, {s_(sSC,2)}")
lab("L_noscale")
q = 0
for ct in range(4):
    for pr in range(2):
        R = 20 + 4 * (q % 4); q += 1
        a, b = acc(2*pr, ct), acc(2*pr+1, ct)
        e(f"v_cvt_pk_bf16_f32 v{R}, v{a}, v{a+1}")
        e(f"v_cvt_pk_bf16_f32 v{R+2}, v{b}, v{b+1}")
        e(f"v_cvt_pk_bf16_f32 v{R+1}, v{a+2}, v{a+3}")
        e(f"v_cvt_pk_bf16_f32 v{R+3}, v{b+2}, v{b+3}")
        e("s_nop 0")
        e(f"v_permlane16_swap_b32 v{R}, v{R+2}")
        e(f"v_permlane16_swap_b32 v{R+1}, v{R+3}")
        e(f"buffer_store_dwordx4 {v(R,4)}, v{VE}, {s_(SWS,4)}, s{sSO} offen offset:{512*pr} sc1")
    e(f"s_add_u32 s{sSO}, s{sSO}, 65536")
e(f"s_cmp_eq_u32 s{sNH}, 0")
e("s_cbranch_scc0 L_noextra")
for tt in range(4):
    R = 36 + 4 * tt
    a = acc(tt, 4)
    e(f"v_cvt_pk_bf16_f32 v{R}, v{a}, v{a+1}")
    e(f"v_mov_b32 v{R+1}, 0x3f803f80")
    e(f"v_cvt_pk_bf16_f32 v{R+2}, v{a+2}, v{a+3}")
    e(f"v_mov_b32 v{R+3}, 0x3f803f80")
    e(f"buffer_store_dwordx4 {v(R,4)}, v{VXO}, {s_(SWS,4)}, s{sT+8} offen offset:{256*tt} sc1")
lab("L_noextra")
stamp(3)
e(f"s_mul_i32 s{sFLAG}, s{sRB}, 12")
e(f"s_add_u32 s{sFLAG}, s{sFLAG}, s{sCB}")
e(f"s_lshl_b32 s{sFLAG}, s{sFLAG}, 7")
e(f"s_lshl_b32 s{sT+1}, s{sWAVE}, 2")
e(f"s_add_u32 s{sFLAG}, s{sFLAG}, s{sT+1}")
e("s_branch L_p2")

lab("L_sphase")
e(f"s_mov_b32 s{sISS}, 1")

XR, WV, XS, GATE, UPA, UPB, HS = 0, 36864, 40960, 44032, 117760, 0, 147712
sS = sRB
e(f"s_lshl_b32 s{sS}, s{sXCD}, 3")
e(f"s_add_u32 s{sS}, s{sS}, s{sSLOT}")
e(f"s_sub_u32 s{sS}, s{sS}, 24")
srd(SA, pWG, 576 * 9216)
srd(SB, pWU, 576 * 9216)
e(f"s_cmp_lt_u32 s{sWAVE}, 4")
e("s_cbranch_scc1 L_s_ctl")
c("---- S streamers (waves 4..7) ----")
sLW2 = sT+2
e(f"s_sub_u32 s{sLW2}, s{sWAVE}, 4")
e(f"s_lshl_b32 s{sT}, s{sLW2}, 6")
e(f"v_add_u32 v2, s{sT}, v1")
e(f"s_mul_i32 s{sT+3}, s{sS}, {32*1152}")
e(f"s_lshl_b32 s{sT+4}, s{sLW2}, 10")
e(f"s_mov_b32 m0, s{sT+4}")
for n in range(9):
    if n:
        e("v_add_u32 v2, 256, v2")
        e("s_add_u32 m0, m0, 4096")
    divmod_const(3, 4, 2, 72, 2303, sT)
    e("v_bfe_u32 v5, v3, 1, 3")
    e("v_xor_b32 v4, v4, v5")
    e("v_mul_u32_u24 v3, 1152, v3")
    e("v_lshl_add_u32 v3, v4, 4, v3")
    e(f"buffer_load_dwordx4 v3, {s_(SX,4)}, s{sT+3} offen lds")
e(f"s_cmp_lt_u32 s{sLW2}, 2")
e(f"s_cselect_b32 s{SW}, s{pWR}, s{pGW}")
e(f"s_cselect_b32 s{SW+1}, s{pWR+1}, s{pGW+1}")
e(f"s_mov_b32 s{SW+2}, 1152")
e(f"s_and_b32 s{sT}, s{sLW2}, 1")
e(f"s_lshl_b32 s{sT}, s{sT}, 10")
e(f"s_add_u32 m0, s{sT+4}, {WV}")
e("v_lshlrev_b32 v3, 4, v1")
e(f"buffer_load_dwordx4 v3, {s_(SW,4)}, s{sT} offen lds")
e("v_lshrrev_b32 v2, 3, v1")
e("v_and_b32 v3, 6, v2")
e("v_and_b32 v4, 7, v1")
e("v_xor_b32 v3, v3, v4")
e("v_mul_u32_u24 v2, 9216, v2")
e("v_lshl_add_u32 v2, v3, 4, v2")
e(f"s_mul_i32 s{sT+5}, s{sLW2}, {8*9216}")
e(f"s_lshl_b32 s{sT}, s{sS}, 7")
e(f"s_add_u32 s{sT+5}, s{sT+5}, s{sT}")
def stream(srdr, n, lds, row0):
    lp = ul("st")
    e(f"s_add_u32 m0, s{sT+4}, {lds}")
    e(f"s_add_u32 s{sT}, s{sT+5}, {row0*9216}")
    e(f"s_mov_b32 s{sT+1}, 0")
    lab(lp)
    e(f"buffer_load_dwordx4 v2, {s_(srdr,4)}, s{sT} offen nt lds")
    e("s_add_u32 m0, m0, 4096")
    e(f"s_add_u32 s{sT}, s{sT}, {32*9216}")
    e(f"s_add_u32 s{sT+1}, s{sT+1}, 1")
    e(f"s_cmp_lt_u32 s{sT+1}, {n}")
    e(f"s_cbranch_scc1 {lp}")
stream(SA, 18, GATE, 0)
stream(SB, 11, UPA, 0)
e("s_waitcnt vmcnt(29)")
e("s_barrier")
e("s_barrier")
stream(SB, 7, UPB, 352)
e("s_waitcnt vmcnt(18)")
e("s_barrier")
e("s_barrier")
e(f"s_cmp_lt_u32 s{sLW2}, 2")
e(f"s_cselect_b32 s{SW}, s{pWG}, s{pWU}")
e(f"s_cselect_b32 s{SW+1}, s{pWG+1}, s{pWU+1}")
e(f"s_mov_b32 s{SW+2}, {576*9216}")
e(f"s_and_b32 s{sT}, s{sS}, 7")
e(f"s_mul_i32 s{sT}, s{sT}, {72*9216}")
e(f"s_lshr_b32 s{sT+1}, s{sS}, 3")
e(f"s_lshl_b32 s{sT+1}, s{sT+1}, 7")
e(f"s_add_u32 s{sT}, s{sT}, s{sT+1}")
e(f"s_add_u32 s{sT}, s{sT}, {64*128}")
e(f"s_and_b32 s{sT+1}, s{sLW2}, 1")
e(f"s_mul_i32 s{sT+3}, s{sT+1}, {8*9216}")
e(f"s_add_u32 s{sT}, s{sT}, s{sT+3}")
e(f"s_lshl_b32 s{sT+3}, s{sT+1}, 10")
e(f"s_lshr_b32 s{sT+6}, s{sLW2}, 1")
e(f"s_mul_i32 s{sT+6}, s{sT+6}, 10240")
e(f"s_add_u32 s{sT+3}, s{sT+3}, s{sT+6}")
e(f"s_add_u32 m0, s{sT+3}, {GATE}")
for n in range(5):
    if n:
        e("s_add_u32 m0, m0, 2048")
        e(f"s_add_u32 s{sT}, s{sT}, {16*9216}")
    if n == 4:
        e(f"s_cmp_eq_u32 s{sT+1}, 1")
        e(f"s_cselect_b32 s{sT}, {BIGOFF}, s{sT}")
    if n == 0: e("s_nop 0")
    e(f"buffer_load_dwordx4 v2, {s_(SW,4)}, s{sT} offen nt lds")
e("s_waitcnt vmcnt(5)")
e("s_barrier")
e("s_waitcnt vmcnt(0)")
e("s_barrier")
e("s_branch L_s_done")

lab("L_s_ctl")
c("---- S control waves (0..3) ----")
tag_issue(17, 18)
e(f"s_cmp_lt_u32 s{sWAVE}, 2")
e("s_cbranch_scc1 L_s_nopf")
e(f"s_getpc_b64 {s_(sT+1,2)}")
lab("L_pc")
e(f"s_sub_u32 s{sT+1}, s{sT+1}, L_pc-{NAME}_kernel")
e(f"s_subb_u32 s{sT+2}, s{sT+2}, 0")
e(f"s_sub_u32 s{sT}, s{sWAVE}, 2")
e(f"s_lshl_b32 s{sT}, s{sT}, 6")
e(f"v_add_u32 v2, s{sT}, v1")
e("v_lshlrev_b32 v2, 7, v2")
for n in range(2):
    e(f"v_min_u32 v3, L_end-{NAME}_kernel, v2")
    e(f"global_load_dword v4, v3, {s_(sT+1,2)}")
    e("v_add_u32 v2, 16384, v2")
lab("L_s_nopf")
e("v_and_b32 v10, 15, v1")
e("v_lshrrev_b32 v11, 4, v1")
e("v_and_b32 v2, 1, v10")
e("v_lshlrev_b32 v2, 11, v2")
e("v_lshl_add_u32 v2, v11, 4, v2")
e(f"v_add_u32 v2, {WV}, v2")
e(f"s_lshl_b32 s{sT}, s{sWAVE}, 4")
e(f"v_add_u32 v3, s{sT}, v10")
e("v_mul_u32_u24 v3, 1152, v3")
e("v_lshrrev_b32 v4, 1, v10")
e("v_xor_b32 v4, v4, v11")
e("v_xor_b32 v5, 4, v4")
e("v_lshl_add_u32 v4, v4, 4, v3")
e("v_lshl_add_u32 v5, v5, 4, v3")
e("v_lshrrev_b32 v6, 2, v1")
e("v_and_b32 v7, 6, v6")
e("v_bfe_u32 v8, v1, 1, 1")
e(f"s_lshl_b32 s{sT}, s{sWAVE}, 1")
e(f"v_add_u32 v8, s{sT}, v8")
e("v_xor_b32 v7, v7, v8")
e("v_and_b32 v8, 1, v1")
e("v_lshlrev_b32 v8, 3, v8")
e("v_lshl_add_u32 v7, v7, 4, v8")
e("v_and_b32 v9, 7, v6")
e("v_lshl_add_u32 v9, v9, 7, v7")
e("v_lshl_add_u32 v6, v6, 7, v7")
e("v_lshlrev_b32 v7, 3, v11")
e(f"v_add_u32 v7, {XS}, v7")
e("v_subrev_u32 v8, 2, v11")
e("v_ashrrev_i32 v8, 31, v8")
e("s_waitcnt vmcnt(0)")
tag_check(17, 18)
e(f"v_mov_b32 v17, s{sTAG}")
e("s_barrier")
stamp(1)
e(f"s_cmp_lt_u32 s{sWAVE}, 2")
e("s_cbranch_scc0 L_s_nort")
for ks in range(18):
    e(f"ds_read_b128 {v(64+8*ks,4)}, v2 offset:{ks*64}")
    e(f"ds_read_b128 {v(68+8*ks,4)}, v{4+(ks&1)} offset:{(ks>>1)*128}")
    if ks % 6 == 5:
        e("s_waitcnt lgkmcnt(0)")
        for k2 in range(ks-5, ks+1):
            e(f"v_mfma_f32_16x16x32_bf16 v[20:23], {v(64+8*k2,4)}, {v(68+8*k2,4)}, {'0' if k2 == 0 else 'v[20:23]'}")
e(f"s_lshl_b32 s{sT}, s{sS}, 5")
e(f"s_lshl_b32 s{sT+1}, s{sWAVE}, 4")
e(f"s_add_u32 s{sT}, s{sT}, s{sT+1}")
e(f"v_add_u32 v24, s{sT}, v10")
e("s_nop 4")
e("v_cvt_pk_bf16_f32 v20, v20, v20")
e("v_lshrrev_b32 v20, 16, v20")
e("v_bfe_i32 v22, v20, 15, 1")
e("v_and_b32 v22, 0x7fff, v22")
e("v_xor_b32 v20, 0x8000, v20")
e("v_xor_b32 v20, v20, v22")
e("v_sub_u32 v22, 2047, v24")
e("v_lshl_add_u32 v20, v20, 16, v22")
bf16r(21)
sigmoid(26, 21)
bf16r(26)
e("v_mov_b32 v27, v17")
e("v_lshlrev_b32 v24, 3, v24")
row_max_u32(20)
e("v_mov_b32 v21, v17")
e(f"s_lshr_b32 s{sT}, s{sT}, 1")
e(f"s_add_u32 s{sT}, s{sT}, {CAND}")
e(f"s_mov_b32 s{sT+1}, {GG}")
e("s_mov_b64 exec, 1")
e(f"buffer_store_dwordx2 v[20:21], v18, {s_(SWS,4)}, s{sT} offen sc1")
e("s_mov_b64 exec, 0xffff")
e(f"buffer_store_dwordx2 v[26:27], v24, {s_(SWS,4)}, s{sT+1} offen sc1")
e("s_mov_b64 exec, -1")
lab("L_s_nort")
e("s_barrier")
e(f"s_cmp_eq_u32 s{sWAVE}, 0")
e("s_cbranch_scc0 L_s_nocand")
cand_issue(20, 24)
e("s_waitcnt vmcnt(0)")
cand_check(20, 24, 17)
e(f"s_mul_i32 s{sT}, s{sIDX}, 1152")
e(f"s_mov_b32 m0, {XS}")
e("s_nop 0")
e(f"buffer_load_dwordx4 v24, {s_(SX,4)}, s{sT} offen lds")
e(f"buffer_load_dwordx4 v24, {s_(SX,4)}, s{sT} offen offset:1024 lds")
e("s_waitcnt vmcnt(0)")
lab("L_s_nocand")
stamp(2)
e("s_barrier")
stamp(3)
XF = 64
for ks in range(18):
    e(f"ds_read_b64 {v(XF+4*ks,2)}, v7 offset:{ks*64}")
    e(f"ds_read_b64 {v(XF+4*ks+2,2)}, v7 offset:{ks*64+32}")
    if ks % 6 == 5: e("s_waitcnt lgkmcnt(0)")
WF = 140
def gemv(dst, steps):
    for g0 in range(0, len(steps), 6):
        grp = steps[g0:g0+6]
        for i, (ar, off) in enumerate(grp):
            e(f"ds_read_b64_tr_b16 {v(WF+4*i,2)}, v{ar} offset:{off}")
            e(f"ds_read_b64_tr_b16 {v(WF+4*i+2,2)}, v{ar} offset:{off+2048}")
        e("s_waitcnt lgkmcnt(0)")
        for i in range(len(grp)):
            ks = g0 + i
            e(f"v_mfma_f32_16x16x32_bf16 {v(dst,4)}, {v(WF+4*i,4)}, {v(XF+4*ks,4)}, {'0' if ks == 0 else v(dst,4)}")
e(f"v_add_u32 v12, {GATE}, v6")
e(f"v_add_u32 v13, {GATE+36864}, v6")
gemv(20, [(12, ks*4096) if ks < 9 else (13, (ks-9)*4096) for ks in range(18)])
e("s_barrier")
e(f"v_add_u32 v12, {UPA}, v6")
e("s_barrier")
gemv(24, [(12, ks*4096) if ks < 11 else (6, UPB + (ks-11)*4096) for ks in range(18)])
e(f"s_and_b32 s{sT}, s{sS}, 7")
e(f"s_mul_i32 s{sT}, s{sT}, 144")
e(f"v_add_u32 v7, s{sT}, v7")
for ks in range(2):
    e(f"ds_read_b64 {v(XF+4*ks,2)}, v7 offset:{ks*64}")
    e(f"ds_read_b64 {v(XF+4*ks+2,2)}, v7 offset:{ks*64+32}")
e(f"ds_read_b64 {v(XF+8,2)}, v7 offset:128")
e(f"v_mov_b32 v{XF+10}, 0")
e(f"v_mov_b32 v{XF+11}, 0")
for r in range(4):
    bf16r(20+r)
    bf16r(24+r)
    sigmoid(28, 20+r)
    e(f"v_mul_f32 v{20+r}, v{20+r}, v28")
    bf16r(20+r)
    e(f"v_mul_f32 v{20+r}, v{20+r}, v{24+r}")
e("v_cvt_pk_bf16_f32 v20, v20, v21")
e("v_cvt_pk_bf16_f32 v21, v22, v23")
e(f"s_lshl_b32 s{sT}, s{sWAVE}, 5")
e(f"s_add_u32 s{sT}, s{sT}, {HS}")
e(f"v_lshl_add_u32 v22, v11, 3, s{sT}")
e("s_waitcnt lgkmcnt(0)")
e(f"v_and_b32 v{XF+8}, v8, v{XF+8}")
e(f"v_and_b32 v{XF+9}, v8, v{XF+9}")
e("s_barrier")
e("ds_write_b64 v22, v[20:21]")
e(f"v_add_u32 v12, {GATE}, v6")
e(f"v_add_u32 v13, {GATE+8192}, v9")
for m in range(2):
    o = m * 10240
    e(f"ds_read_b64_tr_b16 {v(WF+12*m,2)}, v12 offset:{o}")
    e(f"ds_read_b64_tr_b16 {v(WF+12*m+2,2)}, v12 offset:{o+2048}")
    e(f"ds_read_b64_tr_b16 {v(WF+12*m+4,2)}, v12 offset:{o+4096}")
    e(f"ds_read_b64_tr_b16 {v(WF+12*m+6,2)}, v12 offset:{o+6144}")
    e(f"ds_read_b64_tr_b16 {v(WF+12*m+8,2)}, v13 offset:{o}")
    e(f"ds_read_b64_tr_b16 {v(WF+12*m+10,2)}, v13 offset:{o}")
e("s_waitcnt lgkmcnt(0)")
for ks in range(3):
    for m in range(2):
        d = 24 + 4*m
        e(f"v_mfma_f32_16x16x32_bf16 {v(d,4)}, {v(WF+12*m+4*ks,4)}, {v(XF+4*ks,4)}, {'0' if ks == 0 else v(d,4)}")
e(f"s_lshl_b32 s{sT}, s{sS}, 10")
e(f"s_lshl_b32 s{sT+1}, s{sWAVE}, 7")
e(f"s_add_u32 s{sT}, s{sT}, s{sT+1}")
e(f"s_add_u32 s{sT}, s{sT}, {PP}")
e("v_lshlrev_b32 v22, 5, v11")
e("v_cmp_eq_u32 vcc, 0, v10")
e("s_nop 2")
for m in range(2):
    for hf in range(2):
        R = 32 + 4*(2*m+hf)
        e(f"v_mov_b32 v{R}, v{24+4*m+2*hf}")
        e(f"v_mov_b32 v{R+1}, v17")
        e(f"v_mov_b32 v{R+2}, v{24+4*m+2*hf+1}")
        e(f"v_mov_b32 v{R+3}, v17")
e("s_mov_b64 exec, vcc")
for m in range(2):
    for hf in range(2):
        R = 32 + 4*(2*m+hf)
        e(f"buffer_store_dwordx4 {v(R,4)}, v22, {s_(SWS,4)}, s{sT} offen offset:{512*m+16*hf} sc1")
e("s_mov_b64 exec, -1")
lab("L_s_done")
e("s_waitcnt lgkmcnt(0)")
e("s_barrier")
stamp(4)
srd(SW, pWD, 4608 * 1152)
e(f"s_mov_b32 s{sT+13}, 0")
e(f"s_lshl_b32 s{sT}, s{sWAVE}, 6")
e(f"v_add_u32 v10, s{sT}, v1")
e(f"s_lshl_b32 s{sT+1}, s{sS}, 6")
e(f"s_mul_i32 s{sT+2}, s{sS}, 56")
e(f"s_sub_u32 s{sT+2}, 4032, s{sT+2}")
for n in range(12):
    if n: e("v_add_u32 v10, 512, v10")
    divmod_const(11, 12, 10, 74, 6143, sT)
    e("v_subrev_u32 v13, 64, v11")
    e("v_ashrrev_i32 v13, 31, v13")
    e(f"v_bfi_b32 v13, v13, 0, s{sT+2}")
    e(f"v_add3_u32 v13, v13, v11, s{sT+1}")
    e("v_mul_u32_u24 v13, 1152, v13")
    e("v_lshl_add_u32 v13, v12, 4, v13")
    e("v_subrev_u32 v11, 72, v11")
    e("v_ashrrev_i32 v11, 31, v11")
    e(f"v_bfi_b32 v{144+n}, v11, v13, 2.0")

tag_issue(17, 18)
e(f"s_mov_b32 s{sFLAG}, {BIGOFF}")

vQ, vL16, vKA, vKX, vVA, vHM, vQX, vOX = 2, 3, 4, 5, 6, 7, 8, 9
Q1, Q2, K1, K2, VF, PB, MX = 20, 24, 28, 32, 36, 44, 52
SB0, SB1, OA, M8, M0, BV = 64, 80, 96, 112, 128, 144
sOQ, sOK, sOKX, sBS = sT+10, sT+11, sT+12, sT+13
def SBUF(d): return SB0 if d % 2 == 0 else SB1

def bulk_wo():
    srd(SW, pWO, 576 * 1152)
    e(f"s_mul_i32 s{sBS}, s{sCS}, 144")
    e(f"s_lshl_b32 s{sT}, s{sWAVE}, 6")
    e(f"v_add_u32 v10, s{sT}, v1")
    for n in range(12):
        if n: e("v_add_u32 v10, 512, v10")
        divmod_const(11, 12, 10, 10, 6143, sT)
        e("v_mul_u32_u24 v11, 1152, v11")
        e(f"v_lshl_add_u32 v{BV+n}, v12, 4, v11")

def bulk_issue(flags=""):
    e(f"s_lshl_b32 s{sT}, s{sWAVE}, 10")
    e(f"s_add_u32 m0, s{sT}, {BULK}")
    for n in range(12):
        if n: e("s_add_u32 m0, m0, 8192")
        e("s_nop 0")
        e(f"buffer_load_dwordx4 v{BV+n}, {s_(SW,4)}, s{sBS} offen {flags}lds")

lab("L_p2")
e(f"s_and_b32 s{sT}, s{sSLOT}, 3")
e(f"s_lshl_b32 s{sH}, s{sXCD}, 2")
e(f"s_add_u32 s{sH}, s{sH}, s{sT}")
e(f"s_lshr_b32 s{sCS}, s{sSLOT}, 2")
e(f"s_add_u32 s{sJ}, s{sCS}, 1")
e(f"s_and_b32 s{sJ}, s{sJ}, 7")
e(f"s_sub_u32 s{sI}, 11, s{sWAVE}")
e(f"s_cmp_lt_u32 s{sWAVE}, 4")
e(f"s_cselect_b32 s{sI}, s{sWAVE}, s{sI}")
e(f"s_lshl_b32 s{sTB}, s{sT}, 6")
e(f"s_and_b32 s{sT}, s{sXCD}, 3")
e(f"s_lshl_b32 s{sT}, s{sT}, 9")
e(f"s_add_u32 s{sTB}, s{sTB}, s{sT}")
e(f"s_lshr_b32 s{sT}, s{sXCD}, 2")
e(f"s_lshl_b32 s{sT}, s{sT}, 8")
e(f"s_add_u32 s{sTB}, s{sTB}, s{sT}")
e(f"s_sub_u32 s{sDMIN}, 8, s{sI}")
e(f"s_cmp_eq_u32 s{sJ}, 0")
e(f"s_cselect_b32 s{sDMIN}, s{sDMIN}, 0")
e(f"s_lshr_b32 s{sT}, s{sH}, 3")
e(f"s_lshr_b32 s{sT+1}, s{sI}, 2")
e(f"s_lshl_b32 s{sT+2}, s{sJ}, 1")
e(f"s_add_u32 s{sT+1}, s{sT+1}, s{sT+2}")
e(f"s_mul_i32 s{sT+1}, s{sT+1}, 12")
e(f"s_add_u32 s{sT+1}, s{sT+1}, s{sT}")
e(f"s_lshl_b32 s{sT+1}, s{sT+1}, 7")
e(f"s_lshr_b32 s{sT+3}, s{sWAVE}, 1")
e(f"s_add_u32 s{sT+3}, s{sT+3}, s{sT+2}")
e(f"s_sub_u32 s{sT+3}, s{sT+3}, 2")
e(f"s_mul_i32 s{sT+4}, s{sT+3}, 12")
e(f"s_add_u32 s{sT+4}, s{sT+4}, s{sT}")
e(f"s_add_u32 s{sT+4}, s{sT+4}, 4")
e(f"s_lshl_b32 s{sT+4}, s{sT+4}, 7")
e(f"s_add_u32 s{sT+5}, s{sT+4}, 512")
e(f"s_lshl_b32 s{sT+6}, s{sJ}, 12")
e(f"s_lshl_b32 s{sT+7}, s{sI}, 9")
e(f"s_add_u32 s{sOQ}, s{sT+6}, s{sT+7}")
e(f"s_lshl_b32 s{sT+7}, s{sWAVE}, 10")
e(f"s_add_u32 s{sT+6}, s{sT+6}, s{sT+7}")
e(f"s_sub_u32 s{sT+6}, s{sT+6}, 4096")
e(f"s_lshl_b32 s{sT+7}, s{sH}, 16")
e(f"s_add_u32 s{sOK}, s{sT+6}, s{sT+7}")
e(f"s_add_u32 s{sOK}, s{sOK}, {QKV + 32*65536}")
e(f"s_lshr_b32 s{sT+8}, s{sH}, 1")
e(f"s_lshl_b32 s{sT+8}, s{sT+8}, 15")
e(f"s_add_u32 s{sOKX}, s{sT+6}, s{sT+8}")
e(f"s_add_u32 s{sOKX}, s{sOKX}, {XP + 16*32768}")
e(f"s_cmp_lt_i32 s{sT+3}, 0")
e(f"s_cselect_b32 s{sOK}, {BIGOFF}, s{sOK}")
e(f"s_cselect_b32 s{sOKX}, {BIGOFF}, s{sOKX}")
e(f"s_cselect_b32 s{sT+4}, s{sT+1}, s{sT+4}")
e(f"s_cselect_b32 s{sT+5}, s{sT+1}, s{sT+5}")
e(f"v_mov_b32 v16, s{sT+1}")
e(f"v_writelane_b32 v16, s{sT+4}, 1")
e(f"v_writelane_b32 v16, s{sT+5}, 2")
e("v_and_b32 v10, 31, v1")
e("v_lshrrev_b32 v11, 5, v1")
e(f"v_lshlrev_b32 v{vL16}, 4, v1")
e(f"v_lshlrev_b32 v{vQ}, 15, v11")
e(f"v_lshl_add_u32 v{vQ}, v10, 4, v{vQ}")
e(f"v_lshlrev_b32 v{vKA}, 13, v11")
e(f"v_lshl_add_u32 v{vKA}, v10, 4, v{vKA}")
e(f"s_lshl_b32 s{sT}, s{sI}, 9")
e(f"v_add_u32 v{vKA}, s{sT}, v{vKA}")
e(f"s_and_b32 s{sT+2}, s{sH}, 1")
e(f"s_lshl_b32 s{sT+2}, s{sT+2}, 3")
e(f"s_add_u32 s{sT+3}, s{sT}, s{sT+2}")
e(f"s_add_u32 s{sT+4}, s{sT+3}, {KX}")
e(f"v_lshl_add_u32 v{vKX}, v10, 4, s{sT+4}")
e(f"v_subrev_u32 v{vHM}, 1, v11")
e(f"v_lshlrev_b32 v12, 30, v11")
e(f"v_lshl_add_u32 v{vQX}, v10, 4, v12")
e(f"v_lshl_add_u32 v{vOX}, v10, 2, v12")
e("v_bfe_u32 v12, v1, 2, 2")
e("v_lshl_add_u32 v12, v11, 2, v12")
e("v_lshlrev_b32 v12, 4, v12")
e("v_bfe_u32 v13, v1, 1, 1")
e(f"v_mul_u32_u24 v13, {VP1-VP0}, v13")
e("v_and_b32 v14, 1, v1")
e("v_lshl_add_u32 v13, v14, 3, v13")
e(f"v_add_u32 v13, {VP0}, v13")
e(f"s_add_u32 s{sT+4}, s{sT+2}, {VX}")
e(f"v_sub_u32 v14, s{sT+4}, v13")
e("v_bfe_u32 v15, v1, 4, 1")
e("v_mul_u32_u24 v14, v14, v15")
e("v_add_u32 v13, v13, v14")
e(f"v_add3_u32 v{vVA}, v12, v13, s{sT}")
e("v_lshlrev_b32 v12, 2, v11")
e("v_sub_u32 v12, v10, v12")
e(f"s_mov_b32 s{sT}, {NEGBIG}")
for r in range(16):
    ko = 8 * (r >> 2) + (r & 3)
    e(f"v_subrev_u32 v13, {ko}, v12")
    e(f"v_ashrrev_i32 v13, 31, v13")
    e(f"v_and_b32 v{M8+r}, s{sT}, v13")
    e(f"v_xor_b32 v{M0+r}, s{sT}, v{M8+r}")
for r in (Q2+1, Q2+2, Q2+3, K2+2, K2+3): e(f"v_mov_b32 v{r}, 0")
for r in range(16): e(f"v_mov_b32 v{OA+r}, 0")
e(f"s_cmp_eq_u32 s{sISS}, 0")
e("s_cbranch_scc0 L_p2_nobulk")
bulk_wo()
lab("L_p2_nobulk")
e("s_waitcnt vmcnt(0)")
tag_check(17, 18)
e(f"v_mov_b32 v17, s{sTAG}")
e("s_mov_b64 exec, 1")
e(f"buffer_store_dword v17, v18, {s_(SWS,4)}, s{sFLAG} offen sc1")
stamp(5)
e("s_mov_b64 exec, 7")
e(f"s_mov_b32 s{sT}, 0")
lab("L_poll1")
e(f"buffer_load_dwordx4 v[12:15], v16, {s_(SWS,4)}, 0 offen sc1")
e("s_waitcnt vmcnt(0)")
for r in range(12, 16): e(f"v_xor_b32 v{r}, v17, v{r}")
e("v_or_b32 v12, v12, v13")
e("v_or3_b32 v12, v12, v14, v15")
e("v_cmp_eq_u32 vcc, 0, v12")
e("s_cmp_eq_u32 vcc_lo, 7")
e("s_cbranch_scc1 L_poll1d")
bound(sT)
e("s_branch L_poll1")
lab("L_poll1d")
e("s_mov_b64 exec, -1")
stamp(6)
e(f"s_lshl_b32 s{sT}, s{sH}, 16")
e(f"s_add_u32 s{sT}, s{sT}, s{sOQ}")
e(f"s_add_u32 s{sT}, s{sT}, {QKV}")
e(f"buffer_load_dwordx4 {v(Q1,4)}, v{vQ}, {s_(SWS,4)}, s{sT} offen sc1")
e(f"s_add_u32 s{sT}, s{sT+8}, s{sOQ}")
e(f"s_add_u32 s{sT}, s{sT}, s{sT+2}")
e(f"s_add_u32 s{sT}, s{sT}, {XP}")
e(f"buffer_load_dword v{Q2}, v{vQX}, {s_(SWS,4)}, s{sT} offen sc1")
e(f"s_lshl_b32 s{sT+1}, s{sWAVE}, 10")
for (ld, so, add) in ((KP0, sOK, 0), (KP1, sOK, 32768), (KX, sOKX, 0), (VP0, sOK, 32*65536), (VP1, sOK, 32*65536+32768), (VX, sOKX, 16*32768)):
    e(f"s_add_u32 m0, s{sT+1}, {ld}")
    e(f"s_add_u32 s{sT}, s{so}, {add}")
    e(f"buffer_load_dwordx4 v{vL16}, {s_(SWS,4)}, s{sT} offen sc1 lds")
bulk_issue()
e("s_waitcnt vmcnt(15)")
e("s_barrier")
stamp(7)

def kread(d):
    e(f"ds_read_b128 {v(K1,4)}, v{vKA} offset:{d*512}")
    e(f"ds_read_b64 {v(K2,2)}, v{vKX} offset:{d*512}")
def qk(d):
    S = SBUF(d)
    cin = v(M8,16) if d == 8 else (v(M0,16) if d == 0 else "0")
    e(f"v_mfma_f32_32x32x16_bf16 {v(S,16)}, {v(K1,4)}, {v(Q1,4)}, {cin}")
    e(f"v_mfma_f32_32x32x16_bf16 {v(S,16)}, {v(K2,4)}, {v(Q2,4)}, {v(S,16)}")

c("pass 1: exact row max")
kread(8)
e(f"v_mov_b32 v{MX}, {NEGBIG}")
e(f"v_mov_b32 v{MX+1}, {NEGBIG}")
e("s_waitcnt lgkmcnt(0)")
qk(8)
kread(7)
e("s_nop 7")
for d in range(8, -1, -1):
    if d > 0:
        e("s_waitcnt lgkmcnt(0)")
        qk(d - 1)
        if d > 1: kread(d - 2)
        else: e("s_nop 1")
    else:
        e("s_nop 4")
    S = SBUF(d)
    for r in range(8):
        e(f"v_max3_f32 v{MX + (r & 1)}, v{MX + (r & 1)}, v{S+2*r}, v{S+2*r+1}")
    if d > 0:
        e(f"s_cmp_eq_u32 s{sDMIN}, {d}")
        e("s_cbranch_scc1 L_p1done")
lab("L_p1done")
e(f"v_max_f32 v{MX}, v{MX}, v{MX+1}")
e(f"s_waitcnt lgkmcnt(0)")
kread(8)
e(f"v_mov_b32 v{MX+1}, v{MX}")
e("s_nop 1")
e(f"v_permlane32_swap_b32 v{MX}, v{MX+1}")
e(f"v_max_f32 v{MX}, v{MX}, v{MX+1}")
e(f"v_sub_f32 v{MX}, 0, v{MX}")
e(f"v_cvt_pk_bf16_f32 v{MX+1}, v{MX}, v{MX}")
e(f"v_lshlrev_b32 v{MX+1}, 16, v{MX+1}")
e(f"v_sub_f32 v{MX+1}, v{MX}, v{MX+1}")
e(f"v_cvt_pk_bf16_f32 v{MX}, v{MX}, v{MX+1}")
e(f"v_and_b32 v{Q2+1}, v{vHM}, v{MX}")
stamp(8)
e("s_waitcnt vmcnt(12) lgkmcnt(0)")
e("s_barrier")
stamp(9)
c("pass 2")
qk(8)
kread(7)
e("s_nop 5")
for d in range(8, -1, -1):
    for u in range(2):
        for wh in range(2):
            e(f"ds_read_b64_tr_b16 {v(VF+4*u+2*wh,2)}, v{vVA} offset:{d*512+u*256+wh*128}")
    if d > 0:
        e("s_waitcnt lgkmcnt(4)")
        qk(d - 1)
        if d > 1: kread(d - 2)
    S = SBUF(d)
    nk = 2 if d > 1 else 0
    for u in range(2):
        b = S + 8*u
        seq = [f"v_exp_f32 v{b}, v{b}", f"v_exp_f32 v{b+1}, v{b+1}", f"v_exp_f32 v{b+2}, v{b+2}"]
        for k in range(4):
            seq.append(f"v_cvt_pk_bf16_f32 v{PB+4*u+k}, v{b+2*k}, v{b+2*k+1}")
            for r in (2*k+3, 2*k+4):
                if r < 8: seq.append(f"v_exp_f32 v{b+r}, v{b+r}")
        seq.insert(len(seq)-1, f"s_waitcnt lgkmcnt({nk})" if u == 0 else "s_nop 0")
        for x in seq: e(x)
        e("s_nop 1")
        e(f"v_mfma_f32_32x32x16_bf16 {v(OA,16)}, {v(VF+4*u,4)}, {v(PB+4*u,4)}, {v(OA,16)}")
    if d > 0:
        e(f"s_cmp_eq_u32 s{sDMIN}, {d}")
        e("s_cbranch_scc1 L_p2done")
lab("L_p2done")
e(f"s_lshl_b32 s{sT}, s{sH}, 16")
e(f"s_add_u32 s{sT}, s{sT}, s{sOQ}")
e(f"s_add_u32 s{sT}, s{sT}, {OM}")
e(f"s_lshl_b32 s{sT+1}, s{sH}, 13")
e(f"s_lshr_b32 s{sT+2}, s{sOQ}, 2")
e(f"s_add_u32 s{sT+1}, s{sT+1}, s{sT+2}")
e(f"s_add_u32 s{sT+1}, s{sT+1}, {OX}")
e(f"s_lshl_b32 s{sFLAG}, s{sJ}, 5")
e(f"s_add_u32 s{sFLAG}, s{sFLAG}, s{sH}")
e(f"s_lshl_b32 s{sFLAG}, s{sFLAG}, 5")
e(f"s_add_u32 s{sFLAG}, s{sFLAG}, s{sI}")
e(f"s_lshl_b32 s{sFLAG}, s{sFLAG}, 2")
e(f"s_add_u32 s{sFLAG}, s{sFLAG}, {F2}")
e(f"v_rcp_f32 v{MX}, v{OA+10}")
e("s_nop 0")
for r in range(10): e(f"v_mul_f32 v{OA+r}, v{MX}, v{OA+r}")
for k in range(5): e(f"v_cvt_pk_bf16_f32 v{PB+k}, v{OA+2*k}, v{OA+2*k+1}")
e(f"buffer_store_dwordx4 {v(PB,4)}, v{vQ}, {s_(SWS,4)}, s{sT} offen sc1")
e(f"buffer_store_dword v{PB+4}, v{vOX}, {s_(SWS,4)}, s{sT+1} offen sc1")
stamp(10)

vOM, vOXL, vWM, vWX, vRW, vT1, vT2, vX1, vX2, vF2, vG1, vG2 = 2, 3, 4, 5, 6, 7, 8, 9, 10, 11, 14, 15
X1, X2, G1, G2, CD = 20, 24, 28, 30, 32
OF, A3, WO = 36, 72, 92
sTT, sKH, sHASY = sT+10, sT+11, sT+12
e(f"s_and_b32 s{sTT}, s{sWAVE}, 3")
e(f"s_lshr_b32 s{sKH}, s{sWAVE}, 2")
e(f"s_mul_i32 s{sT}, s{sTB}, 1152")
e(f"s_mul_i32 s{sT+1}, s{sCS}, 144")
e(f"s_add_u32 s{sT}, s{sT}, s{sT+1}")
e(f"s_lshl_b32 s{sT+1}, s{sTB}, 3")
e(f"s_add_u32 s{sT+1}, s{sT+1}, {GG}")
e(f"s_cmp_eq_u32 s{sWAVE}, 7")
e(f"s_cselect_b32 s{sT+2}, 0, {BIGOFF}")
for (tau0, vt, vx, vg) in ((None, vT1, vX1, vG1), (512, vT2, vX2, vG2)):
    if tau0 is None: src = 0
    else:
        e(f"v_add_u32 v16, {tau0}, v1"); src = 16
    divmod_const(12, 13, src, 9, 575, sT)
    e(f"v_mul_u32_u24 v{vt}, {RP}, v12")
    e(f"v_lshl_add_u32 v{vt}, v13, 5, v{vt}")
    e(f"v_mul_u32_u24 v{vx}, 1152, v12")
    e(f"v_lshl_add_u32 v{vx}, v13, 4, v{vx}")
    e(f"v_add_u32 v{vx}, s{sT}, v{vx}")
    e(f"v_lshl_add_u32 v{vg}, v12, 3, s{sT+1}")
    if tau0 is not None:
        e(f"v_add_u32 v{vx}, s{sT+2}, v{vx}")
e(f"buffer_load_dwordx4 {v(X1,4)}, v{vX1}, {s_(SX,4)}, 0 offen")
e(f"buffer_load_dwordx4 {v(X2,4)}, v{vX2}, {s_(SX,4)}, 0 offen")
e(f"buffer_load_dwordx2 {v(G1,2)}, v{vG1}, {s_(SWS,4)}, 0 offen sc1")
e(f"buffer_load_dwordx2 {v(G2,2)}, v{vG2}, {s_(SWS,4)}, 0 offen sc1")
cand_issue(CD, 19)
e("v_and_b32 v12, 15, v1")
e("v_lshrrev_b32 v13, 4, v1")
e(f"v_lshlrev_b32 v{vOM}, 15, v13")
e(f"v_lshl_add_u32 v{vOXL}, v12, 2, v{vOM}")
e(f"v_lshl_add_u32 v{vOM}, v12, 4, v{vOM}")
e(f"s_lshl_b32 s{sT}, s{sTT}, 4")
e(f"v_add_u32 v{vRW}, s{sT}, v12")
e(f"v_mul_u32_u24 v{vRW}, {RP}, v{vRW}")
e(f"v_lshl_add_u32 v{vRW}, v13, 4, v{vRW}")
e(f"s_mul_i32 s{sT}, s{sKH}, {R1-R0}")
e(f"v_add_u32 v{vRW}, s{sT}, v{vRW}")
e(f"s_lshr_b32 s{sT}, s{sTB}, 8")
e(f"s_lshl_b32 s{sT}, s{sT}, 5")
e(f"s_lshl_b32 s{sT+1}, s{sKH}, 4")
e(f"s_add_u32 s{sT}, s{sT}, s{sT+1}")
e(f"s_lshl_b32 s{sT}, s{sT}, 7")
e(f"s_lshl_b32 s{sT+1}, s{sTT}, 4")
e(f"s_add_u32 s{sT+3}, s{sTB}, s{sT+1}")
e(f"s_bfe_u32 s{sT+1}, s{sT+3}, 0x30005")
e(f"s_lshl_b32 s{sT+1}, s{sT+1}, 2")
e(f"s_add_u32 s{sT}, s{sT}, s{sT+1}")
e(f"s_add_u32 s{sT}, s{sT}, {F2}")
e(f"v_lshl_add_u32 v{vF2}, v1, 7, s{sT}")
e("v_bfe_u32 v16, v1, 2, 2")
e(f"v_mul_u32_u24 v{vWX}, 72, v13")
e(f"v_add3_u32 v{vWX}, v{vWX}, v16, 16")
e(f"v_lshrrev_b32 v{vWM}, 1, v13")
e(f"v_mul_u32_u24 v{vWM}, 20, v{vWM}")
e("v_and_b32 v13, 1, v13")
e("v_lshl_add_u32 v13, v13, 2, v16")
e(f"v_add_u32 v{vWM}, v{vWM}, v13")
e("v_and_b32 v13, 3, v1")
e("v_lshlrev_b32 v13, 3, v13")
e(f"s_mul_i32 s{sT}, s{sKH}, {288*160}")
e(f"s_add_u32 s{sT}, s{sT}, {BULK}")
e(f"v_add_u32 v13, s{sT}, v13")
e(f"s_movk_i32 s{sT}, 160")
e(f"v_mad_u32_u24 v{vWM}, v{vWM}, s{sT}, v13")
e(f"v_mad_u32_u24 v{vWX}, v{vWX}, s{sT}, v13")
e("s_waitcnt vmcnt(5)")
e("s_mov_b64 exec, 1")
e(f"buffer_store_dword v17, v18, {s_(SWS,4)}, s{sFLAG} offen sc1")
e("s_mov_b64 exec, -1")
stamp(11)
e("s_barrier")
e(f"s_cmp_eq_u32 s{sISS}, 0")
e("s_cbranch_scc1 L_p3_main")

c("---- S workgroups: down projection of the routed token ----")
e(f"s_cmp_eq_u32 s{sWAVE}, 0")
e("s_cbranch_scc0 L_m2_nog")
e("v_lshrrev_b32 v36, 3, v1")
e("v_lshlrev_b32 v36, 10, v36")
e("v_bfe_u32 v37, v1, 2, 1")
e("v_lshl_add_u32 v36, v37, 9, v36")
e("v_and_b32 v37, 3, v1")
e("v_lshl_add_u32 v36, v37, 4, v36")
e(f"s_lshr_b32 s{sT}, s{sRB}, 3")
e(f"s_lshl_b32 s{sT}, s{sT}, 13")
e(f"s_and_b32 s{sT+1}, s{sRB}, 7")
e(f"s_lshl_b32 s{sT+1}, s{sT+1}, 6")
e(f"s_add_u32 s{sT}, s{sT}, s{sT+1}")
e(f"s_add_u32 s{sT}, s{sT}, {PP}")
e(f"s_mov_b32 s{sT+1}, 0")
lab("L_m2_poll")
e(f"buffer_load_dwordx4 v[40:43], v36, {s_(SWS,4)}, s{sT} offen sc1")
e("s_waitcnt vmcnt(0)")
e("v_xor_b32 v41, v17, v41")
e("v_xor_b32 v43, v17, v43")
e("v_or_b32 v41, v41, v43")
e("v_cmp_eq_u32 vcc, 0, v41")
e("s_cmp_eq_u64 vcc, -1")
e("s_cbranch_scc1 L_m2_got")
bound(sT+1)
e("s_branch L_m2_poll")
lab("L_m2_got")
for r in (40, 42):
    e("s_nop 1")
    e(f"v_add_f32_dpp v{r}, v{r}, v{r} row_ror:8 row_mask:0xf bank_mask:0xf")
    cross_rows("v_add_f32", r, 41)
    bf16r(r)
    e("s_nop 1")
    e(f"v_mov_b32_dpp v{r+1}, v{r} row_ror:12 row_mask:0xf bank_mask:0xf")
    sigmoid(44, r)
    e(f"v_mul_f32 v{r}, v{r}, v44")
    bf16r(r)
    e(f"v_mul_f32 v{r}, v{r}, v{r+1}")
e("v_cvt_pk_bf16_f32 v40, v40, v42")
e(f"v_lshlrev_b32 v41, 2, v1")
e("s_mov_b64 exec, 15")
e(f"ds_write_b32 v41, v40 offset:{(HS + 128) - 131072}" if False else f"v_add_u32 v41, {HS+128}, v41")
e("ds_write_b32 v41, v40")
e("s_mov_b64 exec, -1")
e("s_waitcnt lgkmcnt(0)")
lab("L_m2_nog")
e("s_barrier")
e("v_lshrrev_b32 v36, 4, v1")
e(f"v_mov_b32 v37, {HS}")
e("v_lshl_add_u32 v37, v36, 3, v37")
for ks in range(2):
    e(f"ds_read_b64 {v(40+4*ks,2)}, v37 offset:{64*ks}")
    e(f"ds_read_b64 {v(42+4*ks,2)}, v37 offset:{64*ks+32}")
e(f"ds_read_b64 v[48:49], v37 offset:128")
e("v_mov_b32 v50, 0")
e("v_mov_b32 v51, 0")
e("v_lshrrev_b32 v38, 2, v1")
e("v_and_b32 v39, 7, v38")
e("v_add_u32 v39, 64, v39")
e("v_and_b32 v37, 3, v1")
e("v_lshlrev_b32 v37, 3, v37")
e(f"s_lshl_b32 s{sT}, s{sWAVE}, 5")
e(f"s_add_u32 s{sT}, s{sT}, {BULK}")
e(f"v_add_u32 v37, s{sT}, v37")
e(f"s_movk_i32 s{sT}, 1184")
e(f"v_mad_u32_u24 v38, v38, s{sT}, v37")
e(f"v_mad_u32_u24 v39, v39, s{sT}, v37")
e("v_subrev_u32 v37, 2, v36")
e("v_ashrrev_i32 v37, 31, v37")
e("s_waitcnt lgkmcnt(0)")
e("v_and_b32 v48, v37, v48")
e("v_and_b32 v49, v37, v49")
for n in range(5):
    F = 92 + 12*n
    for ks in range(2):
        for wh in range(2):
            e(f"ds_read_b64_tr_b16 {v(F+4*ks+2*wh,2)}, v38 offset:{ks*37888+wh*18944+n*256}")
    e(f"ds_read_b64_tr_b16 {v(F+8,2)}, v39 offset:{n*256}")
    e(f"ds_read_b64_tr_b16 {v(F+10,2)}, v39 offset:{n*256}")
    if n % 2 == 1: e("s_waitcnt lgkmcnt(0)")
e("v_and_b32 v37, 15, v1")
e("v_subrev_u32 v37, 1, v37")
e("v_ashrrev_i32 v37, 31, v37")
e("v_lshlrev_b32 v36, 4, v36")
e("v_bfi_b32 v36, v37, v36, 2.0")
e(f"s_mul_i32 s{sT}, s{sRB}, 2304")
e(f"s_lshl_b32 s{sT+1}, s{sWAVE}, 6")
e(f"s_add_u32 s{sT}, s{sT}, s{sT+1}")
e(f"s_add_u32 s{sT}, s{sT}, {YY}")
e(f"s_cmp_lt_u32 s{sWAVE}, 4")
e(f"s_cselect_b32 s{sT+1}, s{sT}, {BIGOFF}")
e("s_waitcnt lgkmcnt(0)")
for ks in range(3):
    for n in range(5):
        e(f"v_mfma_f32_16x16x32_bf16 {v(72+4*n,4)}, {v(92+12*n+4*ks,4)}, {v(40+4*ks,4)}, {'0' if ks == 0 else v(72+4*n,4)}")
e("s_barrier")
e("s_nop 2")
for n in range(5):
    e(f"buffer_store_dwordx4 {v(72+4*n,4)}, v36, {s_(SWS,4)}, s{sT if n < 4 else sT+1} offen offset:{512*n} sc1")
e(f"s_lshl_b32 s{sT+4}, s{sRB}, 7")
e(f"s_lshl_b32 s{sT+5}, s{sWAVE}, 2")
e(f"s_add_u32 s{sT+4}, s{sT+4}, s{sT+5}")
e(f"s_add_u32 s{sT+4}, s{sT+4}, {FY}")
e("v_mov_b32 v60, v10")
e("v_mov_b32 v61, v11")
bulk_wo()
e("v_mov_b32 v10, v60")
e("v_mov_b32 v11, v61")
bulk_issue()
e("s_waitcnt vmcnt(12)")
e("s_mov_b64 exec, 1")
e(f"buffer_store_dword v17, v18, {s_(SWS,4)}, s{sT+4} offen sc1")
e("s_mov_b64 exec, -1")
e("s_waitcnt vmcnt(1)")
e("s_barrier")

lab("L_p3_main")
stamp(12)
def wo_reads(F, ar, off, second):
    for t in range(5):
        e(f"ds_read_b64_tr_b16 {v(F+4*t,2)}, v{ar} offset:{off+32*t}")
        e(f"ds_read_b64_tr_b16 {v(F+4*t+2,2)}, v{ar} offset:{off+second+32*t}")
for sp in range(8):
    wo_reads(WO + 20*sp, vWM, 5760*sp, 1280)
e("s_waitcnt vmcnt(1)")
cand_check(CD, 19, 17)
e(f"s_sub_u32 s{sHASY}, s{sIDX}, s{sTB}")
e("s_mov_b64 exec, 0xffff")
e(f"s_mov_b32 s{sT}, 0")
lab("L_poll2")
e(f"buffer_load_dword v12, v{vF2}, {s_(SWS,4)}, 0 offen sc1")
e("s_waitcnt vmcnt(0)")
e("v_cmp_eq_u32 vcc, v17, v12")
e("s_cmp_eq_u32 vcc_lo, 0xffff")
e("s_cbranch_scc1 L_poll2d")
bound(sT)
e("s_branch L_poll2")
lab("L_poll2d")
e("s_mov_b64 exec, -1")
stamp(13)
e(f"s_lshl_b32 s{sT}, s{sKH}, 20")
e(f"s_lshl_b32 s{sT+1}, s{sT+3}, 4")
e(f"s_add_u32 s{sT}, s{sT}, s{sT+1}")
e(f"s_add_u32 s{sT}, s{sT}, {OM}")
for sp in range(8):
    if sp: e(f"s_add_u32 s{sT}, s{sT}, 131072")
    e(f"buffer_load_dwordx4 {v(OF+4*sp,4)}, v{vOM}, {s_(SWS,4)}, s{sT} offen sc1")
e(f"s_lshl_b32 s{sT}, s{sKH}, 17")
e(f"s_lshl_b32 s{sT+1}, s{sT+3}, 2")
e(f"s_add_u32 s{sT}, s{sT}, s{sT+1}")
e(f"s_add_u32 s{sT}, s{sT}, {OX}")
for i in range(4):
    if i: e(f"s_add_u32 s{sT}, s{sT}, 8192")
    e(f"buffer_load_dword v{OF+32+i}, v{vOXL}, {s_(SWS,4)}, s{sT} offen sc1")
for sp in range(9):
    e(f"s_waitcnt vmcnt({11-sp if sp < 8 else 0}) lgkmcnt(0)")
    F = WO + 20*(sp % 8)
    for t in range(5):
        e(f"v_mfma_f32_16x16x32_bf16 {v(A3+4*t,4)}, {v(F+4*t,4)}, {v(OF+4*sp,4)}, {'0' if sp == 0 else v(A3+4*t,4)}")
    if sp == 0: wo_reads(WO, vWX, 0, 5760)
stamp(14)
e(f"s_cmp_lt_u32 s{sHASY}, 64")
e("s_cbranch_scc0 L_noy1")
c("gather the 64 partial y rows: wave w sums producers 8w..8w+7")
e(f"v_lshrrev_b32 v12, 3, v1")
e(f"v_lshlrev_b32 v12, 7, v12")
e(f"v_and_b32 v13, 7, v1")
e(f"v_lshl_add_u32 v12, v13, 2, v12")
e(f"s_lshl_b32 s{sT}, s{sWAVE}, 10")
e(f"s_add_u32 s{sT}, s{sT}, {FY}")
e(f"s_mov_b32 s{sT+1}, 0")
lab("L_polly")
e(f"buffer_load_dword v13, v12, {s_(SWS,4)}, s{sT} offen sc1")
e("s_waitcnt vmcnt(0)")
e("v_cmp_eq_u32 vcc, v17, v13")
e("s_cmp_eq_u64 vcc, -1")
e("s_cbranch_scc1 L_pollyd")
bound(sT+1)
e("s_branch L_polly")
lab("L_pollyd")
e(f"s_mul_i32 s{sT}, s{sWAVE}, {8*2304}")
e(f"s_mul_i32 s{sT+1}, s{sCS}, 288")
e(f"s_add_u32 s{sT}, s{sT}, s{sT+1}")
e(f"s_add_u32 s{sT}, s{sT}, {YY}")
e("s_mov_b64 exec, 0x3ffff")
for p in range(8):
    if p: e(f"s_add_u32 s{sT}, s{sT}, 2304")
    e(f"buffer_load_dwordx4 {v(100+4*p,4)}, v19, {s_(SWS,4)}, s{sT} offen sc1")
e("s_waitcnt vmcnt(0)")
for p in range(1, 8):
    for i in range(4): e(f"v_add_f32 v{100+i}, v{100+i}, v{100+4*p+i}")
e(f"s_mul_i32 s{sT}, s{sWAVE}, 288")
e(f"s_add_u32 s{sT}, s{sT}, {YR}")
e(f"v_add_u32 v12, s{sT}, v19")
e("ds_write_b128 v12, v[100:103]")
e("s_mov_b64 exec, -1")
lab("L_noy1")
e("s_nop 4")
for t in range(5):
    e(f"ds_write_b128 v{vRW}, {v(A3+4*t,4)} offset:{64*t}")
e("s_waitcnt lgkmcnt(0)")
e("s_barrier")
stamp(15)

def unpack(d, p):
    e(f"v_lshlrev_b32 v{d}, 16, v{p}")
    e(f"v_and_b32 v{d+1}, 0xffff0000, v{p}")
def round8(B, T):
    for k in range(4): e(f"v_cvt_pk_bf16_f32 v{T+k}, v{B+2*k}, v{B+2*k+1}")
    for k in range(4): unpack(B+2*k, T+k)

def task(vt, vx, vg, X, G, nm):
    A, Bq, T = 40, 56, 64
    e(f"ds_read_b128 {v(A,4)}, v{vt} offset:{R0}")
    e(f"ds_read_b128 {v(A+4,4)}, v{vt} offset:{R0+16}")
    e(f"ds_read_b128 {v(A+8,4)}, v{vt} offset:{R1}")
    e(f"ds_read_b128 {v(A+12,4)}, v{vt} offset:{R1+16}")
    lp, done = ul("g"), ul("gd")
    e(f"s_mov_b32 s{sT}, 0")
    lab(lp)
    e(f"v_cmp_eq_u32 vcc, v17, v{G+1}")
    e("s_cmp_eq_u64 vcc, -1")
    e(f"s_cbranch_scc1 {done}")
    bound(sT)
    e(f"buffer_load_dwordx2 {v(G,2)}, v{vg}, {s_(SWS,4)}, 0 offen sc1")
    e("s_waitcnt vmcnt(0)")
    e(f"s_branch {lp}")
    lab(done)
    for k in range(4): unpack(Bq+2*k, X+k)
    e(f"v_sub_f32 v{G+1}, 1.0, v{G}")
    bf16r(G+1)
    e(f"s_cmp_lt_u32 s{sHASY}, 64")
    e(f"s_cbranch_scc0 L_noy2{nm}")
    e(f"v_subrev_u32 v68, {GG}, v{vg}")
    e(f"v_lshrrev_b32 v68, 3, v68")
    e(f"s_mul_i32 s{sT}, s{sHASY}, {RP}")
    e(f"v_subrev_u32 v69, s{sT}, v{vt}")
    e(f"v_and_b32 v69, 0x1e0, v69")
    for w in range(8):
        e(f"ds_read_b128 {v(100+8*w,4)}, v69 offset:{YR+288*w}")
        e(f"ds_read_b128 {v(104+8*w,4)}, v69 offset:{YR+288*w+16}")
        if w % 4 == 3: e("s_waitcnt lgkmcnt(0)")
    for w in range(1, 8):
        for i in range(8): e(f"v_add_f32 v{100+i}, v{100+i}, v{100+8*w+i}")
    round8(100, 110)
    e(f"s_lshr_b32 s{sT}, s{sKEY}, 16")
    e(f"s_bitcmp1_b32 s{sT}, 15")
    e(f"s_cselect_b32 s{sT+1}, 0x8000, 0xffff") if False else None
    e(f"s_cselect_b32 s{sT+1}, 0, 0x7fff")
    e(f"s_xor_b32 s{sT}, s{sT}, s{sT+1}")
    e(f"s_xor_b32 s{sT}, s{sT}, 0x8000")
    e(f"s_lshl_b32 s{sT}, s{sT}, 16")
    e(f"v_mov_b32 v108, s{sT}")
    sigmoid(109, 108)
    bf16r(109)
    for i in range(8): e(f"v_mul_f32 v{100+i}, v109, v{100+i}")
    round8(100, 110)
    for i in range(8): e(f"v_add_f32 v{100+i}, v{Bq+i}, v{100+i}")
    round8(100, 110)
    e(f"v_cmp_eq_u32 vcc, s{sIDX}, v68")
    e("s_nop 1")
    for i in range(8): e(f"v_cndmask_b32 v{Bq+i}, v{Bq+i}, v{100+i}, vcc")
    lab(f"L_noy2{nm}")
    e("s_waitcnt lgkmcnt(0)")
    for i in range(8): e(f"v_add_f32 v{A+i}, v{A+i}, v{A+8+i}")
    round8(A, T)
    for i in range(8): e(f"v_mul_f32 v{A+i}, v{G}, v{A+i}")
    for i in range(8): e(f"v_mul_f32 v{Bq+i}, v{G+1}, v{Bq+i}")
    round8(A, T)
    round8(Bq, T)
    for i in range(8): e(f"v_add_f32 v{A+i}, v{A+i}, v{Bq+i}")
    for k in range(4): e(f"v_cvt_pk_bf16_f32 v{T+k}, v{A+2*k}, v{A+2*k+1}")
    e(f"buffer_store_dwordx4 {v(T,4)}, v{vx}, {s_(SOUT,4)}, 0 offen")
task(vT1, vX1, vG1, X1, G1, "a")
e(f"s_cmp_eq_u32 s{sWAVE}, 7")
e("s_cbranch_scc0 L_fin")
task(vT2, vX2, vG2, X2, G2, "b")
lab("L_fin")
stamp(16)

if DBGT:
    e("v_lshlrev_b32 v2, 2, v1")
    e("s_mov_b64 exec, 0xfffe")
    e(f"global_atomic_umax v2, v255, {s_(pDBG,2)}")
elif PROF:
    e(f"s_lshl_b32 s{sT}, s2, 3")
    e(f"s_add_u32 s{sT}, s{sT}, s{sWAVE}")
    e(f"s_lshl_b32 s{sT}, s{sT}, 7")
    e(f"s_add_u32 s{sT}, s{sT}, {PROFB}")
    e("v_lshlrev_b32 v2, 2, v1")
    e("s_mov_b64 exec, 0xffffffff")
    e(f"buffer_store_dword v255, v2, {s_(SWS,4)}, s{sT} offen")
lab("L_end")
e("s_endpgm")

body = "\n".join(L)
hdr = open("cdna_kernels/" + NAME + ".s.ref").read().split("; Override launch")[0]
text = hdr + f"""; @launch grid=(256,1,1) block=(512,1,1) lds={LDS_TOTAL}
.amdgcn_target "amdgcn-amd-amdhsa--gfx950"
.text
.globl {NAME}_kernel
.p2align 8
.type {NAME}_kernel,@function
{body}
.section .rodata,"a"
.p2align 6
.amdhsa_kernel {NAME}_kernel
  .amdhsa_next_free_vgpr 256
  .amdhsa_next_free_sgpr 102
  .amdhsa_accum_offset 256
  .amdhsa_group_segment_fixed_size 0
  .amdhsa_kernarg_size 96
  .amdhsa_user_sgpr_count 2
  .amdhsa_user_sgpr_kernarg_segment_ptr 1
  .amdhsa_system_sgpr_workgroup_id_x 1
.end_amdhsa_kernel
"""
out = [a for a in sys.argv[1:] if not a.startswith("--")]
path = out[0] if out else "cdna_kernels/" + NAME + ".s"
open(path, "w").write(text)
errs = hazard.check(body)
print("\n".join(errs) if errs else "hazard check clean", file=sys.stderr)
```

```python
import sys, math, struct
import hazard

NAME = "gated_mix__sliding_block__moe_arch_mod__prompt"
DBGT = "--dbgt" in sys.argv
PROF = "--prof" in sys.argv or DBGT
NOLOAD = "--noload" in sys.argv
NOCOMP = "--nocomp" in sys.argv
NOMFMA = "--nomfma" in sys.argv
NOREAD = "--noread" in sys.argv
XNOSWZ = "--xnoswz" in sys.argv
NOX = "--nox" in sys.argv
NOW = "--now" in sys.argv
WAL = "--wal" in sys.argv
def opt(n, d=""):
    for a in sys.argv:
        if a.startswith(f"--{n}="): return a.split("=", 1)[1].replace("+", " ")
    return d
XF_, WF_ = opt("xf"), opt("wf")
NOS = "--nos" in sys.argv
ROT = opt("rot", "9")
STOP = None
for a in sys.argv:
    if a.startswith("--stop="): STOP = a.split("=")[1]

F1, F2, CAND, FY, GG, PP, YY = 0x0, 0x8000, 0x10000, 0x11000, 0x14000, 0x18000, 0x28000
QKV, XP, OM, OX = 0x100000, 0x700000, 0x880000, 0xA80000
PROFB = 0xB00000
WS_SIZE = 0xC00000
BIGOFF = 0x40000000
SPIN = 200000

SLOT = 34816
KP0, KP1, KX = 0, 8192, 16384
VB = 24576
VP0, VP1, VX = VB, VB + 8192 + 64, VB + 16384 + 128
BULK = 49408
R0, R1, YR = 0, 21504, 43008
RP = 336
LDS_TOTAL = 163840

def f32bits(x): return struct.unpack("<I", struct.pack("<f", x))[0]
QSCALE = f32bits(18 ** -0.5 * math.log2(math.e))
NEGBIG = f32bits(-1e30)
LOG2E = f32bits(math.log2(math.e))

L = []
def e(s): L.append("  " + s)
def lab(s): L.append(s + ":")
def c(s): L.append("  ; " + s)
def v(a, n=1): return f"v{a}" if n == 1 else f"v[{a}:{a+n-1}]"
def s_(a, n=1): return f"s{a}" if n == 1 else f"s[{a}:{a+n-1}]"
_uid = [0]
def ul(p):
    _uid[0] += 1
    return f"L_{p}_{_uid[0]}"

sWAVE, sXCD, sSLOT, sRB, sCB = 3, 4, 5, 6, 7
SX, SW, SWS, SOUT, SA, SB = 8, 12, 40, 44, 48, 52
pX, pWQKV, pWO, pWR, pWG, pWU, pWD, pGW, pOUT, pDBG, pWS = 16, 18, 20, 24, 26, 28, 30, 32, 34, 36, 38
sTAG = 56
sT = 57
sH, sJ, sI, sTB, sCS, sISS = 76, 77, 78, 79, 80, 81
sDMIN, sIDX, sKEY, sFLAG = 82, 83, 84, 85
sSTAMP = 86

def stamp(k):
    if PROF:
        if DBGT:
            m = {1: 3, 2: 4, 5: 5, 6: 6, 7: 7, 10: 8, 12: 9, 13: 10, 15: 11, 16: 12}
            if k not in m: return
            k = m[k]
        e(f"s_memrealtime s[100:101]" if DBGT else f"s_memtime s[100:101]")
        e("s_waitcnt lgkmcnt(0)")
        e(f"v_writelane_b32 v255, s100, {k}")

def srd(base, ptr, size):
    e(f"s_mov_b32 s{base}, s{ptr}")
    e(f"s_mov_b32 s{base+1}, s{ptr+1}")
    e(f"s_mov_b32 s{base+2}, {size}")
    e(f"s_mov_b32 s{base+3}, 0x20000")

def divmod_const(dq, dr, src, d, maxv, tmp_s):
    for sh in range(16, 25):
        m = -(-(1 << sh) // d)
        if m < (1 << 24) and maxv * m < (1 << 32) and all((x * m) >> sh == x // d for x in range(maxv + 1)):
            break
    else:
        raise Exception("no magic")
    e(f"v_mul_u32_u24 v{dq}, {m}, v{src}")
    e(f"v_lshrrev_b32 v{dq}, {sh}, v{dq}")
    e(f"v_mul_u32_u24 v{dr}, {d}, v{dq}")
    e(f"v_sub_u32 v{dr}, v{src}, v{dr}")

def tag_issue(vt, vz):
    e(f"v_mov_b32 v{vz}, 0")
    e(f"global_load_dword v{vt}, v{vz}, {s_(pDBG,2)} sc1")

def tag_check(vt, vz):
    lp, done = ul("tag"), ul("tagd")
    e(f"s_mov_b32 s{sT}, 0")
    lab(lp)
    e(f"v_readfirstlane_b32 s{sTAG}, v{vt}")
    e(f"s_cmp_lg_u32 s{sTAG}, 0")
    e(f"s_cbranch_scc1 {done}")
    e(f"s_add_u32 s{sT}, s{sT}, 1")
    e(f"s_cmp_gt_u32 s{sT}, {SPIN}")
    e(f"s_cbranch_scc1 L_end")
    e(f"global_load_dword v{vt}, v{vz}, {s_(pDBG,2)} sc1")
    e("s_waitcnt vmcnt(0)")
    e(f"s_branch {lp}")
    lab(done)


def bound(cnt):
    e(f"s_add_u32 s{cnt}, s{cnt}, 1")
    e(f"s_cmp_gt_u32 s{cnt}, {SPIN}")
    e("s_cbranch_scc1 L_end")

def bf16r(r, t=None):
    e(f"v_cvt_pk_bf16_f32 v{r}, v{r}, v{r}")
    e(f"v_and_b32 v{r}, 0xffff0000, v{r}")

def sigmoid(d, x):
    e(f"v_mul_f32 v{d}, {(LOG2E ^ 0x80000000):#x}, v{x}")
    e(f"v_exp_f32 v{d}, v{d}")
    e("s_nop 0")
    e(f"v_add_f32 v{d}, 1.0, v{d}")
    e(f"v_rcp_f32 v{d}, v{d}")
    e("s_nop 0")

def row_max_u32(r):
    for k in (8, 4, 2, 1):
        e("s_nop 1")
        e(f"v_max_u32_dpp v{r}, v{r}, v{r} row_ror:{k} row_mask:0xf bank_mask:0xf")

def cross_rows(op, r, t):
    for sw in ("v_permlane16_swap_b32", "v_permlane32_swap_b32"):
        e(f"v_mov_b32 v{t}, v{r}")
        e("s_nop 1")
        e(f"{sw} v{r}, v{t}")
        e(f"{op} v{r}, v{r}, v{t}")

def cand_issue(R, va):
    e(f"v_lshlrev_b32 v{va}, 4, v1")
    e(f"s_mov_b32 s{sT}, {CAND}")
    e(f"buffer_load_dwordx4 {v(R,4)}, v{va}, {s_(SWS,4)}, s{sT} offen sc1")

def cand_check(R, va, vtag):
    lp, done = ul("cand"), ul("candd")
    e(f"s_mov_b32 s{sT+1}, 0")
    lab(lp)
    e(f"v_xor_b32 v{R+1}, v{vtag}, v{R+1}")
    e(f"v_xor_b32 v{R+3}, v{vtag}, v{R+3}")
    e(f"v_or_b32 v{R+1}, v{R+1}, v{R+3}")
    e(f"v_cmp_eq_u32 vcc, 0, v{R+1}")
    e("s_cmp_eq_u64 vcc, -1")
    e(f"s_cbranch_scc1 {done}")
    bound(sT+1)
    e(f"s_mov_b32 s{sT}, {CAND}")
    e(f"buffer_load_dwordx4 {v(R,4)}, v{va}, {s_(SWS,4)}, s{sT} offen sc1")
    e("s_waitcnt vmcnt(0)")
    e(f"s_branch {lp}")
    lab(done)
    e(f"v_max_u32 v{R}, v{R}, v{R+2}")
    row_max_u32(R)
    cross_rows("v_max_u32", R, R+1)
    e("s_nop 0")
    e(f"v_readfirstlane_b32 s{sKEY}, v{R}")
    e(f"s_and_b32 s{sIDX}, s{sKEY}, 0xffff")
    e(f"s_sub_u32 s{sIDX}, 2047, s{sIDX}")

lab(f"{NAME}_kernel")
e(f"s_load_dwordx16 s[16:31], s[0:1], 0")
e(f"s_load_dwordx8 s[32:39], s[0:1], 64")
if PROF:
    e(f"s_memrealtime s[98:99]")
    e(f"s_memtime s[96:97]")
    e("v_mov_b32 v255, 0")
e("s_cmp_ge_u32 s2, 256")
e("s_cbranch_scc1 L_end")
e("v_lshrrev_b32 v2, 6, v0")
e("v_and_b32 v1, 63, v0")
e(f"v_readfirstlane_b32 s{sWAVE}, v2")
e(f"s_and_b32 s{sXCD}, s2, 7")
e(f"s_lshr_b32 s{sSLOT}, s2, 3")
e(f"s_and_b32 s{sRB}, s{sXCD}, 3")
e(f"s_lshl_b32 s{sRB}, s{sRB}, 2")
e(f"s_and_b32 s{sT}, s{sSLOT}, 3")
e(f"s_add_u32 s{sRB}, s{sRB}, s{sT}")
e(f"s_lshr_b32 s{sCB}, s{sXCD}, 2")
e(f"s_mul_i32 s{sCB}, s{sCB}, 6")
e(f"s_lshr_b32 s{sT+1}, s{sSLOT}, 2")
e(f"s_add_u32 s{sCB}, s{sCB}, s{sT+1}")
def kernargs_ready():
    e("s_waitcnt lgkmcnt(0)")
    if PROF:
        if DBGT:
            e("s_not_b32 s96, s98")
            e("v_writelane_b32 v255, s96, 1")
            e("v_writelane_b32 v255, s98, 2")
        else:
            e("v_writelane_b32 v255, s96, 0")
            e("v_writelane_b32 v255, s98, 31")
    srd(SX, pX, 2048 * 1152)
    srd(SW, pWQKV, 576 * 3456)
def late_srds():
    srd(SWS, pWS, WS_SIZE)
    srd(SOUT, pOUT, 2048 * 1152)
e(f"s_cmp_ge_u32 s{sSLOT}, 24")
e("s_cbranch_scc1 L_sphase")
e(f"s_cmp_lt_u32 s{sWAVE}, 4")
e("s_cbranch_scc1 L_compute")

c("---- P1 loader ----")
sLW, sSIG, sLS, sXB, sWB, sCNT = sT+2, sT+3, sT+4, sT+5, sT+6, sT+7
e(f"s_sub_u32 s{sLW}, s{sWAVE}, 4")
e("v_lshrrev_b32 v2, 3, v1")
e("v_mul_u32_u24 v2, 1152, v2")
e("v_lshrrev_b32 v3, 4, v1")
e(f"s_and_b32 s{sT+8}, s{sLW}, 1")
e(f"s_lshl_b32 s{sT+8}, s{sT+8}, 2")
e(f"v_add_u32 v3, s{sT+8}, v3")
e("v_and_b32 v4, 7, v1")
e("v_xor_b32 v3, v3, v4")
e("v_lshl_add_u32 v2, v3, 4, v2")
if ROT == "9":
    e(f"s_lshl_b32 s{sT}, s{sT}, 1")
    e(f"s_mul_i32 s{sSIG}, s{sT+1}, 3")
    e(f"s_add_u32 s{sSIG}, s{sSIG}, s{sT}")
    e(f"s_cmp_ge_u32 s{sT+1}, 3")
    e(f"s_addc_u32 s{sSIG}, s{sSIG}, 0")
    for _ in range(2):
        e(f"s_cmp_ge_u32 s{sSIG}, 9")
        e(f"s_cselect_b32 s{sT}, 9, 0")
        e(f"s_sub_u32 s{sSIG}, s{sSIG}, s{sT}")
elif ROT == "3":
    e(f"s_add_u32 s{sSIG}, s{sT}, s{sT+1}")
    for _ in range(2):
        e(f"s_cmp_ge_u32 s{sSIG}, 3")
        e(f"s_cselect_b32 s{sT}, 3, 0")
        e(f"s_sub_u32 s{sSIG}, s{sSIG}, s{sT}")
    e(f"s_mul_i32 s{sSIG}, s{sSIG}, 3")
elif ROT == "2":
    e(f"s_add_u32 s{sSIG}, s{sT}, s{sT+1}")
    e(f"s_and_b32 s{sSIG}, s{sSIG}, 1")
    e(f"s_lshl_b32 s{sSIG}, s{sSIG}, 2")
else:
    e(f"s_mov_b32 s{sSIG}, 0")
e(f"s_mul_i32 s{sXB}, s{sRB}, {128*1152}")
e(f"s_mul_i32 s{sT}, s{sLW}, 9216")
e(f"s_add_u32 s{sXB}, s{sXB}, s{sT}")
e(f"s_mul_i32 s{sWB}, s{sCB}, 288")
e(f"s_lshl_b32 s{sLS}, s{sLW}, 10")
e(f"s_lshl_b32 s{sT}, s{sLW}, 6")
e(f"v_add_u32 v5, s{sT}, v1")
for n in range(5):
    if n: e(f"v_add_u32 v5, 256, v5")
    divmod_const(6, 7, 5, 18, 64*20+63, sT)
    e(f"v_mul_u32_u24 v6, 3456, v6")
    e(f"v_lshl_add_u32 v{8+n}, v7, 4, v6")
e(f"s_mov_b32 s{sCNT}, 0")
kernargs_ready()
stamp(1)
lab("L_ld_loop")
e(f"s_lshl_b32 s{sT}, s{sSIG}, 7")
e(f"s_add_u32 s{sT}, s{sT}, s{sXB}")
e(f"s_mul_i32 s{sT+1}, s{sSIG}, {64*3456}")
e(f"s_add_u32 s{sT+1}, s{sT+1}, s{sWB}")
e(f"s_mov_b32 m0, s{sLS}")
for n in range(4):
    if n:
        e(f"s_add_u32 s{sT}, s{sT}, 36864")
        e(f"s_add_u32 m0, m0, 4096")
        e("s_nop 0")
    else:
        e("s_nop 0")
    if not NOLOAD and not NOX: e(f"buffer_load_dwordx4 v2, {s_(SX,4)}, s{sT} offen {XF_} lds")
for n in range(5):
    if n == 4:
        e(f"s_cmp_ge_u32 s{sLW}, 2")
        e("s_cbranch_scc1 L_ld_skip5")
    e(f"s_add_u32 m0, m0, 4096")
    e("s_nop 0")
    if not NOLOAD and not NOW: e(f"buffer_load_dwordx4 v{8+n}, {s_(SW,4)}, s{sT+1} offen {WF_} lds")
lab("L_ld_skip5")
e(f"s_add_u32 s{sSIG}, s{sSIG}, 1")
e(f"s_cmp_eq_u32 s{sSIG}, 9")
e(f"s_cselect_b32 s{sSIG}, 0, s{sSIG}")
e(f"s_add_u32 s{sLS}, s{sLS}, {SLOT}")
e(f"s_cmp_ge_u32 s{sLS}, {4*SLOT}")
e(f"s_cselect_b32 s{sT}, {4*SLOT}, 0")
e(f"s_sub_u32 s{sLS}, s{sLS}, s{sT}")
e(f"s_add_u32 s{sCNT}, s{sCNT}, 1")
e(f"s_cmp_lg_u32 s{sCNT}, 2")
e("s_cbranch_scc1 L_ld_n2")
stamp(2)
e("s_waitcnt vmcnt(8)")
e("s_barrier")
stamp(3)
lab("L_ld_n2")
e(f"s_cmp_lt_u32 s{sCNT}, 4")
e("s_cbranch_scc1 L_ld_loop")
lab("L_ld_nb0")
e(f"s_cmp_eq_u32 s{sCNT}, 9")
e("s_cbranch_scc1 L_ld_tail")
e("s_waitcnt vmcnt(16)")
e("s_barrier")
e("s_branch L_ld_loop")
lab("L_ld_tail")
for n in (16, 8, 0):
    e(f"s_waitcnt vmcnt({n})")
    e("s_barrier")
stamp(4)
late_srds()
tag_issue(17, 18)
e(f"s_mov_b32 s{sISS}, 0")
e("v_lshrrev_b32 v2, 3, v1")
e(f"s_lshr_b32 s{sT}, s{sRB}, 1")
e(f"v_add_u32 v3, s{sT}, v2")
e(f"s_and_b32 s{sT}, s{sCB}, 3")
e(f"s_lshl_b32 s{sT}, s{sT}, 3")
e("v_and_b32 v4, 7, v1")
e(f"v_add_u32 v4, s{sT}, v4")
e("v_lshl_add_u32 v4, v3, 5, v4")
e("v_lshlrev_b32 v4, 7, v4")
e(f"s_lshr_b32 s{sT}, s{sCB}, 2")
e(f"s_lshl_b32 s{sT+1}, s{sT}, 4")
e(f"s_and_b32 s{sT+2}, s{sRB}, 1")
e(f"s_lshl_b32 s{sT+2}, s{sT+2}, 2")
e(f"s_add_u32 s{sT+1}, s{sT+1}, s{sT+2}")
e(f"v_add_u32 v4, s{sT+1}, v4")
e("v_lshlrev_b32 v5, 3, v2")
e("v_sub_u32 v4, v4, v5")
e(f"s_cmp_eq_u32 s{sT}, 0")
e(f"s_cselect_b32 s{sT}, 8, 0")
e(f"v_mul_u32_u24 v2, s{sT}, v2")
e("v_add_u32 v3, v3, v2")
e("v_subrev_u32 v3, 8, v3")
e("v_ashrrev_i32 v3, 31, v3")
e("v_bfi_b32 v19, v3, v4, 2.0")
e("s_barrier")
e("s_branch L_p2")

ACC = 64
def acc(tt, ct): return ACC + (ct * 4 + tt) * 4
def xf(p, tt): return 144 + 36 * p + 4 * tt
def wf(p, ct): return 160 + 36 * p + 4 * ct
XA = 2
WA = 6

def reads(p, ks, NT):
    wr = []
    for ct in range(NT):
        for wh in range(2):
            if ct < 4:
                off = ks * 9216 + wh * 4608 + 72 * (ct >> 1) + 40 * (ct & 1)
                wr.append(f"ds_read_b64_tr_b16 {v(wf(p,ct)+2*wh,2)}, v{WA+2*ks} offset:{off}")
            else:
                off = ks * 9216 + wh * 4608
                wr.append(f"ds_read_b64_tr_b16 {v(wf(p,ct)+2*wh,2)}, v{WA+2*ks+1} offset:{off}")
    xr = []
    for tt in range(4):
        for wh in range(2):
            xr.append(f"ds_read_b64 {v(xf(p,tt)+2*wh,2)}, v{XA+2*ks+wh} offset:{tt*2048}")
    return wr[:2] + xr + wr[2:]

def kstep(p, ks_next, NT, fill, late, late_at):
    rd = reads(1 - p, ks_next, NT)
    if NOREAD: rd = []
    rd = rd + list(fill)
    n = 0
    for ct in range(NT):
        for tt in range(4):
            a = acc(tt, ct)
            if not NOMFMA: e(f"v_mfma_f32_16x16x32_bf16 {v(a,4)}, {v(wf(p,ct),4)}, {v(xf(p,tt),4)}, {v(a,4)}")
            n += 1
            if n == late_at:
                assert not rd, rd
                for x in late: e(x)
            for _ in range(2):
                if rd: e(rd.pop(0))
    assert not rd

lab("L_compute")
c("---- P1 compute ----")
sMH, sNH, sDL, sIT, sSL = sT+2, sT+3, sT+4, sT+5, sT+6
e(f"s_and_b32 s{sMH}, s{sWAVE}, 1")
e(f"s_lshr_b32 s{sNH}, s{sWAVE}, 1")
e("v_and_b32 v18, 15, v1")
e("v_lshrrev_b32 v19, 4, v1")
e(f"s_lshl_b32 s{sT}, s{sMH}, 13")
e(f"v_lshl_add_u32 v10, v18, 7, s{sT}")
e("v_and_b32 v11, 1, v19")
e("v_lshl_add_u32 v10, v11, 3, v10")
e("v_lshrrev_b32 v11, 1, v19")
e("v_lshrrev_b32 v12, 1, v18")
e("v_xor_b32 v11, v11, v12")
for i in range(4):
    e(f"v_xor_b32 v12, {2*i}, v11")
    e(f"v_lshl_add_u32 v{XA+i}, v12, 4, v10")
e("v_lshrrev_b32 v10, 2, v1")
e("v_mul_u32_u24 v10, 288, v10")
e("v_and_b32 v11, 3, v1")
e(f"s_mul_i32 s{sT}, s{sNH}, 144")
e(f"s_add_u32 s{sT}, s{sT}, 16384")
e(f"v_lshl_add_u32 v{WA}, v11, 3, v10")
e(f"v_add_u32 v{WA}, s{sT}, v{WA}")
e("v_mul_u32_u24 v11, 72, v11")
e(f"v_add_u32 v{WA+1}, v10, v11")
e(f"v_add_u32 v{WA+1}, {16384+32}, v{WA+1}")
e(f"v_mov_b32 v{WA+2}, v{WA}")
e(f"v_mov_b32 v{WA+3}, v{WA+1}")
for r in range(ACC, ACC + 80): e(f"v_mov_b32 v{r}, 0")
VE, VXO = 13, 14
e(f"v_lshrrev_b32 v10, 1, v19")
e(f"v_lshlrev_b32 v{VE}, 15, v10")
e("v_and_b32 v10, 1, v19")
e(f"v_lshl_add_u32 v{VE}, v10, 8, v{VE}")
e(f"v_lshl_add_u32 v{VE}, v18, 4, v{VE}")
e(f"v_lshlrev_b32 v{VXO}, 15, v19")
e(f"v_lshl_add_u32 v{VXO}, v18, 4, v{VXO}")
kernargs_ready()
e(f"s_or_b32 s{sT}, s2, s{sWAVE}")
e(f"s_cmp_lg_u32 s{sT}, 0")
e("s_cbranch_scc1 L_notag")
e(f"s_memrealtime {s_(sT+9,2)}")
e("v_mov_b32 v21, 0")
e("s_waitcnt lgkmcnt(0)")
e(f"s_or_b32 s{sT+9}, s{sT+9}, 1")
e(f"v_mov_b32 v20, s{sT+9}")
e("s_mov_b64 exec, 1")
e(f"global_store_dword v21, v20, {s_(pDBG,2)} sc1")
e("s_mov_b64 exec, -1")
lab("L_notag")
late_srds()
e(f"s_mov_b32 s{sISS}, 0")
e(f"s_mov_b32 s{sIT}, 0")
e(f"s_mov_b32 s{sSL}, 0")
e(f"s_cmp_eq_u32 s{sNH}, 0")
e("s_cbranch_scc0 L_cmp4")
for NT in (5, 4):
    if NT == 4: lab("L_cmp4")
    e("s_barrier")
    stamp(1)
    for r in reads(0, 0, NT): e(r)
    e("s_waitcnt lgkmcnt(0)")
    lab(f"L_cloop{NT}")
    fillA = [f"s_add_u32 s{sSL}, s{sSL}, 1", f"s_cmp_eq_u32 s{sSL}, 4", f"s_cselect_b32 s{sSL}, 0, s{sSL}",
             f"s_cselect_b32 s{sDL}, {(-4*SLOT) & 0xffffffff}, 0", f"s_add_u32 s{sDL}, s{sDL}, {SLOT}"] + \
            [f"v_add_u32 v{r}, s{sDL}, v{r}" for r in (XA, XA+1, WA, WA+1)]
    kstep(0, 1, NT, fillA, ["s_waitcnt lgkmcnt(0)", "s_barrier"], 4*NT - 1)
    fillB = [f"v_add_u32 v{r}, s{sDL}, v{r}" for r in (XA+2, XA+3, WA+2, WA+3)] + \
            [f"s_add_u32 s{sIT}, s{sIT}, 1", f"s_cmp_lt_u32 s{sIT}, 9"]
    kstep(1, 0, NT, fillB, ["s_waitcnt lgkmcnt(0)"], 4*NT - 1)
    e(f"s_cbranch_scc1 L_cloop{NT}")
    if NT == 5: e("s_branch L_cepi")
lab("L_cepi")
stamp(2)
tag_issue(17, 18)
sSO, sSC = sT+7, sT+9
assert sSC % 2 == 0
e(f"s_lshl_b32 s{sT}, s{sRB}, 11")
e(f"s_lshl_b32 s{sT+1}, s{sMH}, 10")
e(f"s_add_u32 s{sT}, s{sT}, s{sT+1}")
e(f"s_lshl_b32 s{sSO}, s{sCB}, 3")
e(f"s_lshl_b32 s{sT+1}, s{sNH}, 2")
e(f"s_add_u32 s{sSO}, s{sSO}, s{sT+1}")
e(f"s_lshl_b32 s{sSO}, s{sSO}, 16")
e(f"s_add_u32 s{sSO}, s{sSO}, s{sT}")
e(f"s_add_u32 s{sSO}, s{sSO}, {QKV}")
e(f"s_lshl_b32 s{sT+8}, s{sCB}, 17")
e(f"s_add_u32 s{sT+8}, s{sT+8}, s{sT}")
e(f"s_add_u32 s{sT+8}, s{sT+8}, {XP}")
e(f"s_cmp_lt_u32 s{sCB}, 4")
e("s_cbranch_scc0 L_noscale")
e(f"s_mov_b32 s{sSC}, {QSCALE}")
e(f"s_mov_b32 s{sSC+1}, {QSCALE}")
for r in range(ACC, ACC + 80, 2):
    e(f"v_pk_mul_f32 {v(r,2)}, {v(r,2)}, {s_(sSC,2)}")
lab("L_noscale")
q = 0
for ct in range(4):
    for pr in range(2):
        R = 20 + 4 * (q % 4); q += 1
        a, b = acc(2*pr, ct), acc(2*pr+1, ct)
        e(f"v_cvt_pk_bf16_f32 v{R}, v{a}, v{a+1}")
        e(f"v_cvt_pk_bf16_f32 v{R+2}, v{b}, v{b+1}")
        e(f"v_cvt_pk_bf16_f32 v{R+1}, v{a+2}, v{a+3}")
        e(f"v_cvt_pk_bf16_f32 v{R+3}, v{b+2}, v{b+3}")
        e("s_nop 0")
        e(f"v_permlane16_swap_b32 v{R}, v{R+2}")
        e(f"v_permlane16_swap_b32 v{R+1}, v{R+3}")
        e(f"buffer_store_dwordx4 {v(R,4)}, v{VE}, {s_(SWS,4)}, s{sSO} offen offset:{512*pr} sc1")
    e(f"s_add_u32 s{sSO}, s{sSO}, 65536")
e(f"s_cmp_eq_u32 s{sNH}, 0")
e("s_cbranch_scc0 L_noextra")
for tt in range(4):
    R = 36 + 4 * tt
    a = acc(tt, 4)
    e(f"v_cvt_pk_bf16_f32 v{R}, v{a}, v{a+1}")
    e(f"v_mov_b32 v{R+1}, 0x3f803f80")
    e(f"v_cvt_pk_bf16_f32 v{R+2}, v{a+2}, v{a+3}")
    e(f"v_mov_b32 v{R+3}, 0x3f803f80")
    e(f"buffer_store_dwordx4 {v(R,4)}, v{VXO}, {s_(SWS,4)}, s{sT+8} offen offset:{256*tt} sc1")
lab("L_noextra")
stamp(3)
e("s_branch L_p2")

lab("L_sphase")
if NOS: e("s_branch L_end")
e(f"s_mov_b32 s{sISS}, 1")

XR, WV, XS, GATE, UPA, UPB, HS = 0, 36864, 40960, 44032, 117760, 0, 147712
sS = sRB
e(f"s_lshl_b32 s{sS}, s{sXCD}, 3")
e(f"s_add_u32 s{sS}, s{sS}, s{sSLOT}")
e(f"s_sub_u32 s{sS}, s{sS}, 24")
e(f"s_cmp_lt_u32 s{sWAVE}, 4")
e("s_cbranch_scc1 L_s_ctl")
c("---- S streamers (waves 4..7) ----")
sLW2 = sT+2
e(f"s_sub_u32 s{sLW2}, s{sWAVE}, 4")
e(f"s_lshl_b32 s{sT+4}, s{sLW2}, 10")
e("v_lshrrev_b32 v2, 3, v1")
e("v_and_b32 v3, 6, v2")
e("v_and_b32 v4, 7, v1")
e("v_xor_b32 v3, v3, v4")
e("v_mul_u32_u24 v2, 9216, v2")
e("v_lshl_add_u32 v2, v3, 4, v2")
e(f"s_mul_i32 s{sT+5}, s{sLW2}, {8*9216}")
e(f"s_lshl_b32 s{sT}, s{sS}, 7")
e(f"s_add_u32 s{sT+5}, s{sT+5}, s{sT}")
kernargs_ready()
srd(SA, pWG, 576 * 9216)
srd(SB, pWU, 576 * 9216)
def stream(srdr, n, lds, row0):
    lp = ul("st")
    e(f"s_add_u32 m0, s{sT+4}, {lds}")
    e(f"s_add_u32 s{sT}, s{sT+5}, {row0*9216}")
    e(f"s_mov_b32 s{sT+1}, 0")
    lab(lp)
    e(f"buffer_load_dwordx4 v2, {s_(srdr,4)}, s{sT} offen nt lds")
    e("s_add_u32 m0, m0, 4096")
    e(f"s_add_u32 s{sT}, s{sT}, {32*9216}")
    e(f"s_add_u32 s{sT+1}, s{sT+1}, 1")
    e(f"s_cmp_lt_u32 s{sT+1}, {n}")
    e(f"s_cbranch_scc1 {lp}")
stream(SA, 18, GATE, 0)
stream(SB, 11, UPA, 0)
late_srds()
e("s_barrier")
stream(SB, 7, UPB, 352)
e("s_waitcnt vmcnt(18)")
e("s_barrier")
e("s_barrier")
e(f"s_cmp_lt_u32 s{sLW2}, 2")
e(f"s_cselect_b32 s{SW}, s{pWG}, s{pWU}")
e(f"s_cselect_b32 s{SW+1}, s{pWG+1}, s{pWU+1}")
e(f"s_mov_b32 s{SW+2}, {576*9216}")
e(f"s_and_b32 s{sT}, s{sS}, 7")
e(f"s_mul_i32 s{sT}, s{sT}, {72*9216}")
e(f"s_lshr_b32 s{sT+1}, s{sS}, 3")
e(f"s_lshl_b32 s{sT+1}, s{sT+1}, 7")
e(f"s_add_u32 s{sT}, s{sT}, s{sT+1}")
e(f"s_add_u32 s{sT}, s{sT}, {64*128}")
e(f"s_and_b32 s{sT+1}, s{sLW2}, 1")
e(f"s_mul_i32 s{sT+3}, s{sT+1}, {8*9216}")
e(f"s_add_u32 s{sT}, s{sT}, s{sT+3}")
e(f"s_lshl_b32 s{sT+3}, s{sT+1}, 10")
e(f"s_lshr_b32 s{sT+6}, s{sLW2}, 1")
e(f"s_mul_i32 s{sT+6}, s{sT+6}, 10240")
e(f"s_add_u32 s{sT+3}, s{sT+3}, s{sT+6}")
e(f"s_add_u32 m0, s{sT+3}, {GATE}")
for n in range(5):
    if n:
        e("s_add_u32 m0, m0, 2048")
        e(f"s_add_u32 s{sT}, s{sT}, {16*9216}")
    if n == 4:
        e(f"s_cmp_eq_u32 s{sT+1}, 1")
        e(f"s_cselect_b32 s{sT}, {BIGOFF}, s{sT}")
    if n == 0: e("s_nop 0")
    e(f"buffer_load_dwordx4 v2, {s_(SW,4)}, s{sT} offen nt lds")
e("s_waitcnt vmcnt(5)")
e("s_barrier")
e("s_waitcnt vmcnt(0)")
e("s_barrier")
e("s_branch L_s_done")

lab("L_s_ctl")
c("---- S control waves (0..3) ----")
e(f"s_cmp_lt_u32 s{sWAVE}, 2")
e("s_cbranch_scc0 L_s_pf")
e(f"s_mul_i32 s{sT}, s{sWAVE}, {18*64}")
e(f"v_add_u32 v2, s{sT}, v1")
for n in range(18):
    if n: e("v_add_u32 v2, 64, v2")
    divmod_const(3, 4, 2, 72, 2303, sT)
    e("v_bfe_u32 v5, v3, 1, 3")
    e("v_xor_b32 v4, v4, v5")
    e("v_mul_u32_u24 v3, 1152, v3")
    e(f"v_lshl_add_u32 v{64+n}, v4, 4, v3")
    if n == 2:
        kernargs_ready()
        e(f"s_mul_i32 s{sT+3}, s{sS}, {32*1152}")
        e(f"s_mul_i32 m0, s{sWAVE}, 18432")
        for k in range(3):
            if k: e("s_add_u32 m0, m0, 1024")
            e("s_nop 0")
            e(f"buffer_load_dwordx4 v{64+k}, {s_(SX,4)}, s{sT+3} offen lds")
    if n > 2:
        e("s_add_u32 m0, m0, 1024")
        e("s_nop 0")
        e(f"buffer_load_dwordx4 v{64+n}, {s_(SX,4)}, s{sT+3} offen lds")
e("v_lshlrev_b32 v3, 4, v1")
for k, p in enumerate((pWR, pGW)):
    srd(SW, p, 1152)
    e(f"s_mov_b32 m0, {WV + 2048*k}")
    e("s_nop 0")
    e(f"buffer_load_dwordx4 v3, {s_(SW,4)}, 0 offen lds")
    e(f"buffer_load_dwordx4 v3, {s_(SW,4)}, 0 offen offset:1024 lds")
e("s_branch L_s_nopf")
lab("L_s_pf")
e(f"s_getpc_b64 {s_(sT+1,2)}")
lab("L_pc")
e(f"s_sub_u32 s{sT+1}, s{sT+1}, L_pc-{NAME}_kernel")
e(f"s_subb_u32 s{sT+2}, s{sT+2}, 0")
e(f"s_sub_u32 s{sT}, s{sWAVE}, 2")
e(f"s_lshl_b32 s{sT}, s{sT}, 6")
e(f"v_add_u32 v2, s{sT}, v1")
e("v_lshlrev_b32 v2, 7, v2")
for n in range(2):
    e(f"v_min_u32 v3, L_end-{NAME}_kernel, v2")
    e(f"global_load_dword v4, v3, {s_(sT+1,2)}")
    e("v_add_u32 v2, 16384, v2")
kernargs_ready()
lab("L_s_nopf")
late_srds()
tag_issue(17, 18)
e("v_and_b32 v10, 15, v1")
e("v_lshrrev_b32 v11, 4, v1")
e("v_and_b32 v2, 1, v10")
e("v_lshlrev_b32 v2, 11, v2")
e("v_lshl_add_u32 v2, v11, 4, v2")
e(f"v_add_u32 v2, {WV}, v2")
e(f"s_lshl_b32 s{sT}, s{sWAVE}, 4")
e(f"v_add_u32 v3, s{sT}, v10")
e("v_mul_u32_u24 v3, 1152, v3")
e("v_lshrrev_b32 v4, 1, v10")
e("v_xor_b32 v4, v4, v11")
e("v_xor_b32 v5, 4, v4")
e("v_lshl_add_u32 v4, v4, 4, v3")
e("v_lshl_add_u32 v5, v5, 4, v3")
e("v_lshrrev_b32 v6, 2, v1")
e("v_and_b32 v7, 6, v6")
e("v_bfe_u32 v8, v1, 1, 1")
e(f"s_lshl_b32 s{sT}, s{sWAVE}, 1")
e(f"v_add_u32 v8, s{sT}, v8")
e("v_xor_b32 v7, v7, v8")
e("v_and_b32 v8, 1, v1")
e("v_lshlrev_b32 v8, 3, v8")
e("v_lshl_add_u32 v7, v7, 4, v8")
e("v_and_b32 v9, 7, v6")
e("v_lshl_add_u32 v9, v9, 7, v7")
e("v_lshl_add_u32 v6, v6, 7, v7")
e("v_lshlrev_b32 v7, 3, v11")
e(f"v_add_u32 v7, {XS}, v7")
e("v_subrev_u32 v8, 2, v11")
e("v_ashrrev_i32 v8, 31, v8")
e("s_waitcnt vmcnt(0)")
tag_check(17, 18)
e(f"v_mov_b32 v17, s{sTAG}")
stamp(1)
e(f"s_cmp_lt_u32 s{sWAVE}, 2")
e("s_cbranch_scc0 L_s_nort")
for ks in range(18):
    e(f"ds_read_b128 {v(64+8*ks,4)}, v2 offset:{ks*64}")
    e(f"ds_read_b128 {v(68+8*ks,4)}, v{4+(ks&1)} offset:{(ks>>1)*128}")
    if ks % 6 == 5:
        e("s_waitcnt lgkmcnt(0)")
        for k2 in range(ks-5, ks+1):
            e(f"v_mfma_f32_16x16x32_bf16 v[20:23], {v(64+8*k2,4)}, {v(68+8*k2,4)}, {'0' if k2 == 0 else 'v[20:23]'}")
e(f"s_lshl_b32 s{sT}, s{sS}, 5")
e(f"s_lshl_b32 s{sT+1}, s{sWAVE}, 4")
e(f"s_add_u32 s{sT}, s{sT}, s{sT+1}")
e(f"v_add_u32 v24, s{sT}, v10")
e("s_nop 4")
e("v_cvt_pk_bf16_f32 v20, v20, v20")
e("v_lshrrev_b32 v20, 16, v20")
e("v_bfe_i32 v22, v20, 15, 1")
e("v_and_b32 v22, 0x7fff, v22")
e("v_xor_b32 v20, 0x8000, v20")
e("v_xor_b32 v20, v20, v22")
e("v_sub_u32 v22, 2047, v24")
e("v_lshl_add_u32 v20, v20, 16, v22")
bf16r(21)
sigmoid(26, 21)
bf16r(26)
e("v_mov_b32 v27, v17")
e("v_lshlrev_b32 v24, 3, v24")
row_max_u32(20)
e("v_mov_b32 v21, v17")
e(f"s_lshr_b32 s{sT}, s{sT}, 1")
e(f"s_add_u32 s{sT}, s{sT}, {CAND}")
e(f"s_mov_b32 s{sT+1}, {GG}")
e("s_mov_b64 exec, 1")
e(f"buffer_store_dwordx2 v[20:21], v18, {s_(SWS,4)}, s{sT} offen sc1")
e("s_mov_b64 exec, 0xffff")
e(f"buffer_store_dwordx2 v[26:27], v24, {s_(SWS,4)}, s{sT+1} offen sc1")
e("s_mov_b64 exec, -1")
lab("L_s_nort")
e("s_barrier")
e(f"s_cmp_eq_u32 s{sWAVE}, 0")
e("s_cbranch_scc0 L_s_nocand")
cand_issue(20, 24)
e("s_waitcnt vmcnt(0)")
cand_check(20, 24, 17)
e(f"s_mul_i32 s{sT}, s{sIDX}, 1152")
e(f"s_mov_b32 m0, {XS}")
e("s_nop 0")
e(f"buffer_load_dwordx4 v24, {s_(SX,4)}, s{sT} offen lds")
e(f"buffer_load_dwordx4 v24, {s_(SX,4)}, s{sT} offen offset:1024 lds")
e("s_waitcnt vmcnt(0)")
lab("L_s_nocand")
stamp(2)
e("s_barrier")
stamp(3)
XF = 64
for ks in range(18):
    e(f"ds_read_b64 {v(XF+4*ks,2)}, v7 offset:{ks*64}")
    e(f"ds_read_b64 {v(XF+4*ks+2,2)}, v7 offset:{ks*64+32}")
    if ks % 6 == 5: e("s_waitcnt lgkmcnt(0)")
WF = 140
def gemv(dst, steps):
    for g0 in range(0, len(steps), 6):
        grp = steps[g0:g0+6]
        for i, (ar, off) in enumerate(grp):
            e(f"ds_read_b64_tr_b16 {v(WF+4*i,2)}, v{ar} offset:{off}")
            e(f"ds_read_b64_tr_b16 {v(WF+4*i+2,2)}, v{ar} offset:{off+2048}")
        e("s_waitcnt lgkmcnt(0)")
        for i in range(len(grp)):
            ks = g0 + i
            e(f"v_mfma_f32_16x16x32_bf16 {v(dst,4)}, {v(WF+4*i,4)}, {v(XF+4*ks,4)}, {'0' if ks == 0 else v(dst,4)}")
e(f"v_add_u32 v12, {GATE}, v6")
e(f"v_add_u32 v13, {GATE+36864}, v6")
gemv(20, [(12, ks*4096) if ks < 9 else (13, (ks-9)*4096) for ks in range(18)])
e("s_barrier")
e(f"v_add_u32 v12, {UPA}, v6")
e("s_barrier")
gemv(24, [(12, ks*4096) if ks < 11 else (6, UPB + (ks-11)*4096) for ks in range(18)])
e(f"s_and_b32 s{sT}, s{sS}, 7")
e(f"s_mul_i32 s{sT}, s{sT}, 144")
e(f"v_add_u32 v7, s{sT}, v7")
for ks in range(2):
    e(f"ds_read_b64 {v(XF+4*ks,2)}, v7 offset:{ks*64}")
    e(f"ds_read_b64 {v(XF+4*ks+2,2)}, v7 offset:{ks*64+32}")
e(f"ds_read_b64 {v(XF+8,2)}, v7 offset:128")
e(f"v_mov_b32 v{XF+10}, 0")
e(f"v_mov_b32 v{XF+11}, 0")
for r in range(4):
    bf16r(20+r)
    bf16r(24+r)
    sigmoid(28, 20+r)
    e(f"v_mul_f32 v{20+r}, v{20+r}, v28")
    bf16r(20+r)
    e(f"v_mul_f32 v{20+r}, v{20+r}, v{24+r}")
e("v_cvt_pk_bf16_f32 v20, v20, v21")
e("v_cvt_pk_bf16_f32 v21, v22, v23")
e(f"s_lshl_b32 s{sT}, s{sWAVE}, 5")
e(f"s_add_u32 s{sT}, s{sT}, {HS}")
e(f"v_lshl_add_u32 v22, v11, 3, s{sT}")
e("s_waitcnt lgkmcnt(0)")
e(f"v_and_b32 v{XF+8}, v8, v{XF+8}")
e(f"v_and_b32 v{XF+9}, v8, v{XF+9}")
e("s_barrier")
e("ds_write_b64 v22, v[20:21]")
e(f"v_add_u32 v12, {GATE}, v6")
e(f"v_add_u32 v13, {GATE+8192}, v9")
for m in range(2):
    o = m * 10240
    e(f"ds_read_b64_tr_b16 {v(WF+12*m,2)}, v12 offset:{o}")
    e(f"ds_read_b64_tr_b16 {v(WF+12*m+2,2)}, v12 offset:{o+2048}")
    e(f"ds_read_b64_tr_b16 {v(WF+12*m+4,2)}, v12 offset:{o+4096}")
    e(f"ds_read_b64_tr_b16 {v(WF+12*m+6,2)}, v12 offset:{o+6144}")
    e(f"ds_read_b64_tr_b16 {v(WF+12*m+8,2)}, v13 offset:{o}")
    e(f"ds_read_b64_tr_b16 {v(WF+12*m+10,2)}, v13 offset:{o}")
e("s_waitcnt lgkmcnt(0)")
for ks in range(3):
    for m in range(2):
        d = 24 + 4*m
        e(f"v_mfma_f32_16x16x32_bf16 {v(d,4)}, {v(WF+12*m+4*ks,4)}, {v(XF+4*ks,4)}, {'0' if ks == 0 else v(d,4)}")
e(f"s_lshl_b32 s{sT}, s{sS}, 10")
e(f"s_lshl_b32 s{sT+1}, s{sWAVE}, 7")
e(f"s_add_u32 s{sT}, s{sT}, s{sT+1}")
e(f"s_add_u32 s{sT}, s{sT}, {PP}")
e("v_lshlrev_b32 v22, 5, v11")
e("v_cmp_eq_u32 vcc, 0, v10")
e("s_nop 2")
for m in range(2):
    for hf in range(2):
        R = 32 + 4*(2*m+hf)
        e(f"v_mov_b32 v{R}, v{24+4*m+2*hf}")
        e(f"v_mov_b32 v{R+1}, v17")
        e(f"v_mov_b32 v{R+2}, v{24+4*m+2*hf+1}")
        e(f"v_mov_b32 v{R+3}, v17")
e("s_mov_b64 exec, vcc")
for m in range(2):
    for hf in range(2):
        R = 32 + 4*(2*m+hf)
        e(f"buffer_store_dwordx4 {v(R,4)}, v22, {s_(SWS,4)}, s{sT} offen offset:{512*m+16*hf} sc1")
e("s_mov_b64 exec, -1")
lab("L_s_done")
e("s_waitcnt lgkmcnt(0)")
e("s_barrier")
stamp(4)
e("v_lshrrev_b32 v220, 3, v1")
e("v_lshlrev_b32 v220, 10, v220")
e("v_bfe_u32 v2, v1, 2, 1")
e("v_lshl_add_u32 v220, v2, 9, v220")
e("v_and_b32 v2, 3, v1")
e("v_lshl_add_u32 v220, v2, 4, v220")
e(f"s_lshr_b32 s{sT}, s{sS}, 3")
e(f"s_lshl_b32 s{sT}, s{sT}, 13")
e(f"s_and_b32 s{sT+1}, s{sS}, 7")
e(f"s_lshl_b32 s{sT+1}, s{sT+1}, 6")
e(f"s_add_u32 s{sT}, s{sT}, s{sT+1}")
e(f"s_add_u32 s{sT}, s{sT}, {PP}")
e(f"v_add_u32 v220, s{sT}, v220")
divmod_const(2, 3, 1, 9, 63, sT)
e(f"s_mul_i32 s{sT}, s{sWAVE}, 144")
e(f"v_lshl_add_u32 v3, v3, 4, s{sT}")
e(f"v_lshlrev_b32 v221, 1, v2")
e(f"s_lshl_b32 s{sT+1}, s{sS}, 6")
e(f"s_mul_i32 s{sT+2}, s{sS}, 56")
e(f"s_sub_u32 s{sT+2}, 4032, s{sT+2}")
e("v_subrev_u32 v6, 7, v2")
e("v_ashrrev_i32 v6, 31, v6")
for k, n in enumerate((0, 9, 10)):
    e(f"v_add_u32 v4, {7*n}, v2")
    e("v_subrev_u32 v5, 64, v4")
    e("v_ashrrev_i32 v5, 31, v5")
    e(f"v_bfi_b32 v5, v5, 0, s{sT+2}")
    e(f"v_add3_u32 v5, v5, v4, s{sT+1}")
    e("v_mul_u32_u24 v5, 1152, v5")
    e("v_add_u32 v5, v5, v3")
    e("v_subrev_u32 v4, 72, v4")
    e("v_ashrrev_i32 v4, 31, v4")
    e("v_and_b32 v4, v4, v6")
    e(f"v_bfi_b32 v{156+k}, v4, v5, 2.0")
tag_issue(17, 18)
e(f"buffer_load_dwordx4 v[216:219], v220, {s_(SWS,4)}, 0 offen sc1")
e("s_branch L_p2s")

vQ, vL16, vKA, vKX, vVA, vHM, vQX, vOX = 2, 3, 4, 5, 6, 7, 8, 9
Q1, Q2, K1, K2, VF, PB, MX = 20, 24, 28, 32, 36, 44, 52
SB0, SB1, OA, M8, M0, BV = 64, 80, 96, 112, 128, 144
sOQ, sOK, sOKX, sBS = sT+10, sT+11, sT+12, sT+13
def SBUF(d): return SB0 if d % 2 == 0 else SB1

def bulk_wo():
    srd(SW, pWO, 576 * 1152)
    e(f"s_mul_i32 s{sBS}, s{sCS}, 144")
    e(f"s_lshl_b32 s{sT}, s{sWAVE}, 6")
    e(f"v_add_u32 v10, s{sT}, v1")
    for n in range(12):
        if n: e("v_add_u32 v10, 512, v10")
        divmod_const(11, 12, 10, 10, 6143, sT)
        e("v_mul_u32_u24 v11, 1152, v11")
        e(f"v_lshl_add_u32 v{BV+n}, v12, 4, v11")

def bulk_issue(flags=""):
    e(f"s_lshl_b32 s{sT}, s{sWAVE}, 10")
    e(f"s_add_u32 m0, s{sT}, {BULK}")
    for n in range(12):
        if n: e("s_add_u32 m0, m0, 8192")
        e("s_nop 0")
        e(f"buffer_load_dwordx4 v{BV+n}, {s_(SW,4)}, s{sBS} offen {flags}lds")

lab("L_p2")
for k in range(3): e(f"v_mov_b32 v{156+k}, 2.0")
lab("L_p2s")
e(f"s_and_b32 s{sT}, s{sSLOT}, 3")
e(f"s_lshl_b32 s{sH}, s{sXCD}, 2")
e(f"s_add_u32 s{sH}, s{sH}, s{sT}")
e(f"s_lshr_b32 s{sCS}, s{sSLOT}, 2")
e(f"s_add_u32 s{sJ}, s{sCS}, 1")
e(f"s_and_b32 s{sJ}, s{sJ}, 7")
e(f"s_sub_u32 s{sI}, 11, s{sWAVE}")
e(f"s_cmp_lt_u32 s{sWAVE}, 4")
e(f"s_cselect_b32 s{sI}, s{sWAVE}, s{sI}")
e(f"s_lshl_b32 s{sTB}, s{sT}, 6")
e(f"s_and_b32 s{sT}, s{sXCD}, 3")
e(f"s_lshl_b32 s{sT}, s{sT}, 9")
e(f"s_add_u32 s{sTB}, s{sTB}, s{sT}")
e(f"s_lshr_b32 s{sT}, s{sXCD}, 2")
e(f"s_lshl_b32 s{sT}, s{sT}, 8")
e(f"s_add_u32 s{sTB}, s{sTB}, s{sT}")
e(f"s_sub_u32 s{sDMIN}, 8, s{sI}")
e(f"s_cmp_eq_u32 s{sJ}, 0")
e(f"s_cselect_b32 s{sDMIN}, s{sDMIN}, 0")
e(f"s_lshl_b32 s{sT+2}, s{sJ}, 1")
e(f"s_lshr_b32 s{sT+3}, s{sWAVE}, 1")
e(f"s_add_u32 s{sT+3}, s{sT+3}, s{sT+2}")
e(f"s_sub_u32 s{sT+3}, s{sT+3}, 2")
e(f"s_lshl_b32 s{sT+6}, s{sJ}, 12")
e(f"s_lshl_b32 s{sT+7}, s{sI}, 9")
e(f"s_add_u32 s{sOQ}, s{sT+6}, s{sT+7}")
e(f"s_lshl_b32 s{sT+7}, s{sWAVE}, 10")
e(f"s_add_u32 s{sT+6}, s{sT+6}, s{sT+7}")
e(f"s_sub_u32 s{sT+6}, s{sT+6}, 4096")
e(f"s_lshl_b32 s{sT+7}, s{sH}, 16")
e(f"s_add_u32 s{sOK}, s{sT+6}, s{sT+7}")
e(f"s_add_u32 s{sOK}, s{sOK}, {QKV + 32*65536}")
e(f"s_lshr_b32 s{sT+8}, s{sH}, 1")
e(f"s_lshl_b32 s{sT+8}, s{sT+8}, 15")
e(f"s_add_u32 s{sOKX}, s{sT+6}, s{sT+8}")
e(f"s_add_u32 s{sOKX}, s{sOKX}, {XP + 16*32768}")
e(f"s_cmp_lt_i32 s{sT+3}, 0")
e(f"s_cselect_b32 s{sOK}, {BIGOFF}, s{sOK}")
e(f"s_cselect_b32 s{sOKX}, {BIGOFF}, s{sOKX}")
e("v_and_b32 v10, 31, v1")
e("v_lshrrev_b32 v11, 5, v1")
e(f"v_lshlrev_b32 v{vL16}, 4, v1")
e(f"v_lshlrev_b32 v{vQ}, 15, v11")
e(f"v_lshl_add_u32 v{vQ}, v10, 4, v{vQ}")
e(f"v_lshlrev_b32 v{vKA}, 13, v11")
e(f"v_lshl_add_u32 v{vKA}, v10, 4, v{vKA}")
e(f"s_lshl_b32 s{sT}, s{sI}, 9")
e(f"v_add_u32 v{vKA}, s{sT}, v{vKA}")
e(f"s_and_b32 s{sT+2}, s{sH}, 1")
e(f"s_lshl_b32 s{sT+2}, s{sT+2}, 3")
e(f"s_add_u32 s{sT+3}, s{sT}, s{sT+2}")
e(f"s_add_u32 s{sT+4}, s{sT+3}, {KX}")
e(f"v_lshl_add_u32 v{vKX}, v10, 4, s{sT+4}")
e(f"v_subrev_u32 v{vHM}, 1, v11")
e(f"v_lshlrev_b32 v12, 30, v11")
e(f"v_lshl_add_u32 v{vQX}, v10, 4, v12")
e(f"v_lshl_add_u32 v{vOX}, v10, 2, v12")
e("v_bfe_u32 v12, v1, 2, 2")
e("v_lshl_add_u32 v12, v11, 2, v12")
e("v_lshlrev_b32 v12, 4, v12")
e("v_bfe_u32 v13, v1, 1, 1")
e(f"v_mul_u32_u24 v13, {VP1-VP0}, v13")
e("v_and_b32 v14, 1, v1")
e("v_lshl_add_u32 v13, v14, 3, v13")
e(f"v_add_u32 v13, {VP0}, v13")
e(f"s_add_u32 s{sT+4}, s{sT+2}, {VX}")
e(f"v_sub_u32 v14, s{sT+4}, v13")
e("v_bfe_u32 v15, v1, 4, 1")
e("v_mul_u32_u24 v14, v14, v15")
e("v_add_u32 v13, v13, v14")
e(f"v_add3_u32 v{vVA}, v12, v13, s{sT}")
e("v_lshlrev_b32 v12, 2, v11")
e("v_sub_u32 v12, v10, v12")
e(f"s_mov_b32 s{sT}, {NEGBIG}")
for r in range(16):
    ko = 8 * (r >> 2) + (r & 3)
    e(f"v_subrev_u32 v13, {ko}, v12")
    e(f"v_ashrrev_i32 v13, 31, v13")
    e(f"v_and_b32 v{M8+r}, s{sT}, v13")
    e(f"v_xor_b32 v{M0+r}, s{sT}, v{M8+r}")
for r in (Q2+1, Q2+2, Q2+3, K2+2, K2+3): e(f"v_mov_b32 v{r}, 0")
for r in range(16): e(f"v_mov_b32 v{OA+r}, 0")
bulk_wo()
srd(SA, pWD, 4608 * 1152)
e("s_waitcnt vmcnt(0)")
tag_check(17, 18)
e(f"v_mov_b32 v17, s{sTAG}")
e(f"s_cmp_eq_u32 s{sISS}, 0")
e("s_cbranch_scc0 L_noe1")
e("s_barrier")
lab("L_noe1")
stamp(5)
if STOP == "p1": e("s_branch L_fin")
e(f"s_cmp_eq_u32 s{sWAVE}, 7")
e("s_cbranch_scc0 L_poll1d")
e(f"s_cmp_eq_u32 s{sISS}, 0")
e("s_cbranch_scc0 L_nosend1")
e("s_mov_b64 exec, 0xffff")
e(f"buffer_store_dword v17, v19, {s_(SWS,4)}, 0 offen sc1")
lab("L_nosend1")
e("s_mov_b64 exec, 0x3ff")
e(f"s_lshl_b32 s{sT}, s{sJ}, 5")
e(f"s_add_u32 s{sT}, s{sT}, s{sH}")
e(f"s_lshl_b32 s{sT}, s{sT}, 7")
e(f"s_movk_i32 s{sT+3}, 0x3ff")
e(f"s_cmp_eq_u32 s{sJ}, 0")
e(f"s_cselect_b32 s{sT+3}, 0x333, s{sT+3}")
e("v_lshlrev_b32 v16, 2, v1")
e(f"s_mov_b32 s{sT+1}, 0")
lab("L_poll1")
e(f"buffer_load_dword v12, v16, {s_(SWS,4)}, s{sT} offen sc1")
e("s_waitcnt vmcnt(0)")
e("v_cmp_eq_u32 vcc, v17, v12")
e(f"s_and_b32 s{sT+4}, vcc_lo, s{sT+3}")
e(f"s_cmp_eq_u32 s{sT+4}, s{sT+3}")
e("s_cbranch_scc1 L_poll1x")
bound(sT+1)
e("s_branch L_poll1")
lab("L_poll1x")
e("s_mov_b64 exec, -1")
lab("L_poll1d")
e("s_barrier")
stamp(6)
e(f"s_lshl_b32 s{sT}, s{sH}, 16")
e(f"s_add_u32 s{sT}, s{sT}, s{sOQ}")
e(f"s_add_u32 s{sT}, s{sT}, {QKV}")
e(f"buffer_load_dwordx4 {v(Q1,4)}, v{vQ}, {s_(SWS,4)}, s{sT} offen sc1")
e(f"s_add_u32 s{sT}, s{sT+8}, s{sOQ}")
e(f"s_add_u32 s{sT}, s{sT}, s{sT+2}")
e(f"s_add_u32 s{sT}, s{sT}, {XP}")
e(f"buffer_load_dword v{Q2}, v{vQX}, {s_(SWS,4)}, s{sT} offen sc1")
e(f"s_lshl_b32 s{sT+1}, s{sWAVE}, 10")
for (ld, so, add) in ((KP0, sOK, 0), (KP1, sOK, 32768), (KX, sOKX, 0), (VP0, sOK, 32*65536), (VP1, sOK, 32*65536+32768), (VX, sOKX, 16*32768)):
    e(f"s_add_u32 m0, s{sT+1}, {ld}")
    e(f"s_add_u32 s{sT}, s{so}, {add}")
    e(f"buffer_load_dwordx4 v{vL16}, {s_(SWS,4)}, s{sT} offen sc1 lds")
bulk_issue()
DW = 160
e(f"s_mov_b32 s{sT}, 0")
for n in range(11):
    if 0 < n < 9: e(f"s_add_u32 s{sT}, s{sT}, {7*1152}")
    e(f"buffer_load_dwordx4 {v(DW+4*n,4)}, v{156 + max(0, n-8)}, {s_(SA,4)}, {'s%d' % sT if n < 9 else '0'} offen nt")
e("s_waitcnt vmcnt(26)")
e("s_barrier")
stamp(7)

def kread(d):
    e(f"ds_read_b128 {v(K1,4)}, v{vKA} offset:{d*512}")
    e(f"ds_read_b64 {v(K2,2)}, v{vKX} offset:{d*512}")
def qk(d):
    S = SBUF(d)
    cin = v(M8,16) if d == 8 else (v(M0,16) if d == 0 else "0")
    e(f"v_mfma_f32_32x32x16_bf16 {v(S,16)}, {v(K1,4)}, {v(Q1,4)}, {cin}")
    e(f"v_mfma_f32_32x32x16_bf16 {v(S,16)}, {v(K2,4)}, {v(Q2,4)}, {v(S,16)}")

c("pass 1: exact row max")
kread(8)
e(f"v_mov_b32 v{MX}, {NEGBIG}")
e(f"v_mov_b32 v{MX+1}, {NEGBIG}")
e("s_waitcnt lgkmcnt(0)")
qk(8)
kread(7)
e("s_nop 7")
for d in range(8, -1, -1):
    if d > 0:
        e("s_waitcnt lgkmcnt(0)")
        qk(d - 1)
        if d > 1: kread(d - 2)
        else: e("s_nop 1")
    else:
        e("s_nop 4")
    S = SBUF(d)
    for r in range(8):
        e(f"v_max3_f32 v{MX + (r & 1)}, v{MX + (r & 1)}, v{S+2*r}, v{S+2*r+1}")
    if d > 0:
        e(f"s_cmp_eq_u32 s{sDMIN}, {d}")
        e("s_cbranch_scc1 L_p1done")
lab("L_p1done")
e(f"v_max_f32 v{MX}, v{MX}, v{MX+1}")
e(f"s_waitcnt lgkmcnt(0)")
kread(8)
e(f"v_mov_b32 v{MX+1}, v{MX}")
e("s_nop 1")
e(f"v_permlane32_swap_b32 v{MX}, v{MX+1}")
e(f"v_max_f32 v{MX}, v{MX}, v{MX+1}")
e(f"v_sub_f32 v{MX}, 0, v{MX}")
e(f"v_cvt_pk_bf16_f32 v{MX+1}, v{MX}, v{MX}")
e(f"v_lshlrev_b32 v{MX+1}, 16, v{MX+1}")
e(f"v_sub_f32 v{MX+1}, v{MX}, v{MX+1}")
e(f"v_cvt_pk_bf16_f32 v{MX}, v{MX}, v{MX+1}")
e(f"v_and_b32 v{Q2+1}, v{vHM}, v{MX}")
stamp(8)
e("s_waitcnt vmcnt(23) lgkmcnt(0)")
e("s_barrier")
stamp(9)
c("pass 2")
qk(8)
kread(7)
e("s_nop 5")
for d in range(8, -1, -1):
    for u in range(2):
        for wh in range(2):
            e(f"ds_read_b64_tr_b16 {v(VF+4*u+2*wh,2)}, v{vVA} offset:{d*512+u*256+wh*128}")
    if d > 0:
        e("s_waitcnt lgkmcnt(4)")
        qk(d - 1)
        if d > 1: kread(d - 2)
    S = SBUF(d)
    nk = 2 if d > 1 else 0
    for u in range(2):
        b = S + 8*u
        seq = [f"v_exp_f32 v{b}, v{b}", f"v_exp_f32 v{b+1}, v{b+1}", f"v_exp_f32 v{b+2}, v{b+2}"]
        for k in range(4):
            seq.append(f"v_cvt_pk_bf16_f32 v{PB+4*u+k}, v{b+2*k}, v{b+2*k+1}")
            for r in (2*k+3, 2*k+4):
                if r < 8: seq.append(f"v_exp_f32 v{b+r}, v{b+r}")
        seq.insert(len(seq)-1, f"s_waitcnt lgkmcnt({nk})" if u == 0 else "s_nop 0")
        for x in seq: e(x)
        e("s_nop 1")
        e(f"v_mfma_f32_32x32x16_bf16 {v(OA,16)}, {v(VF+4*u,4)}, {v(PB+4*u,4)}, {v(OA,16)}")
    if d > 0:
        e(f"s_cmp_eq_u32 s{sDMIN}, {d}")
        e("s_cbranch_scc1 L_p2done")
lab("L_p2done")
e(f"s_lshl_b32 s{sT}, s{sH}, 16")
e(f"s_add_u32 s{sT}, s{sT}, s{sOQ}")
e(f"s_add_u32 s{sT}, s{sT}, {OM}")
e(f"s_lshl_b32 s{sT+1}, s{sH}, 13")
e(f"s_lshr_b32 s{sT+2}, s{sOQ}, 2")
e(f"s_add_u32 s{sT+1}, s{sT+1}, s{sT+2}")
e(f"s_add_u32 s{sT+1}, s{sT+1}, {OX}")
e("s_nop 4")
e(f"v_rcp_f32 v{MX}, v{OA+10}")
e("s_nop 0")
for r in range(10): e(f"v_mul_f32 v{OA+r}, v{MX}, v{OA+r}")
for k in range(5): e(f"v_cvt_pk_bf16_f32 v{PB+k}, v{OA+2*k}, v{OA+2*k+1}")
e(f"buffer_store_dwordx4 {v(PB,4)}, v{vQ}, {s_(SWS,4)}, s{sT} offen sc1")
e(f"buffer_store_dword v{PB+4}, v{vOX}, {s_(SWS,4)}, s{sT+1} offen sc1")
stamp(10)

vOM, vOXL, vWM, vWX, vRW, vT1, vT2, vX1, vX2, vF2, vG1, vG2 = 2, 3, 4, 5, 6, 7, 8, 9, 10, 11, 14, 15
X1, X2, G1, G2, CD = 20, 24, 28, 30, 32
OF, A3, WO = 36, 72, 92
sTT, sKH, sHASY = sT+10, sT+11, sT+12
e(f"s_and_b32 s{sTT}, s{sWAVE}, 3")
e(f"s_lshr_b32 s{sKH}, s{sWAVE}, 2")
e(f"s_mul_i32 s{sT}, s{sTB}, 1152")
e(f"s_mul_i32 s{sT+1}, s{sCS}, 144")
e(f"s_add_u32 s{sT}, s{sT}, s{sT+1}")
e(f"s_lshl_b32 s{sT+1}, s{sTB}, 3")
e(f"s_add_u32 s{sT+1}, s{sT+1}, {GG}")
e(f"s_cmp_eq_u32 s{sWAVE}, 7")
e(f"s_cselect_b32 s{sT+2}, 0, {BIGOFF}")
for (tau0, vt, vx, vg) in ((None, vT1, vX1, vG1), (512, vT2, vX2, vG2)):
    if tau0 is None: src = 0
    else:
        e(f"v_add_u32 v16, {tau0}, v1"); src = 16
    divmod_const(12, 13, src, 9, 575, sT)
    e(f"v_mul_u32_u24 v{vt}, {RP}, v12")
    e(f"v_lshl_add_u32 v{vt}, v13, 5, v{vt}")
    e(f"v_mul_u32_u24 v{vx}, 1152, v12")
    e(f"v_lshl_add_u32 v{vx}, v13, 4, v{vx}")
    e(f"v_add_u32 v{vx}, s{sT}, v{vx}")
    e(f"v_lshl_add_u32 v{vg}, v12, 3, s{sT+1}")
    if tau0 is not None:
        e(f"v_add_u32 v{vx}, s{sT+2}, v{vx}")
e(f"buffer_load_dwordx4 {v(X1,4)}, v{vX1}, {s_(SX,4)}, 0 offen")
e(f"buffer_load_dwordx4 {v(X2,4)}, v{vX2}, {s_(SX,4)}, 0 offen")
e(f"buffer_load_dwordx2 {v(G1,2)}, v{vG1}, {s_(SWS,4)}, 0 offen sc1")
e(f"buffer_load_dwordx2 {v(G2,2)}, v{vG2}, {s_(SWS,4)}, 0 offen sc1")
cand_issue(CD, 19)
e("v_and_b32 v12, 15, v1")
e("v_lshrrev_b32 v13, 4, v1")
e(f"v_lshlrev_b32 v{vOM}, 15, v13")
e(f"v_lshl_add_u32 v{vOXL}, v12, 2, v{vOM}")
e(f"v_lshl_add_u32 v{vOM}, v12, 4, v{vOM}")
e(f"s_lshl_b32 s{sT}, s{sTT}, 4")
e(f"v_add_u32 v{vRW}, s{sT}, v12")
e(f"v_mul_u32_u24 v{vRW}, {RP}, v{vRW}")
e(f"v_lshl_add_u32 v{vRW}, v13, 4, v{vRW}")
e(f"s_mul_i32 s{sT}, s{sKH}, {R1-R0}")
e(f"v_add_u32 v{vRW}, s{sT}, v{vRW}")
e(f"s_lshl_b32 s{sT+1}, s{sTT}, 4")
e(f"s_add_u32 s{sT+3}, s{sTB}, s{sT+1}")
e("v_bfe_u32 v16, v1, 2, 2")
e(f"v_mul_u32_u24 v{vWX}, 72, v13")
e(f"v_add3_u32 v{vWX}, v{vWX}, v16, 16")
e(f"v_lshrrev_b32 v{vWM}, 1, v13")
e(f"v_mul_u32_u24 v{vWM}, 20, v{vWM}")
e("v_and_b32 v13, 1, v13")
e("v_lshl_add_u32 v13, v13, 2, v16")
e(f"v_add_u32 v{vWM}, v{vWM}, v13")
e("v_and_b32 v13, 3, v1")
e("v_lshlrev_b32 v13, 3, v13")
e(f"s_mul_i32 s{sT}, s{sKH}, {288*160}")
e(f"s_add_u32 s{sT}, s{sT}, {BULK}")
e(f"v_add_u32 v13, s{sT}, v13")
e(f"s_movk_i32 s{sT}, 160")
e(f"v_mad_u32_u24 v{vWM}, v{vWM}, s{sT}, v13")
e(f"v_mad_u32_u24 v{vWX}, v{vWX}, s{sT}, v13")
e("s_waitcnt vmcnt(0)")
stamp(11)
e("s_barrier")
e(f"s_cmp_eq_u32 s{sWAVE}, 7")
e("s_cbranch_scc0 L_nosend2")
e(f"s_lshl_b32 s{sT}, s{sJ}, 12")
e(f"s_lshl_b32 s{sT+1}, s{sH}, 2")
e(f"s_add_u32 s{sT}, s{sT}, s{sT+1}")
e(f"s_add_u32 s{sT}, s{sT}, {F2}")
e(f"v_lshlrev_b32 v12, 7, v1")
e("s_mov_b64 exec, 0xffffffff")
e(f"buffer_store_dword v17, v12, {s_(SWS,4)}, s{sT} offen sc1")
e("s_mov_b64 exec, -1")
lab("L_nosend2")
cand_check(CD, 19, 17)
e(f"s_sub_u32 s{sHASY}, s{sIDX}, s{sTB}")
e(f"s_cmp_eq_u32 s{sISS}, 0")
e("s_cbranch_scc1 L_p3_main")

c("---- S workgroups: down projection of the routed token ----")
e(f"s_cmp_eq_u32 s{sWAVE}, 0")
e("s_cbranch_scc0 L_m2_nog")
e(f"s_mov_b32 s{sT+1}, 0")
lab("L_m2_poll")
e("v_xor_b32 v217, v17, v217")
e("v_xor_b32 v219, v17, v219")
e("v_or_b32 v217, v217, v219")
e("v_cmp_eq_u32 vcc, 0, v217")
e("s_cmp_eq_u64 vcc, -1")
e("s_cbranch_scc1 L_m2_got")
bound(sT+1)
e(f"buffer_load_dwordx4 v[216:219], v220, {s_(SWS,4)}, 0 offen sc1")
e("s_waitcnt vmcnt(0)")
e("s_branch L_m2_poll")
lab("L_m2_got")
for r in (216, 218):
    e("s_nop 1")
    e(f"v_add_f32_dpp v{r}, v{r}, v{r} row_ror:8 row_mask:0xf bank_mask:0xf")
    cross_rows("v_add_f32", r, 217)
    bf16r(r)
    e("s_nop 1")
    e(f"v_mov_b32_dpp v{r+1}, v{r} row_ror:12 row_mask:0xf bank_mask:0xf")
    sigmoid(44, r)
    e(f"v_mul_f32 v{r}, v{r}, v44")
    bf16r(r)
    e(f"v_mul_f32 v{r}, v{r}, v{r+1}")
e("v_cvt_pk_bf16_f32 v216, v216, v218")
e("v_subrev_u32 v217, 4, v1")
e("v_ashrrev_i32 v217, 31, v217")
e("v_and_b32 v216, v216, v217")
e(f"v_lshlrev_b32 v217, 2, v1")
e(f"v_add_u32 v217, {HS+128}, v217")
e("s_mov_b64 exec, 0xff")
e("ds_write_b32 v217, v216")
e("s_mov_b64 exec, -1")
e("s_waitcnt lgkmcnt(0)")
lab("L_m2_nog")
e("s_barrier")
e(f"v_add_u32 v221, {HS}, v221")
HV = 204
for n in range(11): e(f"ds_read_u16 v{HV+n}, v221 offset:{14*n}")
for i in range(8): e(f"v_mov_b32 v{40+i}, 0")
e("s_waitcnt lgkmcnt(0)")
for n in range(11):
    e(f"v_lshlrev_b32 v48, 16, v{HV+n}")
    for i in range(4):
        e(f"v_dot2_f32_bf16 v{40+2*i}, v{DW+4*n+i}, v{HV+n}, v{40+2*i}")
    for i in range(4):
        e(f"v_dot2_f32_bf16 v{41+2*i}, v{DW+4*n+i}, v48, v{41+2*i}")
e(f"s_lshl_b32 s{sT}, s{sWAVE}, 11")
e(f"v_lshl_add_u32 v48, v1, 5, s{sT}")
e(f"v_add_u32 v49, s{sT}, v19")
e("s_nop 0")
e("ds_write_b128 v48, v[40:43]")
e("ds_write_b128 v48, v[44:47] offset:16")
e("s_waitcnt lgkmcnt(0)")
for g7 in range(7): e(f"ds_read_b128 {v(72+4*g7,4)}, v49 offset:{288*g7}")
e(f"s_mul_i32 s{sT}, s{sRB}, 2304")
e(f"s_mul_i32 s{sT+1}, s{sWAVE}, 288")
e(f"s_add_u32 s{sT}, s{sT}, s{sT+1}")
e(f"s_add_u32 s{sT}, s{sT}, {YY}")
e("s_waitcnt lgkmcnt(0)")
for g7 in range(1, 7):
    for i in range(4): e(f"v_add_f32 v{72+i}, v{72+i}, v{72+4*g7+i}")
e("s_mov_b64 exec, 0x3ffff")
e(f"buffer_store_dwordx4 v[72:75], v19, {s_(SWS,4)}, s{sT} offen sc1")
e("s_mov_b64 exec, -1")
e("s_waitcnt vmcnt(0)")
e("s_barrier")
e(f"s_cmp_eq_u32 s{sWAVE}, 0")
e("s_cbranch_scc0 L_p3_main")
e(f"s_lshl_b32 s{sT}, s{sRB}, 2")
e(f"s_add_u32 s{sT}, s{sT}, {FY}")
e("v_lshlrev_b32 v12, 8, v1")
e("s_mov_b64 exec, 0xff")
e(f"buffer_store_dword v17, v12, {s_(SWS,4)}, s{sT} offen sc1")
e("s_mov_b64 exec, -1")

lab("L_p3_main")
stamp(12)
def wo_reads(F, ar, off, second):
    for t in range(5):
        e(f"ds_read_b64_tr_b16 {v(F+4*t,2)}, v{ar} offset:{off+32*t}")
        e(f"ds_read_b64_tr_b16 {v(F+4*t+2,2)}, v{ar} offset:{off+second+32*t}")
for sp in range(8):
    wo_reads(WO + 20*sp, vWM, 5760*sp, 1280)
e(f"s_cmp_eq_u32 s{sWAVE}, 7")
e("s_cbranch_scc0 L_poll2d")
e(f"s_lshr_b32 s{sT}, s{sTB}, 3")
e(f"s_add_u32 s{sT}, s{sT}, s{sCS}")
e(f"s_lshl_b32 s{sT}, s{sT}, 7")
e(f"s_add_u32 s{sT}, s{sT}, {F2}")
e("v_lshlrev_b32 v13, 2, v1")
e("s_mov_b64 exec, 0xffffffff")
e(f"s_mov_b32 s{sT+1}, 0")
lab("L_poll2")
e(f"buffer_load_dword v12, v13, {s_(SWS,4)}, s{sT} offen sc1")
e("s_waitcnt vmcnt(0)")
e("v_cmp_eq_u32 vcc, v17, v12")
e("s_cmp_eq_u32 vcc_lo, -1")
e("s_cbranch_scc1 L_poll2x")
bound(sT+1)
e("s_branch L_poll2")
lab("L_poll2x")
e("s_mov_b64 exec, -1")
lab("L_poll2d")
e("s_barrier")
stamp(13)
e(f"s_lshl_b32 s{sT}, s{sKH}, 20")
e(f"s_lshl_b32 s{sT+1}, s{sT+3}, 4")
e(f"s_add_u32 s{sT}, s{sT}, s{sT+1}")
e(f"s_add_u32 s{sT}, s{sT}, {OM}")
for sp in range(8):
    if sp: e(f"s_add_u32 s{sT}, s{sT}, 131072")
    e(f"buffer_load_dwordx4 {v(OF+4*sp,4)}, v{vOM}, {s_(SWS,4)}, s{sT} offen sc1")
e(f"s_lshl_b32 s{sT}, s{sKH}, 17")
e(f"s_lshl_b32 s{sT+1}, s{sT+3}, 2")
e(f"s_add_u32 s{sT}, s{sT}, s{sT+1}")
e(f"s_add_u32 s{sT}, s{sT}, {OX}")
for i in range(4):
    if i: e(f"s_add_u32 s{sT}, s{sT}, 8192")
    e(f"buffer_load_dword v{OF+32+i}, v{vOXL}, {s_(SWS,4)}, s{sT} offen sc1")
for sp in range(9):
    e(f"s_waitcnt vmcnt({11-sp if sp < 8 else 0}) lgkmcnt(0)")
    F = WO + 20*(sp % 8)
    for t in range(5):
        e(f"v_mfma_f32_16x16x32_bf16 {v(A3+4*t,4)}, {v(F+4*t,4)}, {v(OF+4*sp,4)}, {'0' if sp == 0 else v(A3+4*t,4)}")
    if sp == 0: wo_reads(WO, vWX, 0, 5760)
stamp(14)
e(f"s_cmp_lt_u32 s{sHASY}, 64")
e("s_cbranch_scc0 L_noy1")
c("gather the 64 partial y rows: wave w sums producers 8w..8w+7")
e(f"s_cmp_eq_u32 s{sWAVE}, 7")
e("s_cbranch_scc0 L_pollyd")
e(f"s_lshl_b32 s{sT}, s{sCS}, 8")
e(f"s_add_u32 s{sT}, s{sT}, {FY}")
e("v_lshlrev_b32 v12, 2, v1")
e(f"s_mov_b32 s{sT+1}, 0")
lab("L_polly")
e(f"buffer_load_dword v13, v12, {s_(SWS,4)}, s{sT} offen sc1")
e("s_waitcnt vmcnt(0)")
e("v_cmp_eq_u32 vcc, v17, v13")
e("s_cmp_eq_u64 vcc, -1")
e("s_cbranch_scc1 L_pollyd")
bound(sT+1)
e("s_branch L_polly")
lab("L_pollyd")
e("s_barrier")
e(f"s_mul_i32 s{sT}, s{sWAVE}, {8*2304}")
e(f"s_mul_i32 s{sT+1}, s{sCS}, 288")
e(f"s_add_u32 s{sT}, s{sT}, s{sT+1}")
e(f"s_add_u32 s{sT}, s{sT}, {YY}")
e("s_mov_b64 exec, 0x3ffff")
for p in range(8):
    if p: e(f"s_add_u32 s{sT}, s{sT}, 2304")
    e(f"buffer_load_dwordx4 {v(100+4*p,4)}, v19, {s_(SWS,4)}, s{sT} offen sc1")
e("s_waitcnt vmcnt(0)")
for p in range(1, 8):
    for i in range(4): e(f"v_add_f32 v{100+i}, v{100+i}, v{100+4*p+i}")
e(f"s_mul_i32 s{sT}, s{sWAVE}, 288")
e(f"s_add_u32 s{sT}, s{sT}, {YR}")
e(f"v_add_u32 v12, s{sT}, v19")
e("ds_write_b128 v12, v[100:103]")
e("s_mov_b64 exec, -1")
lab("L_noy1")
e("s_nop 4")
for t in range(5):
    e(f"ds_write_b128 v{vRW}, {v(A3+4*t,4)} offset:{64*t}")
e("s_waitcnt lgkmcnt(0)")
e("s_barrier")
stamp(15)

def unpack(d, p):
    e(f"v_lshlrev_b32 v{d}, 16, v{p}")
    e(f"v_and_b32 v{d+1}, 0xffff0000, v{p}")
def round8(B, T):
    for k in range(4): e(f"v_cvt_pk_bf16_f32 v{T+k}, v{B+2*k}, v{B+2*k+1}")
    for k in range(4): unpack(B+2*k, T+k)

def task(vt, vx, vg, X, G, nm):
    A, Bq, T = 40, 56, 64
    e(f"ds_read_b128 {v(A,4)}, v{vt} offset:{R0}")
    e(f"ds_read_b128 {v(A+4,4)}, v{vt} offset:{R0+16}")
    e(f"ds_read_b128 {v(A+8,4)}, v{vt} offset:{R1}")
    e(f"ds_read_b128 {v(A+12,4)}, v{vt} offset:{R1+16}")
    lp, done = ul("g"), ul("gd")
    e(f"s_mov_b32 s{sT}, 0")
    lab(lp)
    e(f"v_cmp_eq_u32 vcc, v17, v{G+1}")
    e("s_cmp_eq_u64 vcc, -1")
    e(f"s_cbranch_scc1 {done}")
    bound(sT)
    e(f"buffer_load_dwordx2 {v(G,2)}, v{vg}, {s_(SWS,4)}, 0 offen sc1")
    e("s_waitcnt vmcnt(0)")
    e(f"s_branch {lp}")
    lab(done)
    for k in range(4): unpack(Bq+2*k, X+k)
    e(f"v_sub_f32 v{G+1}, 1.0, v{G}")
    bf16r(G+1)
    e(f"s_cmp_lt_u32 s{sHASY}, 64")
    e(f"s_cbranch_scc0 L_noy2{nm}")
    e(f"v_subrev_u32 v68, {GG}, v{vg}")
    e(f"v_lshrrev_b32 v68, 3, v68")
    e(f"s_mul_i32 s{sT}, s{sHASY}, {RP}")
    e(f"v_subrev_u32 v69, s{sT}, v{vt}")
    e(f"v_and_b32 v69, 0x1e0, v69")
    for w in range(8):
        e(f"ds_read_b128 {v(100+8*w,4)}, v69 offset:{YR+288*w}")
        e(f"ds_read_b128 {v(104+8*w,4)}, v69 offset:{YR+288*w+16}")
        if w % 4 == 3: e("s_waitcnt lgkmcnt(0)")
    for w in range(1, 8):
        for i in range(8): e(f"v_add_f32 v{100+i}, v{100+i}, v{100+8*w+i}")
    round8(100, 110)
    e(f"s_lshr_b32 s{sT}, s{sKEY}, 16")
    e(f"s_bitcmp1_b32 s{sT}, 15")
    e(f"s_cselect_b32 s{sT+1}, 0x8000, 0xffff") if False else None
    e(f"s_cselect_b32 s{sT+1}, 0, 0x7fff")
    e(f"s_xor_b32 s{sT}, s{sT}, s{sT+1}")
    e(f"s_xor_b32 s{sT}, s{sT}, 0x8000")
    e(f"s_lshl_b32 s{sT}, s{sT}, 16")
    e(f"v_mov_b32 v108, s{sT}")
    sigmoid(109, 108)
    bf16r(109)
    for i in range(8): e(f"v_mul_f32 v{100+i}, v109, v{100+i}")
    round8(100, 110)
    for i in range(8): e(f"v_add_f32 v{100+i}, v{Bq+i}, v{100+i}")
    round8(100, 110)
    e(f"v_cmp_eq_u32 vcc, s{sIDX}, v68")
    e("s_nop 1")
    for i in range(8): e(f"v_cndmask_b32 v{Bq+i}, v{Bq+i}, v{100+i}, vcc")
    lab(f"L_noy2{nm}")
    e("s_waitcnt lgkmcnt(0)")
    for i in range(8): e(f"v_add_f32 v{A+i}, v{A+i}, v{A+8+i}")
    round8(A, T)
    for i in range(8): e(f"v_mul_f32 v{A+i}, v{G}, v{A+i}")
    for i in range(8): e(f"v_mul_f32 v{Bq+i}, v{G+1}, v{Bq+i}")
    round8(A, T)
    round8(Bq, T)
    for i in range(8): e(f"v_add_f32 v{A+i}, v{A+i}, v{Bq+i}")
    for k in range(4): e(f"v_cvt_pk_bf16_f32 v{T+k}, v{A+2*k}, v{A+2*k+1}")
    e(f"buffer_store_dwordx4 {v(T,4)}, v{vx}, {s_(SOUT,4)}, 0 offen")
task(vT1, vX1, vG1, X1, G1, "a")
e(f"s_cmp_eq_u32 s{sWAVE}, 7")
e("s_cbranch_scc0 L_fin")
task(vT2, vX2, vG2, X2, G2, "b")
lab("L_fin")
stamp(16)

if DBGT:
    e("v_lshlrev_b32 v2, 2, v1")
    e("s_mov_b64 exec, 0xfffe")
    e(f"global_atomic_umax v2, v255, {s_(pDBG,2)}")
elif PROF:
    e(f"s_lshl_b32 s{sT}, s2, 3")
    e(f"s_add_u32 s{sT}, s{sT}, s{sWAVE}")
    e(f"s_lshl_b32 s{sT}, s{sT}, 7")
    e(f"s_add_u32 s{sT}, s{sT}, {PROFB}")
    e("v_lshlrev_b32 v2, 2, v1")
    e("s_mov_b64 exec, 0xffffffff")
    e(f"buffer_store_dword v255, v2, {s_(SWS,4)}, s{sT} offen")
lab("L_end")
e("s_endpgm")

body = "\n".join(L)
hdr = open("cdna_kernels/" + NAME + ".s.ref").read().split("; Override launch")[0]
text = hdr + f"""; @launch grid=(256,1,1) block=(512,1,1) lds={LDS_TOTAL}
.amdgcn_target "amdgcn-amd-amdhsa--gfx950"
.text
.globl {NAME}_kernel
.p2align 8
.type {NAME}_kernel,@function
{body}
.section .rodata,"a"
.p2align 6
.amdhsa_kernel {NAME}_kernel
  .amdhsa_next_free_vgpr 256
  .amdhsa_next_free_sgpr 102
  .amdhsa_accum_offset 256
  .amdhsa_group_segment_fixed_size 0
  .amdhsa_kernarg_size 96
  .amdhsa_user_sgpr_count 2
  .amdhsa_user_sgpr_kernarg_segment_ptr 1
  .amdhsa_system_sgpr_workgroup_id_x 1
.end_amdhsa_kernel
"""
out = [a for a in sys.argv[1:] if not a.startswith("--")]
path = out[0] if out else "cdna_kernels/" + NAME + ".s"
open(path, "w").write(text)
errs = hazard.check(body)
print("\n".join(errs) if errs else "hazard check clean", file=sys.stderr)
```

```python
import sys, math, struct
import hazard

NAME = "gated_mix__sliding_block__moe_arch_mod__prompt"
DBGT = "--dbgt" in sys.argv
PROF = "--prof" in sys.argv or DBGT
NOLOAD = "--noload" in sys.argv
NOCOMP = "--nocomp" in sys.argv
NOMFMA = "--nomfma" in sys.argv
NOREAD = "--noread" in sys.argv
XNOSWZ = "--xnoswz" in sys.argv
NOX = "--nox" in sys.argv
NOW = "--now" in sys.argv
WAL = "--wal" in sys.argv
def opt(n, d=""):
    for a in sys.argv:
        if a.startswith(f"--{n}="): return a.split("=", 1)[1].replace("+", " ")
    return d
XF_, WF_ = opt("xf"), opt("wf")
NOS = "--nos" in sys.argv
ROT = opt("rot", "9")
STOP = None
for a in sys.argv:
    if a.startswith("--stop="): STOP = a.split("=")[1]

F1, F2, CAND, FY, GG, PP, YY = 0x0, 0x8000, 0x10000, 0x11000, 0x14000, 0x18000, 0x28000
QKV, XP, OM, OX = 0x100000, 0x700000, 0x880000, 0xA80000
PROFB = 0xB00000
WS_SIZE = 0xC00000
BIGOFF = 0x40000000
SPIN = 200000

SLOT = 34816
KP0, KP1, KX = 0, 8192, 16384
VB = 24576
VP0, VP1, VX = VB, VB + 8192 + 64, VB + 16384 + 128
BULK = 49408
R0, R1, YR = 0, 21504, 43008
RP = 336
CNT = 147968
LDS_TOTAL = 163840

def f32bits(x): return struct.unpack("<I", struct.pack("<f", x))[0]
QSCALE = f32bits(18 ** -0.5 * math.log2(math.e))
NEGBIG = f32bits(-1e30)
LOG2E = f32bits(math.log2(math.e))

L = []
def e(s): L.append("  " + s)
def lab(s): L.append(s + ":")
def c(s): L.append("  ; " + s)
def v(a, n=1): return f"v{a}" if n == 1 else f"v[{a}:{a+n-1}]"
def s_(a, n=1): return f"s{a}" if n == 1 else f"s[{a}:{a+n-1}]"
_uid = [0]
def ul(p):
    _uid[0] += 1
    return f"L_{p}_{_uid[0]}"

sWAVE, sXCD, sSLOT, sRB, sCB = 3, 4, 5, 6, 7
SX, SW, SWS, SOUT, SA, SB = 8, 12, 40, 44, 48, 52
pX, pWQKV, pWO, pWR, pWG, pWU, pWD, pGW, pOUT, pDBG, pWS = 16, 18, 20, 24, 26, 28, 30, 32, 34, 36, 38
sTAG = 56
sT = 57
sH, sJ, sI, sTB, sCS, sISS = 76, 77, 78, 79, 80, 81
sDMIN, sIDX, sKEY, sFLAG = 82, 83, 84, 85
sSTAMP = 86

PROBE = int(opt("probe", "-1"))
def stamp(k):
    if PROBE == k:
        e("s_memrealtime s[94:95]")
        e("s_waitcnt lgkmcnt(0)")
    if PROF:
        if DBGT:
            m = {1: 3, 2: 4, 5: 5, 6: 6, 7: 7, 10: 8, 12: 9, 13: 10, 15: 11, 16: 12}
            if k not in m: return
            k = m[k]
        e(f"s_memrealtime s[100:101]" if DBGT else f"s_memtime s[100:101]")
        e("s_waitcnt lgkmcnt(0)")
        e(f"v_writelane_b32 v255, s100, {k}")

def srd(base, ptr, size):
    e(f"s_mov_b32 s{base}, s{ptr}")
    e(f"s_mov_b32 s{base+1}, s{ptr+1}")
    e(f"s_mov_b32 s{base+2}, {size}")
    e(f"s_mov_b32 s{base+3}, 0x20000")

def divmod_const(dq, dr, src, d, maxv, tmp_s):
    for sh in range(16, 25):
        m = -(-(1 << sh) // d)
        if m < (1 << 24) and maxv * m < (1 << 32) and all((x * m) >> sh == x // d for x in range(maxv + 1)):
            break
    else:
        raise Exception("no magic")
    e(f"v_mul_u32_u24 v{dq}, {m}, v{src}")
    e(f"v_lshrrev_b32 v{dq}, {sh}, v{dq}")
    e(f"v_mul_u32_u24 v{dr}, {d}, v{dq}")
    e(f"v_sub_u32 v{dr}, v{src}, v{dr}")

def tag_issue(vt, vz):
    e(f"v_mov_b32 v{vz}, 0")
    e(f"global_load_dword v{vt}, v{vz}, {s_(pDBG,2)} sc1")

def tag_check(vt, vz):
    lp, done = ul("tag"), ul("tagd")
    e(f"s_mov_b32 s{sT}, 0")
    lab(lp)
    e(f"v_readfirstlane_b32 s{sTAG}, v{vt}")
    e(f"s_cmp_lg_u32 s{sTAG}, 0")
    e(f"s_cbranch_scc1 {done}")
    e(f"s_add_u32 s{sT}, s{sT}, 1")
    e(f"s_cmp_gt_u32 s{sT}, {SPIN}")
    e(f"s_cbranch_scc1 L_end")
    e(f"global_load_dword v{vt}, v{vz}, {s_(pDBG,2)} sc1")
    e("s_waitcnt vmcnt(0)")
    e(f"s_branch {lp}")
    lab(done)


def bound(cnt):
    e(f"s_add_u32 s{cnt}, s{cnt}, 1")
    e(f"s_cmp_gt_u32 s{cnt}, {SPIN}")
    e("s_cbranch_scc1 L_end")

def bf16r(r, t=None):
    e(f"v_cvt_pk_bf16_f32 v{r}, v{r}, v{r}")
    e(f"v_and_b32 v{r}, 0xffff0000, v{r}")

def sigmoid(d, x):
    e(f"v_mul_f32 v{d}, {(LOG2E ^ 0x80000000):#x}, v{x}")
    e(f"v_exp_f32 v{d}, v{d}")
    e("s_nop 0")
    e(f"v_add_f32 v{d}, 1.0, v{d}")
    e(f"v_rcp_f32 v{d}, v{d}")
    e("s_nop 0")

def row_max_u32(r):
    for k in (8, 4, 2, 1):
        e("s_nop 1")
        e(f"v_max_u32_dpp v{r}, v{r}, v{r} row_ror:{k} row_mask:0xf bank_mask:0xf")

def cross_rows(op, r, t):
    for sw in ("v_permlane16_swap_b32", "v_permlane32_swap_b32"):
        e(f"v_mov_b32 v{t}, v{r}")
        e("s_nop 1")
        e(f"{sw} v{r}, v{t}")
        e(f"{op} v{r}, v{r}, v{t}")

def cand_issue(R, va):
    e(f"v_lshlrev_b32 v{va}, 4, v1")
    e(f"s_mov_b32 s{sT}, {CAND}")
    e(f"buffer_load_dwordx4 {v(R,4)}, v{va}, {s_(SWS,4)}, s{sT} offen sc1")

def cand_check(R, va, vtag):
    lp, done = ul("cand"), ul("candd")
    e(f"s_mov_b32 s{sT+1}, 0")
    lab(lp)
    e(f"v_xor_b32 v{R+1}, v{vtag}, v{R+1}")
    e(f"v_xor_b32 v{R+3}, v{vtag}, v{R+3}")
    e(f"v_or_b32 v{R+1}, v{R+1}, v{R+3}")
    e(f"v_cmp_eq_u32 vcc, 0, v{R+1}")
    e("s_cmp_eq_u64 vcc, -1")
    e(f"s_cbranch_scc1 {done}")
    bound(sT+1)
    e(f"s_mov_b32 s{sT}, {CAND}")
    e(f"buffer_load_dwordx4 {v(R,4)}, v{va}, {s_(SWS,4)}, s{sT} offen sc1")
    e("s_waitcnt vmcnt(0)")
    e(f"s_branch {lp}")
    lab(done)
    e(f"v_max_u32 v{R}, v{R}, v{R+2}")
    row_max_u32(R)
    cross_rows("v_max_u32", R, R+1)
    e("s_nop 0")
    e(f"v_readfirstlane_b32 s{sKEY}, v{R}")
    e(f"s_and_b32 s{sIDX}, s{sKEY}, 0xffff")
    e(f"s_sub_u32 s{sIDX}, 2047, s{sIDX}")

lab(f"{NAME}_kernel")
e(f"s_load_dwordx16 s[16:31], s[0:1], 0")
e(f"s_load_dwordx8 s[32:39], s[0:1], 64")
if PROF:
    e(f"s_memrealtime s[98:99]")
    e(f"s_memtime s[96:97]")
    e("v_mov_b32 v255, 0")
if PROBE >= 0: e("s_mov_b32 s94, 0")
e("s_cmp_ge_u32 s2, 256")
e("s_cbranch_scc1 L_end")
e("v_lshrrev_b32 v2, 6, v0")
e("v_and_b32 v1, 63, v0")
e(f"v_readfirstlane_b32 s{sWAVE}, v2")
e(f"s_and_b32 s{sXCD}, s2, 7")
e(f"s_lshr_b32 s{sSLOT}, s2, 3")
e(f"s_and_b32 s{sRB}, s{sXCD}, 3")
e(f"s_lshl_b32 s{sRB}, s{sRB}, 2")
e(f"s_and_b32 s{sT}, s{sSLOT}, 3")
e(f"s_add_u32 s{sRB}, s{sRB}, s{sT}")
e(f"s_lshr_b32 s{sCB}, s{sXCD}, 2")
e(f"s_mul_i32 s{sCB}, s{sCB}, 6")
e(f"s_lshr_b32 s{sT+1}, s{sSLOT}, 2")
e(f"s_add_u32 s{sCB}, s{sCB}, s{sT+1}")
def kernargs_ready():
    e("s_waitcnt lgkmcnt(0)")
    if PROF:
        if DBGT:
            e("s_not_b32 s96, s98")
            e("v_writelane_b32 v255, s96, 1")
            e("v_writelane_b32 v255, s98, 2")
        else:
            e("v_writelane_b32 v255, s96, 0")
            e("v_writelane_b32 v255, s98, 31")
    srd(SX, pX, 2048 * 1152)
    srd(SW, pWQKV, 576 * 3456)
def late_srds():
    srd(SWS, pWS, WS_SIZE)
    srd(SOUT, pOUT, 2048 * 1152)
e(f"s_cmp_ge_u32 s{sSLOT}, 24")
e("s_cbranch_scc1 L_sphase")
e(f"s_cmp_lt_u32 s{sWAVE}, 4")
e("s_cbranch_scc1 L_compute")

c("---- P1 loader ----")
sLW, sSIG, sLS, sXB, sWB, sCNT = sT+2, sT+3, sT+4, sT+5, sT+6, sT+7
e(f"s_sub_u32 s{sLW}, s{sWAVE}, 4")
e("v_lshrrev_b32 v2, 3, v1")
e("v_mul_u32_u24 v2, 1152, v2")
e("v_lshrrev_b32 v3, 4, v1")
e(f"s_and_b32 s{sT+8}, s{sLW}, 1")
e(f"s_lshl_b32 s{sT+8}, s{sT+8}, 2")
e(f"v_add_u32 v3, s{sT+8}, v3")
e("v_and_b32 v4, 7, v1")
e("v_xor_b32 v3, v3, v4")
e("v_lshl_add_u32 v2, v3, 4, v2")
if ROT == "9":
    e(f"s_lshl_b32 s{sT}, s{sT}, 1")
    e(f"s_mul_i32 s{sSIG}, s{sT+1}, 3")
    e(f"s_add_u32 s{sSIG}, s{sSIG}, s{sT}")
    e(f"s_cmp_ge_u32 s{sT+1}, 3")
    e(f"s_addc_u32 s{sSIG}, s{sSIG}, 0")
    for _ in range(2):
        e(f"s_cmp_ge_u32 s{sSIG}, 9")
        e(f"s_cselect_b32 s{sT}, 9, 0")
        e(f"s_sub_u32 s{sSIG}, s{sSIG}, s{sT}")
elif ROT == "3":
    e(f"s_add_u32 s{sSIG}, s{sT}, s{sT+1}")
    for _ in range(2):
        e(f"s_cmp_ge_u32 s{sSIG}, 3")
        e(f"s_cselect_b32 s{sT}, 3, 0")
        e(f"s_sub_u32 s{sSIG}, s{sSIG}, s{sT}")
    e(f"s_mul_i32 s{sSIG}, s{sSIG}, 3")
elif ROT == "2":
    e(f"s_add_u32 s{sSIG}, s{sT}, s{sT+1}")
    e(f"s_and_b32 s{sSIG}, s{sSIG}, 1")
    e(f"s_lshl_b32 s{sSIG}, s{sSIG}, 2")
else:
    e(f"s_mov_b32 s{sSIG}, 0")
e(f"s_mul_i32 s{sXB}, s{sRB}, {128*1152}")
e(f"s_mul_i32 s{sT}, s{sLW}, 9216")
e(f"s_add_u32 s{sXB}, s{sXB}, s{sT}")
e(f"s_mul_i32 s{sWB}, s{sCB}, 288")
e(f"s_lshl_b32 s{sLS}, s{sLW}, 10")
e(f"s_lshl_b32 s{sT}, s{sLW}, 6")
e(f"v_add_u32 v5, s{sT}, v1")
for n in range(5):
    if n: e(f"v_add_u32 v5, 256, v5")
    divmod_const(6, 7, 5, 18, 64*20+63, sT)
    e(f"v_mul_u32_u24 v6, 3456, v6")
    e(f"v_lshl_add_u32 v{8+n}, v7, 4, v6")
e(f"s_mov_b32 s{sCNT}, 0")
e(f"v_mov_b32 v5, {CNT}")
e("v_mov_b32 v6, 0")
e("ds_write_b32 v5, v6")
kernargs_ready()
stamp(1)
lab("L_ld_loop")
e(f"s_lshl_b32 s{sT}, s{sSIG}, 7")
e(f"s_add_u32 s{sT}, s{sT}, s{sXB}")
e(f"s_mul_i32 s{sT+1}, s{sSIG}, {64*3456}")
e(f"s_add_u32 s{sT+1}, s{sT+1}, s{sWB}")
e(f"s_mov_b32 m0, s{sLS}")
for n in range(4):
    if n:
        e(f"s_add_u32 s{sT}, s{sT}, 36864")
        e(f"s_add_u32 m0, m0, 4096")
        e("s_nop 0")
    else:
        e("s_nop 0")
    if not NOLOAD and not NOX: e(f"buffer_load_dwordx4 v2, {s_(SX,4)}, s{sT} offen {XF_} lds")
for n in range(5):
    if n == 4:
        e(f"s_cmp_ge_u32 s{sLW}, 2")
        e("s_cbranch_scc1 L_ld_skip5")
    e(f"s_add_u32 m0, m0, 4096")
    e("s_nop 0")
    if not NOLOAD and not NOW: e(f"buffer_load_dwordx4 v{8+n}, {s_(SW,4)}, s{sT+1} offen {WF_} lds")
lab("L_ld_skip5")
e(f"s_add_u32 s{sSIG}, s{sSIG}, 1")
e(f"s_cmp_eq_u32 s{sSIG}, 9")
e(f"s_cselect_b32 s{sSIG}, 0, s{sSIG}")
e(f"s_add_u32 s{sLS}, s{sLS}, {SLOT}")
e(f"s_cmp_ge_u32 s{sLS}, {4*SLOT}")
e(f"s_cselect_b32 s{sT}, {4*SLOT}, 0")
e(f"s_sub_u32 s{sLS}, s{sLS}, s{sT}")
e(f"s_add_u32 s{sCNT}, s{sCNT}, 1")
e(f"s_cmp_lg_u32 s{sCNT}, 2")
e("s_cbranch_scc1 L_ld_n2")
stamp(2)
e("s_waitcnt vmcnt(8)")
e("s_barrier")
stamp(3)
lab("L_ld_n2")
e(f"s_cmp_lt_u32 s{sCNT}, 4")
e("s_cbranch_scc1 L_ld_loop")
lab("L_ld_nb0")
e(f"s_cmp_eq_u32 s{sCNT}, 9")
e("s_cbranch_scc1 L_ld_tail")
e("s_waitcnt vmcnt(16)")
e("s_barrier")
e("s_branch L_ld_loop")
lab("L_ld_tail")
srd(SW, pWO, 576 * 1152)
e(f"s_lshl_b32 s{sT}, s{sSLOT}, 2")
e(f"s_add_u32 s{sT}, s{sT}, s{sLW}")
e(f"s_mul_i32 s{sT}, s{sT}, {54*128}")
e("v_min_u32 v2, 53, v1")
e("v_lshlrev_b32 v2, 7, v2")
e(f"buffer_load_dword v60, v2, {s_(SW,4)}, s{sT} offen")
for n in (17, 9, 1):
    e(f"s_waitcnt vmcnt({n})")
    e("s_barrier")
stamp(4)
late_srds()
tag_issue(17, 18)
e(f"s_mov_b32 s{sISS}, 0")
e("v_lshrrev_b32 v2, 3, v1")
e(f"s_lshr_b32 s{sT}, s{sRB}, 1")
e(f"v_add_u32 v3, s{sT}, v2")
e(f"s_and_b32 s{sT}, s{sCB}, 3")
e(f"s_lshl_b32 s{sT}, s{sT}, 3")
e("v_and_b32 v4, 7, v1")
e(f"v_add_u32 v4, s{sT}, v4")
e("v_lshl_add_u32 v4, v3, 5, v4")
e("v_lshlrev_b32 v4, 7, v4")
e(f"s_lshr_b32 s{sT}, s{sCB}, 2")
e(f"s_lshl_b32 s{sT+1}, s{sT}, 4")
e(f"s_and_b32 s{sT+2}, s{sRB}, 1")
e(f"s_lshl_b32 s{sT+2}, s{sT+2}, 2")
e(f"s_add_u32 s{sT+1}, s{sT+1}, s{sT+2}")
e(f"v_add_u32 v4, s{sT+1}, v4")
e("v_lshlrev_b32 v5, 3, v2")
e("v_sub_u32 v4, v4, v5")
e(f"s_cmp_eq_u32 s{sT}, 0")
e(f"s_cselect_b32 s{sT}, 8, 0")
e(f"v_mul_u32_u24 v2, s{sT}, v2")
e("v_add_u32 v3, v3, v2")
e("v_subrev_u32 v3, 8, v3")
e("v_ashrrev_i32 v3, 31, v3")
e("v_bfi_b32 v19, v3, v4, 2.0")
e("s_barrier")
e("s_branch L_p2")

ACC = 64
def acc(tt, ct): return ACC + (ct * 4 + tt) * 4
def xf(p, tt): return 144 + 36 * p + 4 * tt
def wf(p, ct): return 160 + 36 * p + 4 * ct
XA = 2
WA = 6

def reads(p, ks, NT):
    wr = []
    for ct in range(NT):
        for wh in range(2):
            if ct < 4:
                off = ks * 9216 + wh * 4608 + 72 * (ct >> 1) + 40 * (ct & 1)
                wr.append(f"ds_read_b64_tr_b16 {v(wf(p,ct)+2*wh,2)}, v{WA+2*ks} offset:{off}")
            else:
                off = ks * 9216 + wh * 4608
                wr.append(f"ds_read_b64_tr_b16 {v(wf(p,ct)+2*wh,2)}, v{WA+2*ks+1} offset:{off}")
    xr = []
    for tt in range(4):
        for wh in range(2):
            xr.append(f"ds_read_b64 {v(xf(p,tt)+2*wh,2)}, v{XA+2*ks+wh} offset:{tt*2048}")
    return wr[:2] + xr + wr[2:]

def kstep(p, ks_next, NT, fill, late, late_at):
    rd = reads(1 - p, ks_next, NT)
    if NOREAD: rd = []
    rd = rd + list(fill)
    n = 0
    for ct in range(NT):
        for tt in range(4):
            a = acc(tt, ct)
            if not NOMFMA: e(f"v_mfma_f32_16x16x32_bf16 {v(a,4)}, {v(wf(p,ct),4)}, {v(xf(p,tt),4)}, {v(a,4)}")
            n += 1
            if n == late_at:
                assert not rd, rd
                for x in late: e(x)
            for _ in range(2):
                if rd: e(rd.pop(0))
    assert not rd

lab("L_compute")
c("---- P1 compute ----")
sMH, sNH, sDL, sIT, sSL = sT+2, sT+3, sT+4, sT+5, sT+6
e(f"s_and_b32 s{sMH}, s{sWAVE}, 1")
e(f"s_lshr_b32 s{sNH}, s{sWAVE}, 1")
e("v_and_b32 v18, 15, v1")
e("v_lshrrev_b32 v19, 4, v1")
e(f"s_lshl_b32 s{sT}, s{sMH}, 13")
e(f"v_lshl_add_u32 v10, v18, 7, s{sT}")
e("v_and_b32 v11, 1, v19")
e("v_lshl_add_u32 v10, v11, 3, v10")
e("v_lshrrev_b32 v11, 1, v19")
e("v_lshrrev_b32 v12, 1, v18")
e("v_xor_b32 v11, v11, v12")
for i in range(4):
    e(f"v_xor_b32 v12, {2*i}, v11")
    e(f"v_lshl_add_u32 v{XA+i}, v12, 4, v10")
e("v_lshrrev_b32 v10, 2, v1")
e("v_mul_u32_u24 v10, 288, v10")
e("v_and_b32 v11, 3, v1")
e(f"s_mul_i32 s{sT}, s{sNH}, 144")
e(f"s_add_u32 s{sT}, s{sT}, 16384")
e(f"v_lshl_add_u32 v{WA}, v11, 3, v10")
e(f"v_add_u32 v{WA}, s{sT}, v{WA}")
e("v_mul_u32_u24 v11, 72, v11")
e(f"v_add_u32 v{WA+1}, v10, v11")
e(f"v_add_u32 v{WA+1}, {16384+32}, v{WA+1}")
e(f"v_mov_b32 v{WA+2}, v{WA}")
e(f"v_mov_b32 v{WA+3}, v{WA+1}")
for r in range(ACC, ACC + 80): e(f"v_mov_b32 v{r}, 0")
VE, VXO = 13, 14
e(f"v_lshrrev_b32 v10, 1, v19")
e(f"v_lshlrev_b32 v{VE}, 15, v10")
e("v_and_b32 v10, 1, v19")
e(f"v_lshl_add_u32 v{VE}, v10, 8, v{VE}")
e(f"v_lshl_add_u32 v{VE}, v18, 4, v{VE}")
e(f"v_lshlrev_b32 v{VXO}, 15, v19")
e(f"v_lshl_add_u32 v{VXO}, v18, 4, v{VXO}")
kernargs_ready()
e(f"s_or_b32 s{sT}, s2, s{sWAVE}")
e(f"s_cmp_lg_u32 s{sT}, 0")
e("s_cbranch_scc1 L_notag")
e(f"s_memrealtime {s_(sT+9,2)}")
e("v_mov_b32 v21, 0")
e("s_waitcnt lgkmcnt(0)")
e(f"s_or_b32 s{sT+9}, s{sT+9}, 1")
e(f"v_mov_b32 v20, s{sT+9}")
e("s_mov_b64 exec, 1")
e(f"global_store_dword v21, v20, {s_(pDBG,2)} sc1")
e("s_mov_b64 exec, -1")
lab("L_notag")
late_srds()
e(f"s_mov_b32 s{sISS}, 0")
e(f"s_mov_b32 s{sIT}, 0")
e(f"s_mov_b32 s{sSL}, 0")
e(f"s_cmp_eq_u32 s{sNH}, 0")
e("s_cbranch_scc0 L_cmp4")
for NT in (5, 4):
    if NT == 4: lab("L_cmp4")
    e("s_barrier")
    stamp(1)
    for r in reads(0, 0, NT): e(r)
    e("s_waitcnt lgkmcnt(0)")
    lab(f"L_cloop{NT}")
    fillA = [f"s_add_u32 s{sSL}, s{sSL}, 1", f"s_cmp_eq_u32 s{sSL}, 4", f"s_cselect_b32 s{sSL}, 0, s{sSL}",
             f"s_cselect_b32 s{sDL}, {(-4*SLOT) & 0xffffffff}, 0", f"s_add_u32 s{sDL}, s{sDL}, {SLOT}"] + \
            [f"v_add_u32 v{r}, s{sDL}, v{r}" for r in (XA, XA+1, WA, WA+1)]
    kstep(0, 1, NT, fillA, ["s_waitcnt lgkmcnt(0)", "s_barrier"], 4*NT - 1)
    fillB = [f"v_add_u32 v{r}, s{sDL}, v{r}" for r in (XA+2, XA+3, WA+2, WA+3)] + \
            [f"s_add_u32 s{sIT}, s{sIT}, 1", f"s_cmp_lt_u32 s{sIT}, 9"]
    kstep(1, 0, NT, fillB, ["s_waitcnt lgkmcnt(0)"], 4*NT - 1)
    e(f"s_cbranch_scc1 L_cloop{NT}")
    if NT == 5: e("s_branch L_cepi")
lab("L_cepi")
stamp(2)
tag_issue(17, 18)
sSO, sSC = sT+7, sT+9
assert sSC % 2 == 0
e(f"s_lshl_b32 s{sT}, s{sRB}, 11")
e(f"s_lshl_b32 s{sT+1}, s{sMH}, 10")
e(f"s_add_u32 s{sT}, s{sT}, s{sT+1}")
e(f"s_lshl_b32 s{sSO}, s{sCB}, 3")
e(f"s_lshl_b32 s{sT+1}, s{sNH}, 2")
e(f"s_add_u32 s{sSO}, s{sSO}, s{sT+1}")
e(f"s_lshl_b32 s{sSO}, s{sSO}, 16")
e(f"s_add_u32 s{sSO}, s{sSO}, s{sT}")
e(f"s_add_u32 s{sSO}, s{sSO}, {QKV}")
e(f"s_lshl_b32 s{sT+8}, s{sCB}, 17")
e(f"s_add_u32 s{sT+8}, s{sT+8}, s{sT}")
e(f"s_add_u32 s{sT+8}, s{sT+8}, {XP}")
e(f"s_cmp_lt_u32 s{sCB}, 4")
e("s_cbranch_scc0 L_noscale")
e(f"s_mov_b32 s{sSC}, {QSCALE}")
e(f"s_mov_b32 s{sSC+1}, {QSCALE}")
for r in range(ACC, ACC + 80, 2):
    e(f"v_pk_mul_f32 {v(r,2)}, {v(r,2)}, {s_(sSC,2)}")
lab("L_noscale")
q = 0
for ct in range(4):
    for pr in range(2):
        R = 20 + 4 * (q % 4); q += 1
        a, b = acc(2*pr, ct), acc(2*pr+1, ct)
        e(f"v_cvt_pk_bf16_f32 v{R}, v{a}, v{a+1}")
        e(f"v_cvt_pk_bf16_f32 v{R+2}, v{b}, v{b+1}")
        e(f"v_cvt_pk_bf16_f32 v{R+1}, v{a+2}, v{a+3}")
        e(f"v_cvt_pk_bf16_f32 v{R+3}, v{b+2}, v{b+3}")
        e("s_nop 0")
        e(f"v_permlane16_swap_b32 v{R}, v{R+2}")
        e(f"v_permlane16_swap_b32 v{R+1}, v{R+3}")
        e(f"buffer_store_dwordx4 {v(R,4)}, v{VE}, {s_(SWS,4)}, s{sSO} offen offset:{512*pr} sc1")
    e(f"s_add_u32 s{sSO}, s{sSO}, 65536")
e(f"s_cmp_eq_u32 s{sNH}, 0")
e("s_cbranch_scc0 L_noextra")
for tt in range(4):
    R = 36 + 4 * tt
    a = acc(tt, 4)
    e(f"v_cvt_pk_bf16_f32 v{R}, v{a}, v{a+1}")
    e(f"v_mov_b32 v{R+1}, 0x3f803f80")
    e(f"v_cvt_pk_bf16_f32 v{R+2}, v{a+2}, v{a+3}")
    e(f"v_mov_b32 v{R+3}, 0x3f803f80")
    e(f"buffer_store_dwordx4 {v(R,4)}, v{VXO}, {s_(SWS,4)}, s{sT+8} offen offset:{256*tt} sc1")
lab("L_noextra")
stamp(3)
e("s_branch L_p2")

lab("L_sphase")
if NOS: e("s_branch L_end")
e(f"s_mov_b32 s{sISS}, 8")

XR, WV, XS, PS, HS = 0, 36864, 40960, 43008, 147712
sS = sRB
sTOK = sCB
WT, XV, AC = 64, 160, 20
def gemv_regs(n, younger):
    for i in range(n):
        e(f"ds_read_u16 v{XV+i}, v7 offset:{16*i}")
        if i == 11: e("s_waitcnt lgkmcnt(0)")
    for i in range(8): e(f"v_mov_b32 v{AC+i}, 0")
    e("s_waitcnt lgkmcnt(0)")
    for i in range(n):
        if i % 3 == 0: e(f"s_waitcnt vmcnt({max(0, n-3-i) + younger})")
        e(f"v_lshlrev_b32 v28, 16, v{XV+i}")
        for k in range(4): e(f"v_dot2_f32_bf16 v{AC+2*k}, v{WT+4*i+k}, v{XV+i}, v{AC+2*k}")
        for k in range(4): e(f"v_dot2_f32_bf16 v{AC+2*k+1}, v{WT+4*i+k}, v28, v{AC+2*k+1}")
    e("s_nop 2")
    for i in range(4): e(f"v_permlane32_swap_b32 v{AC+i}, v{AC+i+4}")
    for i in range(4): e(f"v_add_f32 v{AC+i}, v{AC+i}, v{AC+i+4}")
    e("s_nop 0")
    for i in range(2): e(f"v_permlane16_swap_b32 v{AC+i}, v{AC+i+2}")
    for i in range(2): e(f"v_add_f32 v{AC+i}, v{AC+i}, v{AC+i+2}")
    e("s_nop 0")
    for i in range(2): e(f"v_add_f32_dpp v{AC+i}, v{AC+i}, v{AC+i} row_ror:8 row_mask:0xf bank_mask:0xf")
def col_of_lane(d, t):
    e(f"v_and_b32 v{d}, 7, v1")
    e(f"v_lshrrev_b32 v{t}, 4, v1")
    e(f"v_lshlrev_b32 v{t}, 1, v{t}")
    e(f"v_lshl_add_u32 v{d}, v{d}, 3, v{t}")
e(f"s_lshl_b32 s{sS}, s{sXCD}, 3")
e(f"s_add_u32 s{sS}, s{sS}, s{sSLOT}")
e(f"s_sub_u32 s{sS}, s{sS}, 24")
e("v_lshrrev_b32 v7, 3, v1")
e("v_mul_u32_u24 v6, 9216, v7")
e("v_and_b32 v8, 7, v1")
e("v_lshl_add_u32 v6, v8, 4, v6")
e("v_lshlrev_b32 v7, 1, v7")
e(f"v_add_u32 v7, {XS}, v7")
e(f"s_cmp_lt_u32 s{sWAVE}, 2")
e("s_cbranch_scc1 L_s_ctl")
c("---- S streamers (waves 2..7): gate / up thirds of the own 64-column block -> registers ----")
e(f"s_sub_u32 s{sT+2}, s{sWAVE}, 2")
e(f"s_cmp_ge_u32 s{sT+2}, 3")
e(f"s_cselect_b32 s{sT+3}, 3, 0")
e(f"s_sub_u32 s{sT+3}, s{sT+2}, s{sT+3}")
e(f"s_mul_i32 s{sT}, s{sT+3}, 384")
e(f"v_add_u32 v7, s{sT}, v7")
e(f"s_mul_i32 s{sT+3}, s{sT+3}, {192*9216}")
e(f"s_lshl_b32 s{sT}, s{sS}, 7")
e(f"s_add_u32 s{sT+3}, s{sT+3}, s{sT}")
e(f"s_getpc_b64 {s_(sT+5,2)}")
lab("L_pc")
e(f"s_sub_u32 s{sT+5}, s{sT+5}, L_pc-{NAME}_kernel")
e(f"s_subb_u32 s{sT+6}, s{sT+6}, 0")
e(f"s_lshl_b32 s{sT}, s{sT+2}, 6")
e(f"v_add_u32 v2, s{sT}, v1")
e("v_lshlrev_b32 v2, 7, v2")
e(f"v_min_u32 v2, L_end-{NAME}_kernel, v2")
e(f"global_load_dword v60, v2, {s_(sT+5,2)}")
kernargs_ready()
e(f"s_cmp_ge_u32 s{sT+2}, 3")
e(f"s_cselect_b32 s{SW}, s{pWU}, s{pWG}")
e(f"s_cselect_b32 s{SW+1}, s{pWU+1}, s{pWG+1}")
e(f"s_mov_b32 s{SW+2}, {576*9216}")
e("s_barrier")
for n in range(24):
    if n: e(f"s_add_u32 s{sT+3}, s{sT+3}, {8*9216}")
    e(f"buffer_load_dwordx4 {v(WT+4*n,4)}, v6, {s_(SW,4)}, s{sT+3} offen nt")
late_srds()
col_of_lane(8, 9)
e(f"s_lshl_b32 s{sT}, s{sT+2}, 8")
e(f"s_add_u32 s{sT}, s{sT}, {PS}")
e(f"v_lshl_add_u32 v8, v8, 2, s{sT}")
stamp(1)
e("s_barrier")
stamp(2)
gemv_regs(24, 0)
e("ds_write_b64 v8, v[20:21]")
e("s_waitcnt lgkmcnt(0)")
stamp(3)
e("s_barrier")
e("s_branch L_s_done")

lab("L_s_ctl")
c("---- S control waves (0,1) ----")
e(f"s_and_b32 s{sT+3}, s{sXCD}, 3")
e(f"s_lshl_b32 s{sT+3}, s{sT+3}, 9")
e(f"s_lshr_b32 s{sT}, s{sXCD}, 2")
e(f"s_lshl_b32 s{sT}, s{sT}, 8")
e(f"s_add_u32 s{sT+3}, s{sT+3}, s{sT}")
e(f"s_and_b32 s{sT}, s{sS}, 7")
e(f"s_lshl_b32 s{sT}, s{sT}, 5")
e(f"s_add_u32 s{sT+3}, s{sT+3}, s{sT}")
e(f"s_lshl_b32 s{sT}, s{sWAVE}, 4")
e(f"s_add_u32 s{sTOK}, s{sT+3}, s{sT}")
e(f"s_mul_i32 s{sT+3}, s{sTOK}, 1152")
e("v_lshlrev_b32 v2, 4, v1")
e("v_lshrrev_b32 v3, 3, v1")
e("v_lshrrev_b32 v4, 4, v1")
e("v_and_b32 v5, 7, v1")
e("v_xor_b32 v4, v4, v5")
e("v_mul_u32_u24 v3, 1152, v3")
e("v_lshl_add_u32 v3, v4, 4, v3")
e("v_add_u32 v3, 1024, v3")
e("v_xor_b32 v4, 64, v3")
e(f"s_mul_i32 m0, s{sWAVE}, 18432")
kernargs_ready()
for n in range(16):
    e(f"v_xor_b32 v{64+n}, {16*n}, v2")
    if n:
        e("s_add_u32 m0, m0, 1024")
        e(f"s_add_u32 s{sT+3}, s{sT+3}, 1152")
    e(f"buffer_load_dwordx4 v{64+n}, {s_(SX,4)}, s{sT+3} offen lds")
e("s_add_u32 m0, m0, 1024")
e(f"s_sub_u32 s{sT+3}, s{sT+3}, {15*1152}")
e(f"buffer_load_dwordx4 v3, {s_(SX,4)}, s{sT+3} offen lds")
e("s_add_u32 m0, m0, 1024")
e(f"s_add_u32 s{sT+3}, s{sT+3}, {8*1152}")
e(f"buffer_load_dwordx4 v4, {s_(SX,4)}, s{sT+3} offen lds")
e("v_lshlrev_b32 v3, 4, v1")
for k, p in enumerate((pWR, pGW)):
    srd(SW, p, 1152)
    e(f"s_mov_b32 m0, {WV + 2048*k}")
    e("s_nop 0")
    e(f"buffer_load_dwordx4 v3, {s_(SW,4)}, 0 offen lds")
    e(f"buffer_load_dwordx4 v3, {s_(SW,4)}, 0 offen offset:1024 lds")
e("s_barrier")
late_srds()
tag_issue(17, 18)
e("v_and_b32 v10, 15, v1")
e("v_lshrrev_b32 v11, 4, v1")
e("v_and_b32 v2, 1, v10")
e("v_lshlrev_b32 v2, 11, v2")
e("v_lshl_add_u32 v2, v11, 4, v2")
e(f"v_add_u32 v2, {WV}, v2")
e(f"s_mul_i32 s{sT}, s{sWAVE}, 18432")
e(f"v_lshl_add_u32 v3, v10, 10, s{sT}")
e("v_xor_b32 v4, v10, v11")
for k in range(4):
    e(f"v_xor_b32 v5, {4*k}, v4")
    e(f"v_lshl_add_u32 v{40+k}, v5, 4, v3")
e(f"s_add_u32 s{sT}, s{sT}, 16384")
e(f"v_lshl_add_u32 v3, v10, 7, s{sT}")
e("v_lshrrev_b32 v4, 1, v10")
e("v_xor_b32 v4, v4, v11")
e("v_xor_b32 v5, 4, v4")
e("v_lshl_add_u32 v44, v4, 4, v3")
e("v_lshl_add_u32 v45, v5, 4, v3")
e("s_waitcnt vmcnt(0)")
tag_check(17, 18)
e(f"v_mov_b32 v17, s{sTAG}")
stamp(1)
for ks in range(18):
    e(f"ds_read_b128 {v(64+8*ks,4)}, v2 offset:{ks*64}")
    e(f"ds_read_b128 {v(68+8*ks,4)}, v{40+(ks&3)} offset:{(ks>>2)*256}" if ks < 16 else f"ds_read_b128 {v(68+8*ks,4)}, v{44+(ks&1)}")
    if ks % 6 == 5:
        e("s_waitcnt lgkmcnt(0)")
        for k2 in range(ks-5, ks+1):
            e(f"v_mfma_f32_16x16x32_bf16 v[20:23], {v(64+8*k2,4)}, {v(68+8*k2,4)}, {'0' if k2 == 0 else 'v[20:23]'}")
e(f"s_mov_b32 s{sT}, s{sTOK}")
e(f"v_add_u32 v24, s{sT}, v10")
e("s_nop 6")
e("v_cvt_pk_bf16_f32 v20, v20, v20")
e("v_lshrrev_b32 v20, 16, v20")
e("v_bfe_i32 v22, v20, 15, 1")
e("v_and_b32 v22, 0x7fff, v22")
e("v_xor_b32 v20, 0x8000, v20")
e("v_xor_b32 v20, v20, v22")
e("v_sub_u32 v22, 2047, v24")
e("v_lshl_add_u32 v20, v20, 16, v22")
bf16r(21)
sigmoid(26, 21)
bf16r(26)
e("v_mov_b32 v27, v17")
e("v_lshlrev_b32 v24, 3, v24")
row_max_u32(20)
e("v_mov_b32 v21, v17")
e(f"s_lshr_b32 s{sT}, s{sT}, 1")
e(f"s_add_u32 s{sT}, s{sT}, {CAND}")
e(f"s_mov_b32 s{sT+1}, {GG}")
e("s_mov_b64 exec, 1")
e(f"buffer_store_dwordx2 v[20:21], v18, {s_(SWS,4)}, s{sT} offen sc1")
e("s_mov_b64 exec, 0xffff")
e(f"buffer_store_dwordx2 v[26:27], v24, {s_(SWS,4)}, s{sT+1} offen sc1")
e("s_mov_b64 exec, -1")
e(f"s_cmp_eq_u32 s{sWAVE}, 0")
e("s_cbranch_scc0 L_s_nocand")
cand_issue(20, 24)
e("s_waitcnt vmcnt(0)")
cand_check(20, 24, 17)
e(f"s_mul_i32 s{sT}, s{sIDX}, 1152")
e(f"s_mov_b32 m0, {XS}")
e("s_nop 0")
e(f"buffer_load_dwordx4 v24, {s_(SX,4)}, s{sT} offen lds")
e(f"buffer_load_dwordx4 v24, {s_(SX,4)}, s{sT} offen offset:1024 lds")
e("s_waitcnt vmcnt(0)")
lab("L_s_nocand")
stamp(2)
e(f"s_cmp_eq_u32 s{sWAVE}, 0")
e(f"s_cselect_b32 s{SW}, s{pWG}, s{pWU}")
e(f"s_cselect_b32 s{SW+1}, s{pWG+1}, s{pWU+1}")
e(f"s_mov_b32 s{SW+2}, {576*9216}")
e(f"s_and_b32 s{sT}, s{sS}, 7")
e(f"s_mul_i32 s{sT+1}, s{sT}, 144")
e(f"v_add_u32 v7, s{sT+1}, v7")
e(f"s_mul_i32 s{sT}, s{sT}, {72*9216}")
e(f"s_lshr_b32 s{sT+1}, s{sS}, 3")
e(f"s_lshl_b32 s{sT+1}, s{sT+1}, 7")
e(f"s_add_u32 s{sT}, s{sT}, s{sT+1}")
e(f"s_add_u32 s{sT}, s{sT}, {64*128}")
for n in range(9):
    if n: e(f"s_add_u32 s{sT}, s{sT}, {8*9216}")
    e(f"buffer_load_dwordx4 {v(WT+4*n,4)}, v6, {s_(SW,4)}, s{sT} offen nt")
col_of_lane(8, 9)
e("v_lshlrev_b32 v8, 3, v8")
e(f"s_lshl_b32 s{sT+2}, s{sS}, 10")
e(f"s_lshl_b32 s{sT+1}, s{sWAVE}, 9")
e(f"s_add_u32 s{sT+2}, s{sT+2}, s{sT+1}")
e(f"s_add_u32 s{sT+2}, s{sT+2}, {PP}")
e("s_barrier")
gemv_regs(9, 0)
e("v_mov_b32 v22, v21")
e("v_mov_b32 v21, v17")
e("v_mov_b32 v23, v17")
e(f"buffer_store_dwordx4 v[20:23], v8, {s_(SWS,4)}, s{sT+2} offen sc1")
stamp(3)
e("s_barrier")
e(f"s_cmp_eq_u32 s{sWAVE}, 0")
e("s_cbranch_scc0 L_s_done")
e("v_lshlrev_b32 v8, 2, v1")
for k in range(6): e(f"ds_read_b32 v{30+k}, v8 offset:{PS+256*k}")
e("v_lshlrev_b32 v8, 1, v1")
e(f"v_add_u32 v8, {HS}, v8")
e("s_waitcnt lgkmcnt(0)")
e("v_add_f32 v30, v30, v31")
e("v_add_f32 v33, v33, v34")
e("v_add_f32 v30, v30, v32")
e("v_add_f32 v33, v33, v35")
bf16r(30)
bf16r(33)
sigmoid(31, 30)
e("v_mul_f32 v30, v30, v31")
bf16r(30)
e("v_mul_f32 v30, v30, v33")
e("v_cvt_pk_bf16_f32 v30, v30, v30")
e("ds_write_b16 v8, v30")
lab("L_s_done")
e("s_waitcnt lgkmcnt(0)")
e("s_barrier")
stamp(4)
e("v_lshrrev_b32 v220, 3, v1")
e("v_lshlrev_b32 v220, 10, v220")
e("v_bfe_u32 v2, v1, 2, 1")
e("v_lshl_add_u32 v220, v2, 9, v220")
e("v_and_b32 v2, 3, v1")
e("v_lshl_add_u32 v220, v2, 4, v220")
e(f"s_lshr_b32 s{sT}, s{sS}, 3")
e(f"s_lshl_b32 s{sT}, s{sT}, 13")
e(f"s_and_b32 s{sT+1}, s{sS}, 7")
e(f"s_lshl_b32 s{sT+1}, s{sT+1}, 6")
e(f"s_add_u32 s{sT}, s{sT}, s{sT+1}")
e(f"s_add_u32 s{sT}, s{sT}, {PP}")
e(f"v_add_u32 v220, s{sT}, v220")
divmod_const(2, 3, 1, 9, 63, sT)
e(f"s_mul_i32 s{sT}, s{sWAVE}, 144")
e(f"v_lshl_add_u32 v3, v3, 4, s{sT}")
e(f"v_lshlrev_b32 v221, 1, v2")
e(f"s_lshl_b32 s{sT+1}, s{sS}, 6")
e(f"s_mul_i32 s{sT+2}, s{sS}, 56")
e(f"s_sub_u32 s{sT+2}, 4032, s{sT+2}")
e("v_subrev_u32 v6, 7, v2")
e("v_ashrrev_i32 v6, 31, v6")
for k, n in enumerate((0, 9, 10)):
    e(f"v_add_u32 v4, {7*n}, v2")
    e("v_subrev_u32 v5, 64, v4")
    e("v_ashrrev_i32 v5, 31, v5")
    e(f"v_bfi_b32 v5, v5, 0, s{sT+2}")
    e(f"v_add3_u32 v5, v5, v4, s{sT+1}")
    e("v_mul_u32_u24 v5, 1152, v5")
    e("v_add_u32 v5, v5, v3")
    e("v_subrev_u32 v4, 72, v4")
    e("v_ashrrev_i32 v4, 31, v4")
    e("v_and_b32 v4, v4, v6")
    e(f"v_bfi_b32 v{156+k}, v4, v5, 2.0")
tag_issue(17, 18)
e(f"buffer_load_dwordx4 v[216:219], v220, {s_(SWS,4)}, 0 offen sc1")

vQ, vL16, vKA, vKX, vVA, vHM, vQX, vOX = 2, 3, 4, 5, 6, 7, 8, 9
Q1, Q2, K1, K2, VF, PB, MX = 20, 24, 28, 32, 36, 44, 52
SB0, SB1, OA, M8, M0, BV = 64, 80, 96, 112, 128, 144
sOQ, sOK, sOKX, sBS = sT+10, sT+11, sT+12, sT+13
def SBUF(d): return SB0 if d % 2 == 0 else SB1

def cnt_wait(t, n):
    lp = ul("cnt")
    e(f"v_mov_b32 v12, {CNT}")
    e(f"s_mov_b32 s{n}, 0")
    lab(lp)
    e("ds_read_b32 v13, v12")
    bound(n)
    e("s_waitcnt lgkmcnt(0)")
    e(f"v_readfirstlane_b32 s{t}, v13")
    e(f"s_cmp_lt_u32 s{t}, 4")
    e(f"s_cbranch_scc1 {lp}")

def bulk_wo():
    e(f"s_sub_u32 s{sT}, s{sWAVE}, 4")
    e(f"s_cmp_lt_u32 s{sT}, 3")
    e("s_cbranch_scc0 L_nowo")
    srd(SW, pWO, 576 * 1152)
    e(f"s_lshr_b32 s{sT+1}, s{sSLOT}, 2")
    e(f"s_mul_i32 s{sT+1}, s{sT+1}, 144")
    e(f"s_mul_i32 s{sT+2}, s{sT}, {192*1152}")
    e(f"s_add_u32 s{sT+1}, s{sT+1}, s{sT+2}")
    e(f"s_mul_i32 s{sT}, s{sT}, 30720")
    e(f"s_add_u32 m0, s{sT}, {BULK}")
    for n in range(5):
        if n: e(f"v_add_u32 v10, {64*n}, v1")
        divmod_const(11, 12, 10 if n else 1, 10, 319, sT)
        e("v_mul_u32_u24 v11, 1152, v11")
        e(f"v_lshl_add_u32 v{2+n}, v12, 4, v11")
    e(f"s_cmp_eq_u32 s{sISS}, 0")
    e("s_cbranch_scc0 L_wogo")
    cnt_wait(sT, sT+2)
    lab("L_wogo")
    e(f"s_mov_b32 s{sT}, 0")
    lab("L_wo")
    for n in range(5):
        e(f"buffer_load_dwordx4 v{2+n}, {s_(SW,4)}, s{sT+1} offen lds")
        e("s_add_u32 m0, m0, 1024")
        if n < 4: e("s_nop 0")
    e(f"s_add_u32 s{sT+1}, s{sT+1}, {32*1152}")
    e(f"s_add_u32 s{sT}, s{sT}, 1")
    e(f"s_cmp_lt_u32 s{sT}, 6")
    e("s_cbranch_scc1 L_wo")
    lab("L_nowo")

def down_issue(ns):
    sk = ul("nodown")
    e(f"s_cmp_eq_u32 s{sISS}, 0")
    e(f"s_cbranch_scc1 {sk}")
    for n in ns:
        if 0 < n < 9: e(f"s_mov_b32 s{sT}, {n*7*1152}")
        e(f"buffer_load_dwordx4 {v(DW+4*n,4)}, v{156 + max(0, n-8)}, {s_(SA,4)}, {'s%d' % sT if 0 < n < 9 else '0'} offen nt")
    lab(sk)
DW = 160

lab("L_p2")
bulk_wo()
e(f"s_and_b32 s{sT}, s{sSLOT}, 3")
e(f"s_lshl_b32 s{sH}, s{sXCD}, 2")
e(f"s_add_u32 s{sH}, s{sH}, s{sT}")
e(f"s_lshr_b32 s{sCS}, s{sSLOT}, 2")
e(f"s_add_u32 s{sJ}, s{sCS}, 1")
e(f"s_and_b32 s{sJ}, s{sJ}, 7")
e(f"s_sub_u32 s{sI}, 11, s{sWAVE}")
e(f"s_cmp_lt_u32 s{sWAVE}, 4")
e(f"s_cselect_b32 s{sI}, s{sWAVE}, s{sI}")
e(f"s_lshl_b32 s{sTB}, s{sT}, 6")
e(f"s_and_b32 s{sT}, s{sXCD}, 3")
e(f"s_lshl_b32 s{sT}, s{sT}, 9")
e(f"s_add_u32 s{sTB}, s{sTB}, s{sT}")
e(f"s_lshr_b32 s{sT}, s{sXCD}, 2")
e(f"s_lshl_b32 s{sT}, s{sT}, 8")
e(f"s_add_u32 s{sTB}, s{sTB}, s{sT}")
e(f"s_sub_u32 s{sDMIN}, 8, s{sI}")
e(f"s_cmp_eq_u32 s{sJ}, 0")
e(f"s_cselect_b32 s{sDMIN}, s{sDMIN}, 0")
e(f"s_lshl_b32 s{sT+2}, s{sJ}, 1")
e(f"s_lshr_b32 s{sT+3}, s{sWAVE}, 1")
e(f"s_add_u32 s{sT+3}, s{sT+3}, s{sT+2}")
e(f"s_sub_u32 s{sT+3}, s{sT+3}, 2")
e(f"s_lshl_b32 s{sT+6}, s{sJ}, 12")
e(f"s_lshl_b32 s{sT+7}, s{sI}, 9")
e(f"s_add_u32 s{sOQ}, s{sT+6}, s{sT+7}")
e(f"s_lshl_b32 s{sT+7}, s{sWAVE}, 10")
e(f"s_add_u32 s{sT+6}, s{sT+6}, s{sT+7}")
e(f"s_sub_u32 s{sT+6}, s{sT+6}, 4096")
e(f"s_lshl_b32 s{sT+7}, s{sH}, 16")
e(f"s_add_u32 s{sOK}, s{sT+6}, s{sT+7}")
e(f"s_add_u32 s{sOK}, s{sOK}, {QKV + 32*65536}")
e(f"s_lshr_b32 s{sT+8}, s{sH}, 1")
e(f"s_lshl_b32 s{sT+8}, s{sT+8}, 15")
e(f"s_add_u32 s{sOKX}, s{sT+6}, s{sT+8}")
e(f"s_add_u32 s{sOKX}, s{sOKX}, {XP + 16*32768}")
e(f"s_cmp_lt_i32 s{sT+3}, 0")
e(f"s_cselect_b32 s{sOK}, {BIGOFF}, s{sOK}")
e(f"s_cselect_b32 s{sOKX}, {BIGOFF}, s{sOKX}")
e("v_and_b32 v10, 31, v1")
e("v_lshrrev_b32 v11, 5, v1")
e(f"v_lshlrev_b32 v{vL16}, 4, v1")
e(f"v_lshlrev_b32 v{vQ}, 15, v11")
e(f"v_lshl_add_u32 v{vQ}, v10, 4, v{vQ}")
e(f"v_lshlrev_b32 v{vKA}, 13, v11")
e(f"v_lshl_add_u32 v{vKA}, v10, 4, v{vKA}")
e(f"s_lshl_b32 s{sT}, s{sI}, 9")
e(f"v_add_u32 v{vKA}, s{sT}, v{vKA}")
e(f"s_and_b32 s{sT+2}, s{sH}, 1")
e(f"s_lshl_b32 s{sT+2}, s{sT+2}, 3")
e(f"s_add_u32 s{sT+3}, s{sT}, s{sT+2}")
e(f"s_add_u32 s{sT+4}, s{sT+3}, {KX}")
e(f"v_lshl_add_u32 v{vKX}, v10, 4, s{sT+4}")
e(f"v_subrev_u32 v{vHM}, 1, v11")
e(f"v_lshlrev_b32 v12, 30, v11")
e(f"v_lshl_add_u32 v{vQX}, v10, 4, v12")
e(f"v_lshl_add_u32 v{vOX}, v10, 2, v12")
e("v_bfe_u32 v12, v1, 2, 2")
e("v_lshl_add_u32 v12, v11, 2, v12")
e("v_lshlrev_b32 v12, 4, v12")
e("v_bfe_u32 v13, v1, 1, 1")
e(f"v_mul_u32_u24 v13, {VP1-VP0}, v13")
e("v_and_b32 v14, 1, v1")
e("v_lshl_add_u32 v13, v14, 3, v13")
e(f"v_add_u32 v13, {VP0}, v13")
e(f"s_add_u32 s{sT+4}, s{sT+2}, {VX}")
e(f"v_sub_u32 v14, s{sT+4}, v13")
e("v_bfe_u32 v15, v1, 4, 1")
e("v_mul_u32_u24 v14, v14, v15")
e("v_add_u32 v13, v13, v14")
e(f"v_add3_u32 v{vVA}, v12, v13, s{sT}")
e("v_lshlrev_b32 v12, 2, v11")
e("v_sub_u32 v12, v10, v12")
e(f"s_mov_b32 s{sT}, {NEGBIG}")
for r in range(16):
    ko = 8 * (r >> 2) + (r & 3)
    e(f"v_subrev_u32 v13, {ko}, v12")
    e(f"v_ashrrev_i32 v13, 31, v13")
    e(f"v_and_b32 v{M8+r}, s{sT}, v13")
    e(f"v_xor_b32 v{M0+r}, s{sT}, v{M8+r}")
for r in (Q2+1, Q2+2, Q2+3, K2+2, K2+3): e(f"v_mov_b32 v{r}, 0")
for r in range(16): e(f"v_mov_b32 v{OA+r}, 0")
srd(SA, pWD, 4608 * 1152)
e("s_waitcnt vmcnt(0)")
e(f"s_or_b32 s{sT}, s{sISS}, s{sWAVE}")
e(f"s_cmp_lt_u32 s{sT}, 4")
e("s_cbranch_scc0 L_nocnt")
e(f"v_mov_b32 v12, {CNT}")
e("v_mov_b32 v13, 1")
e("s_mov_b64 exec, 1")
e("ds_add_u32 v12, v13")
e("s_mov_b64 exec, -1")
lab("L_nocnt")
tag_check(17, 18)
e(f"v_mov_b32 v17, s{sTAG}")
stamp(5)
if STOP == "p1": e("s_branch L_fin")
e(f"s_cmp_eq_u32 s{sWAVE}, 7")
e("s_cbranch_scc0 L_poll1d")
e(f"s_cmp_eq_u32 s{sISS}, 0")
e("s_cbranch_scc0 L_nosend1")
cnt_wait(sT, sT+1)
e("s_mov_b64 exec, 0xffff")
e(f"buffer_store_dword v17, v19, {s_(SWS,4)}, 0 offen sc1")
stamp(17)
lab("L_nosend1")
e("s_mov_b64 exec, 0x3ff")
e(f"s_lshl_b32 s{sT}, s{sJ}, 5")
e(f"s_add_u32 s{sT}, s{sT}, s{sH}")
e(f"s_lshl_b32 s{sT}, s{sT}, 7")
e(f"s_movk_i32 s{sT+3}, 0x3ff")
e(f"s_cmp_eq_u32 s{sJ}, 0")
e(f"s_cselect_b32 s{sT+3}, 0x333, s{sT+3}")
e("v_lshlrev_b32 v16, 2, v1")
e(f"s_mov_b32 s{sT+1}, 0")
lab("L_poll1")
e(f"buffer_load_dword v12, v16, {s_(SWS,4)}, s{sT} offen sc1")
e("s_waitcnt vmcnt(0)")
e("v_cmp_eq_u32 vcc, v17, v12")
e(f"s_and_b32 s{sT+4}, vcc_lo, s{sT+3}")
e(f"s_cmp_eq_u32 s{sT+4}, s{sT+3}")
e("s_cbranch_scc1 L_poll1x")
bound(sT+1)
e("s_branch L_poll1")
lab("L_poll1x")
e("s_mov_b64 exec, -1")
lab("L_poll1d")
e("s_barrier")
stamp(6)
e(f"s_lshl_b32 s{sT}, s{sH}, 16")
e(f"s_add_u32 s{sT}, s{sT}, s{sOQ}")
e(f"s_add_u32 s{sT}, s{sT}, {QKV}")
e(f"buffer_load_dwordx4 {v(Q1,4)}, v{vQ}, {s_(SWS,4)}, s{sT} offen sc1")
e(f"s_add_u32 s{sT}, s{sT+8}, s{sOQ}")
e(f"s_add_u32 s{sT}, s{sT}, s{sT+2}")
e(f"s_add_u32 s{sT}, s{sT}, {XP}")
e(f"buffer_load_dword v{Q2}, v{vQX}, {s_(SWS,4)}, s{sT} offen sc1")
e(f"s_lshl_b32 s{sT+1}, s{sWAVE}, 10")
for (ld, so, add) in ((KP0, sOK, 0), (KP1, sOK, 32768), (KX, sOKX, 0), (VP0, sOK, 32*65536), (VP1, sOK, 32*65536+32768), (VX, sOKX, 16*32768)):
    e(f"s_add_u32 m0, s{sT+1}, {ld}")
    e(f"s_add_u32 s{sT}, s{so}, {add}")
    e(f"buffer_load_dwordx4 v{vL16}, {s_(SWS,4)}, s{sT} offen sc1 lds")
e("s_waitcnt vmcnt(3)")
e("s_barrier")
stamp(7)
down_issue(range(0, 4))

def kread(d):
    e(f"ds_read_b128 {v(K1,4)}, v{vKA} offset:{d*512}")
    e(f"ds_read_b64 {v(K2,2)}, v{vKX} offset:{d*512}")
def qk(d):
    S = SBUF(d)
    cin = v(M8,16) if d == 8 else (v(M0,16) if d == 0 else "0")
    e(f"v_mfma_f32_32x32x16_bf16 {v(S,16)}, {v(K1,4)}, {v(Q1,4)}, {cin}")
    e(f"v_mfma_f32_32x32x16_bf16 {v(S,16)}, {v(K2,4)}, {v(Q2,4)}, {v(S,16)}")

c("pass 1: exact row max")
kread(8)
e(f"v_mov_b32 v{MX}, {NEGBIG}")
e(f"v_mov_b32 v{MX+1}, {NEGBIG}")
e("s_waitcnt lgkmcnt(0)")
qk(8)
kread(7)
e("s_nop 7")
for d in range(8, -1, -1):
    if d > 0:
        e("s_waitcnt lgkmcnt(0)")
        qk(d - 1)
        if d > 1: kread(d - 2)
        else: e("s_nop 1")
    else:
        e("s_nop 4")
    S = SBUF(d)
    for r in range(8):
        e(f"v_max3_f32 v{MX + (r & 1)}, v{MX + (r & 1)}, v{S+2*r}, v{S+2*r+1}")
    if d > 0:
        e(f"s_cmp_eq_u32 s{sDMIN}, {d}")
        e("s_cbranch_scc1 L_p1done")
lab("L_p1done")
e(f"v_max_f32 v{MX}, v{MX}, v{MX+1}")
e(f"s_waitcnt lgkmcnt(0)")
kread(8)
e(f"v_mov_b32 v{MX+1}, v{MX}")
e("s_nop 1")
e(f"v_permlane32_swap_b32 v{MX}, v{MX+1}")
e(f"v_max_f32 v{MX}, v{MX}, v{MX+1}")
e(f"v_sub_f32 v{MX}, 0, v{MX}")
e(f"v_cvt_pk_bf16_f32 v{MX+1}, v{MX}, v{MX}")
e(f"v_lshlrev_b32 v{MX+1}, 16, v{MX+1}")
e(f"v_sub_f32 v{MX+1}, v{MX}, v{MX+1}")
e(f"v_cvt_pk_bf16_f32 v{MX}, v{MX}, v{MX+1}")
e(f"v_and_b32 v{Q2+1}, v{vHM}, v{MX}")
stamp(8)
e(f"s_cmp_eq_u32 s{sISS}, 0")
e("s_cbranch_scc0 L_vw4")
e("s_waitcnt vmcnt(0)")
lab("L_vw4")
e("s_waitcnt vmcnt(4) lgkmcnt(0)")
e("s_barrier")
stamp(9)
down_issue(range(4, 8))
c("pass 2")
qk(8)
kread(7)
e("s_nop 5")
for d in range(8, -1, -1):
    for u in range(2):
        for wh in range(2):
            e(f"ds_read_b64_tr_b16 {v(VF+4*u+2*wh,2)}, v{vVA} offset:{d*512+u*256+wh*128}")
    if d > 0:
        e("s_waitcnt lgkmcnt(4)")
        qk(d - 1)
        if d > 1: kread(d - 2)
    S = SBUF(d)
    nk = 2 if d > 1 else 0
    for u in range(2):
        b = S + 8*u
        seq = [f"v_exp_f32 v{b}, v{b}", f"v_exp_f32 v{b+1}, v{b+1}", f"v_exp_f32 v{b+2}, v{b+2}"]
        for k in range(4):
            seq.append(f"v_cvt_pk_bf16_f32 v{PB+4*u+k}, v{b+2*k}, v{b+2*k+1}")
            for r in (2*k+3, 2*k+4):
                if r < 8: seq.append(f"v_exp_f32 v{b+r}, v{b+r}")
        seq.insert(len(seq)-1, f"s_waitcnt lgkmcnt({nk})" if u == 0 else "s_nop 0")
        for x in seq: e(x)
        e("s_nop 1")
        e(f"v_mfma_f32_32x32x16_bf16 {v(OA,16)}, {v(VF+4*u,4)}, {v(PB+4*u,4)}, {v(OA,16)}")
    if d > 0:
        e(f"s_cmp_eq_u32 s{sDMIN}, {d}")
        e("s_cbranch_scc1 L_p2done")
lab("L_p2done")
down_issue(range(8, 11))
e(f"s_lshl_b32 s{sT}, s{sH}, 16")
e(f"s_add_u32 s{sT}, s{sT}, s{sOQ}")
e(f"s_add_u32 s{sT}, s{sT}, {OM}")
e(f"s_lshl_b32 s{sT+1}, s{sH}, 13")
e(f"s_lshr_b32 s{sT+2}, s{sOQ}, 2")
e(f"s_add_u32 s{sT+1}, s{sT+1}, s{sT+2}")
e(f"s_add_u32 s{sT+1}, s{sT+1}, {OX}")
e("s_nop 4")
e(f"v_rcp_f32 v{MX}, v{OA+10}")
e("s_nop 0")
for r in range(10): e(f"v_mul_f32 v{OA+r}, v{MX}, v{OA+r}")
for k in range(5): e(f"v_cvt_pk_bf16_f32 v{PB+k}, v{OA+2*k}, v{OA+2*k+1}")
e(f"buffer_store_dwordx4 {v(PB,4)}, v{vQ}, {s_(SWS,4)}, s{sT} offen sc1")
e(f"buffer_store_dword v{PB+4}, v{vOX}, {s_(SWS,4)}, s{sT+1} offen sc1")
stamp(10)

vOM, vOXL, vWM, vWX, vRW, vT1, vT2, vX1, vX2, vF2, vG1, vG2 = 2, 3, 4, 5, 6, 7, 8, 9, 10, 11, 14, 15
X1, X2, G1, G2, CD = 20, 24, 28, 30, 32
OF, A3, WO = 36, 72, 92
sTT, sKH, sHASY = sT+10, sT+11, sT+12
e(f"s_and_b32 s{sTT}, s{sWAVE}, 3")
e(f"s_lshr_b32 s{sKH}, s{sWAVE}, 2")
e(f"s_mul_i32 s{sT}, s{sTB}, 1152")
e(f"s_mul_i32 s{sT+1}, s{sCS}, 144")
e(f"s_add_u32 s{sT}, s{sT}, s{sT+1}")
e(f"s_lshl_b32 s{sT+1}, s{sTB}, 3")
e(f"s_add_u32 s{sT+1}, s{sT+1}, {GG}")
e(f"s_cmp_eq_u32 s{sWAVE}, 7")
e(f"s_cselect_b32 s{sT+2}, 0, {BIGOFF}")
for (tau0, vt, vx, vg) in ((None, vT1, vX1, vG1), (512, vT2, vX2, vG2)):
    if tau0 is None: src = 0
    else:
        e(f"v_add_u32 v16, {tau0}, v1"); src = 16
    divmod_const(12, 13, src, 9, 575, sT)
    e(f"v_mul_u32_u24 v{vt}, {RP}, v12")
    e(f"v_lshl_add_u32 v{vt}, v13, 5, v{vt}")
    e(f"v_mul_u32_u24 v{vx}, 1152, v12")
    e(f"v_lshl_add_u32 v{vx}, v13, 4, v{vx}")
    e(f"v_add_u32 v{vx}, s{sT}, v{vx}")
    e(f"v_lshl_add_u32 v{vg}, v12, 3, s{sT+1}")
    if tau0 is not None:
        e(f"v_add_u32 v{vx}, s{sT+2}, v{vx}")
e(f"buffer_load_dwordx4 {v(X1,4)}, v{vX1}, {s_(SX,4)}, 0 offen")
e(f"buffer_load_dwordx4 {v(X2,4)}, v{vX2}, {s_(SX,4)}, 0 offen")
e(f"buffer_load_dwordx2 {v(G1,2)}, v{vG1}, {s_(SWS,4)}, 0 offen sc1")
e(f"buffer_load_dwordx2 {v(G2,2)}, v{vG2}, {s_(SWS,4)}, 0 offen sc1")
cand_issue(CD, 19)
e("v_and_b32 v12, 15, v1")
e("v_lshrrev_b32 v13, 4, v1")
e(f"v_lshlrev_b32 v{vOM}, 15, v13")
e(f"v_lshl_add_u32 v{vOXL}, v12, 2, v{vOM}")
e(f"v_lshl_add_u32 v{vOM}, v12, 4, v{vOM}")
e(f"s_lshl_b32 s{sT}, s{sTT}, 4")
e(f"v_add_u32 v{vRW}, s{sT}, v12")
e(f"v_mul_u32_u24 v{vRW}, {RP}, v{vRW}")
e(f"v_lshl_add_u32 v{vRW}, v13, 4, v{vRW}")
e(f"s_mul_i32 s{sT}, s{sKH}, {R1-R0}")
e(f"v_add_u32 v{vRW}, s{sT}, v{vRW}")
e(f"s_lshl_b32 s{sT+1}, s{sTT}, 4")
e(f"s_add_u32 s{sT+3}, s{sTB}, s{sT+1}")
e("v_bfe_u32 v16, v1, 2, 2")
e(f"v_mul_u32_u24 v{vWX}, 72, v13")
e(f"v_add3_u32 v{vWX}, v{vWX}, v16, 16")
e(f"v_lshrrev_b32 v{vWM}, 1, v13")
e(f"v_mul_u32_u24 v{vWM}, 20, v{vWM}")
e("v_and_b32 v13, 1, v13")
e("v_lshl_add_u32 v13, v13, 2, v16")
e(f"v_add_u32 v{vWM}, v{vWM}, v13")
e("v_and_b32 v13, 3, v1")
e("v_lshlrev_b32 v13, 3, v13")
e(f"s_mul_i32 s{sT}, s{sKH}, {288*160}")
e(f"s_add_u32 s{sT}, s{sT}, {BULK}")
e(f"v_add_u32 v13, s{sT}, v13")
e(f"s_movk_i32 s{sT}, 160")
e(f"v_mad_u32_u24 v{vWM}, v{vWM}, s{sT}, v13")
e(f"v_mad_u32_u24 v{vWX}, v{vWX}, s{sT}, v13")
e("s_waitcnt vmcnt(0)")
stamp(11)
e("s_barrier")
e(f"s_cmp_eq_u32 s{sWAVE}, 7")
e("s_cbranch_scc0 L_nosend2")
e(f"s_lshl_b32 s{sT}, s{sJ}, 12")
e(f"s_lshl_b32 s{sT+1}, s{sH}, 2")
e(f"s_add_u32 s{sT}, s{sT}, s{sT+1}")
e(f"s_add_u32 s{sT}, s{sT}, {F2}")
e(f"v_lshlrev_b32 v12, 7, v1")
e("s_mov_b64 exec, 0xffffffff")
e(f"buffer_store_dword v17, v12, {s_(SWS,4)}, s{sT} offen sc1")
e("s_mov_b64 exec, -1")
lab("L_nosend2")
cand_check(CD, 19, 17)
e(f"s_sub_u32 s{sHASY}, s{sIDX}, s{sTB}")
e(f"s_cmp_eq_u32 s{sISS}, 0")
e("s_cbranch_scc1 L_p3_main")

c("---- S workgroups: down projection of the routed token ----")
e(f"s_cmp_eq_u32 s{sWAVE}, 0")
e("s_cbranch_scc0 L_m2_nog")
e(f"s_mov_b32 s{sT+1}, 0")
lab("L_m2_poll")
e("v_xor_b32 v217, v17, v217")
e("v_xor_b32 v219, v17, v219")
e("v_or_b32 v217, v217, v219")
e("v_cmp_eq_u32 vcc, 0, v217")
e("s_cmp_eq_u64 vcc, -1")
e("s_cbranch_scc1 L_m2_got")
bound(sT+1)
e(f"buffer_load_dwordx4 v[216:219], v220, {s_(SWS,4)}, 0 offen sc1")
e("s_waitcnt vmcnt(0)")
e("s_branch L_m2_poll")
lab("L_m2_got")
for r in (216, 218):
    e("s_nop 1")
    e(f"v_add_f32_dpp v{r}, v{r}, v{r} row_ror:8 row_mask:0xf bank_mask:0xf")
    cross_rows("v_add_f32", r, 217)
    bf16r(r)
    e("s_nop 1")
    e(f"v_mov_b32_dpp v{r+1}, v{r} row_ror:12 row_mask:0xf bank_mask:0xf")
    sigmoid(44, r)
    e(f"v_mul_f32 v{r}, v{r}, v44")
    bf16r(r)
    e(f"v_mul_f32 v{r}, v{r}, v{r+1}")
e("v_cvt_pk_bf16_f32 v216, v216, v218")
e("v_subrev_u32 v217, 4, v1")
e("v_ashrrev_i32 v217, 31, v217")
e("v_and_b32 v216, v216, v217")
e(f"v_lshlrev_b32 v217, 2, v1")
e(f"v_add_u32 v217, {HS+128}, v217")
e("s_mov_b64 exec, 0xff")
e("ds_write_b32 v217, v216")
e("s_mov_b64 exec, -1")
e("s_waitcnt lgkmcnt(0)")
lab("L_m2_nog")
e("s_barrier")
e(f"v_add_u32 v221, {HS}, v221")
HV = 204
for n in range(11): e(f"ds_read_u16 v{HV+n}, v221 offset:{14*n}")
for i in range(8): e(f"v_mov_b32 v{40+i}, 0")
e("s_waitcnt lgkmcnt(0)")
for n in range(11):
    e(f"v_lshlrev_b32 v48, 16, v{HV+n}")
    for i in range(4):
        e(f"v_dot2_f32_bf16 v{40+2*i}, v{DW+4*n+i}, v{HV+n}, v{40+2*i}")
    for i in range(4):
        e(f"v_dot2_f32_bf16 v{41+2*i}, v{DW+4*n+i}, v48, v{41+2*i}")
e(f"s_lshl_b32 s{sT}, s{sWAVE}, 11")
e(f"v_lshl_add_u32 v48, v1, 5, s{sT}")
e(f"v_add_u32 v49, s{sT}, v19")
e("s_nop 0")
e("ds_write_b128 v48, v[40:43]")
e("ds_write_b128 v48, v[44:47] offset:16")
e("s_waitcnt lgkmcnt(0)")
for g7 in range(7): e(f"ds_read_b128 {v(72+4*g7,4)}, v49 offset:{288*g7}")
e(f"s_mul_i32 s{sT}, s{sRB}, 2304")
e(f"s_mul_i32 s{sT+1}, s{sWAVE}, 288")
e(f"s_add_u32 s{sT}, s{sT}, s{sT+1}")
e(f"s_add_u32 s{sT}, s{sT}, {YY}")
e("s_waitcnt lgkmcnt(0)")
for g7 in range(1, 7):
    for i in range(4): e(f"v_add_f32 v{72+i}, v{72+i}, v{72+4*g7+i}")
e("s_mov_b64 exec, 0x3ffff")
e(f"buffer_store_dwordx4 v[72:75], v19, {s_(SWS,4)}, s{sT} offen sc1")
e("s_mov_b64 exec, -1")
e("s_waitcnt vmcnt(0)")
e("s_barrier")
e(f"s_cmp_eq_u32 s{sWAVE}, 0")
e("s_cbranch_scc0 L_p3_main")
e(f"s_lshl_b32 s{sT}, s{sRB}, 2")
e(f"s_add_u32 s{sT}, s{sT}, {FY}")
e("v_lshlrev_b32 v12, 8, v1")
e("s_mov_b64 exec, 0xff")
e(f"buffer_store_dword v17, v12, {s_(SWS,4)}, s{sT} offen sc1")
e("s_mov_b64 exec, -1")

lab("L_p3_main")
stamp(12)
def wo_reads(F, ar, off, second):
    for t in range(5):
        e(f"ds_read_b64_tr_b16 {v(F+4*t,2)}, v{ar} offset:{off+32*t}")
        e(f"ds_read_b64_tr_b16 {v(F+4*t+2,2)}, v{ar} offset:{off+second+32*t}")
for sp in range(8):
    wo_reads(WO + 20*sp, vWM, 5760*sp, 1280)
e(f"s_cmp_eq_u32 s{sWAVE}, 7")
e("s_cbranch_scc0 L_poll2d")
e(f"s_lshr_b32 s{sT}, s{sTB}, 3")
e(f"s_add_u32 s{sT}, s{sT}, s{sCS}")
e(f"s_lshl_b32 s{sT}, s{sT}, 7")
e(f"s_add_u32 s{sT}, s{sT}, {F2}")
e("v_lshlrev_b32 v13, 2, v1")
e("s_mov_b64 exec, 0xffffffff")
e(f"s_mov_b32 s{sT+1}, 0")
lab("L_poll2")
e(f"buffer_load_dword v12, v13, {s_(SWS,4)}, s{sT} offen sc1")
e("s_waitcnt vmcnt(0)")
e("v_cmp_eq_u32 vcc, v17, v12")
e("s_cmp_eq_u32 vcc_lo, -1")
e("s_cbranch_scc1 L_poll2x")
bound(sT+1)
e("s_branch L_poll2")
lab("L_poll2x")
e("s_mov_b64 exec, -1")
lab("L_poll2d")
e("s_barrier")
stamp(13)
e(f"s_lshl_b32 s{sT}, s{sKH}, 20")
e(f"s_lshl_b32 s{sT+1}, s{sT+3}, 4")
e(f"s_add_u32 s{sT}, s{sT}, s{sT+1}")
e(f"s_add_u32 s{sT}, s{sT}, {OM}")
for sp in range(8):
    if sp: e(f"s_add_u32 s{sT}, s{sT}, 131072")
    e(f"buffer_load_dwordx4 {v(OF+4*sp,4)}, v{vOM}, {s_(SWS,4)}, s{sT} offen sc1")
e(f"s_lshl_b32 s{sT}, s{sKH}, 17")
e(f"s_lshl_b32 s{sT+1}, s{sT+3}, 2")
e(f"s_add_u32 s{sT}, s{sT}, s{sT+1}")
e(f"s_add_u32 s{sT}, s{sT}, {OX}")
for i in range(4):
    if i: e(f"s_add_u32 s{sT}, s{sT}, 8192")
    e(f"buffer_load_dword v{OF+32+i}, v{vOXL}, {s_(SWS,4)}, s{sT} offen sc1")
for sp in range(9):
    e(f"s_waitcnt vmcnt({11-sp if sp < 8 else 0}) lgkmcnt(0)")
    F = WO + 20*(sp % 8)
    for t in range(5):
        e(f"v_mfma_f32_16x16x32_bf16 {v(A3+4*t,4)}, {v(F+4*t,4)}, {v(OF+4*sp,4)}, {'0' if sp == 0 else v(A3+4*t,4)}")
    if sp == 0: wo_reads(WO, vWX, 0, 5760)
stamp(14)
e(f"s_cmp_lt_u32 s{sHASY}, 64")
e("s_cbranch_scc0 L_noy1")
c("gather the 64 partial y rows: wave w sums producers 8w..8w+7")
e(f"s_cmp_eq_u32 s{sWAVE}, 7")
e("s_cbranch_scc0 L_pollyd")
e(f"s_lshl_b32 s{sT}, s{sCS}, 8")
e(f"s_add_u32 s{sT}, s{sT}, {FY}")
e("v_lshlrev_b32 v12, 2, v1")
e(f"s_mov_b32 s{sT+1}, 0")
lab("L_polly")
e(f"buffer_load_dword v13, v12, {s_(SWS,4)}, s{sT} offen sc1")
e("s_waitcnt vmcnt(0)")
e("v_cmp_eq_u32 vcc, v17, v13")
e("s_cmp_eq_u64 vcc, -1")
e("s_cbranch_scc1 L_pollyd")
bound(sT+1)
e("s_branch L_polly")
lab("L_pollyd")
e("s_barrier")
e(f"s_mul_i32 s{sT}, s{sWAVE}, {8*2304}")
e(f"s_mul_i32 s{sT+1}, s{sCS}, 288")
e(f"s_add_u32 s{sT}, s{sT}, s{sT+1}")
e(f"s_add_u32 s{sT}, s{sT}, {YY}")
e("s_mov_b64 exec, 0x3ffff")
for p in range(8):
    if p: e(f"s_add_u32 s{sT}, s{sT}, 2304")
    e(f"buffer_load_dwordx4 {v(100+4*p,4)}, v19, {s_(SWS,4)}, s{sT} offen sc1")
e("s_waitcnt vmcnt(0)")
for p in range(1, 8):
    for i in range(4): e(f"v_add_f32 v{100+i}, v{100+i}, v{100+4*p+i}")
e(f"s_mul_i32 s{sT}, s{sWAVE}, 288")
e(f"s_add_u32 s{sT}, s{sT}, {YR}")
e(f"v_add_u32 v12, s{sT}, v19")
e("ds_write_b128 v12, v[100:103]")
e("s_mov_b64 exec, -1")
lab("L_noy1")
e("s_nop 4")
for t in range(5):
    e(f"ds_write_b128 v{vRW}, {v(A3+4*t,4)} offset:{64*t}")
e("s_waitcnt lgkmcnt(0)")
e("s_barrier")
stamp(15)

def unpack(d, p):
    e(f"v_lshlrev_b32 v{d}, 16, v{p}")
    e(f"v_and_b32 v{d+1}, 0xffff0000, v{p}")
def round8(B, T):
    for k in range(4): e(f"v_cvt_pk_bf16_f32 v{T+k}, v{B+2*k}, v{B+2*k+1}")
    for k in range(4): unpack(B+2*k, T+k)

def task(vt, vx, vg, X, G, nm):
    A, Bq, T = 40, 56, 64
    e(f"ds_read_b128 {v(A,4)}, v{vt} offset:{R0}")
    e(f"ds_read_b128 {v(A+4,4)}, v{vt} offset:{R0+16}")
    e(f"ds_read_b128 {v(A+8,4)}, v{vt} offset:{R1}")
    e(f"ds_read_b128 {v(A+12,4)}, v{vt} offset:{R1+16}")
    lp, done = ul("g"), ul("gd")
    e(f"s_mov_b32 s{sT}, 0")
    lab(lp)
    e(f"v_cmp_eq_u32 vcc, v17, v{G+1}")
    e("s_cmp_eq_u64 vcc, -1")
    e(f"s_cbranch_scc1 {done}")
    bound(sT)
    e(f"buffer_load_dwordx2 {v(G,2)}, v{vg}, {s_(SWS,4)}, 0 offen sc1")
    e("s_waitcnt vmcnt(0)")
    e(f"s_branch {lp}")
    lab(done)
    for k in range(4): unpack(Bq+2*k, X+k)
    e(f"v_sub_f32 v{G+1}, 1.0, v{G}")
    bf16r(G+1)
    e(f"s_cmp_lt_u32 s{sHASY}, 64")
    e(f"s_cbranch_scc0 L_noy2{nm}")
    e(f"v_subrev_u32 v68, {GG}, v{vg}")
    e(f"v_lshrrev_b32 v68, 3, v68")
    e(f"s_mul_i32 s{sT}, s{sHASY}, {RP}")
    e(f"v_subrev_u32 v69, s{sT}, v{vt}")
    e(f"v_and_b32 v69, 0x1e0, v69")
    for w in range(8):
        e(f"ds_read_b128 {v(100+8*w,4)}, v69 offset:{YR+288*w}")
        e(f"ds_read_b128 {v(104+8*w,4)}, v69 offset:{YR+288*w+16}")
        if w % 4 == 3: e("s_waitcnt lgkmcnt(0)")
    for w in range(1, 8):
        for i in range(8): e(f"v_add_f32 v{100+i}, v{100+i}, v{100+8*w+i}")
    round8(100, 110)
    e(f"s_lshr_b32 s{sT}, s{sKEY}, 16")
    e(f"s_bitcmp1_b32 s{sT}, 15")
    e(f"s_cselect_b32 s{sT+1}, 0x8000, 0xffff") if False else None
    e(f"s_cselect_b32 s{sT+1}, 0, 0x7fff")
    e(f"s_xor_b32 s{sT}, s{sT}, s{sT+1}")
    e(f"s_xor_b32 s{sT}, s{sT}, 0x8000")
    e(f"s_lshl_b32 s{sT}, s{sT}, 16")
    e(f"v_mov_b32 v108, s{sT}")
    sigmoid(109, 108)
    bf16r(109)
    for i in range(8): e(f"v_mul_f32 v{100+i}, v109, v{100+i}")
    round8(100, 110)
    for i in range(8): e(f"v_add_f32 v{100+i}, v{Bq+i}, v{100+i}")
    round8(100, 110)
    e(f"v_cmp_eq_u32 vcc, s{sIDX}, v68")
    e("s_nop 1")
    for i in range(8): e(f"v_cndmask_b32 v{Bq+i}, v{Bq+i}, v{100+i}, vcc")
    lab(f"L_noy2{nm}")
    e("s_waitcnt lgkmcnt(0)")
    for i in range(8): e(f"v_add_f32 v{A+i}, v{A+i}, v{A+8+i}")
    round8(A, T)
    for i in range(8): e(f"v_mul_f32 v{A+i}, v{G}, v{A+i}")
    for i in range(8): e(f"v_mul_f32 v{Bq+i}, v{G+1}, v{Bq+i}")
    round8(A, T)
    round8(Bq, T)
    for i in range(8): e(f"v_add_f32 v{A+i}, v{A+i}, v{Bq+i}")
    for k in range(4): e(f"v_cvt_pk_bf16_f32 v{T+k}, v{A+2*k}, v{A+2*k+1}")
    e(f"buffer_store_dwordx4 {v(T,4)}, v{vx}, {s_(SOUT,4)}, 0 offen")
task(vT1, vX1, vG1, X1, G1, "a")
e(f"s_cmp_eq_u32 s{sWAVE}, 7")
e("s_cbranch_scc0 L_fin")
task(vT2, vX2, vG2, X2, G2, "b")
lab("L_fin")
stamp(16)
if PROBE >= 0:
    if PROBE == 0: pass
    e("s_cmp_eq_u32 s94, 0")
    e("s_cbranch_scc1 L_end")
    e(f"s_sub_u32 s94, s94, s{sTAG}")
    e("s_max_i32 s94, s94, 0")
    e("s_min_u32 s94, s94, 10000")
    e("s_lshl_b32 s94, s94, 2")
    e("s_memrealtime s[92:93]")
    e("s_waitcnt lgkmcnt(0)")
    e("s_add_u32 s94, s94, s92")
    lab("L_probe")
    e("s_memrealtime s[92:93]")
    e("s_waitcnt lgkmcnt(0)")
    e("s_sub_u32 s92, s92, s94")
    e("s_cmp_lt_i32 s92, 0")
    e("s_cbranch_scc1 L_probe")

if DBGT:
    e("v_lshlrev_b32 v2, 2, v1")
    e("s_mov_b64 exec, 0xfffe")
    e(f"global_atomic_umax v2, v255, {s_(pDBG,2)}")
elif PROF:
    e(f"s_lshl_b32 s{sT}, s2, 3")
    e(f"s_add_u32 s{sT}, s{sT}, s{sWAVE}")
    e(f"s_lshl_b32 s{sT}, s{sT}, 7")
    e(f"s_add_u32 s{sT}, s{sT}, {PROFB}")
    e("v_lshlrev_b32 v2, 2, v1")
    e("s_mov_b64 exec, 0xffffffff")
    e(f"buffer_store_dword v255, v2, {s_(SWS,4)}, s{sT} offen")
lab("L_end")
e("s_endpgm")

body = "\n".join(L)
hdr = open("cdna_kernels/" + NAME + ".s.ref").read().split("; Override launch")[0]
text = hdr + f"""; @launch grid=(256,1,1) block=(512,1,1) lds={LDS_TOTAL}
.amdgcn_target "amdgcn-amd-amdhsa--gfx950"
.text
.globl {NAME}_kernel
.p2align 8
.type {NAME}_kernel,@function
{body}
.section .rodata,"a"
.p2align 6
.amdhsa_kernel {NAME}_kernel
  .amdhsa_next_free_vgpr 256
  .amdhsa_next_free_sgpr 102
  .amdhsa_accum_offset 256
  .amdhsa_group_segment_fixed_size 0
  .amdhsa_kernarg_size 96
  .amdhsa_user_sgpr_count 2
  .amdhsa_user_sgpr_kernarg_segment_ptr 1
  .amdhsa_system_sgpr_workgroup_id_x 1
.end_amdhsa_kernel
"""
out = [a for a in sys.argv[1:] if not a.startswith("--")]
path = out[0] if out else "cdna_kernels/" + NAME + ".s"
open(path, "w").write(text)
errs = hazard.check(body)
print("\n".join(errs) if errs else "hazard check clean", file=sys.stderr)
```

```python
import sys, math, struct
import hazard

NAME = "gated_mix__sliding_block__moe_arch_mod__prompt"
DBGT = "--dbgt" in sys.argv
PROF = "--prof" in sys.argv or DBGT
NOLOAD = "--noload" in sys.argv
NOCOMP = "--nocomp" in sys.argv
NOMFMA = "--nomfma" in sys.argv
NOREAD = "--noread" in sys.argv
XNOSWZ = "--xnoswz" in sys.argv
NOX = "--nox" in sys.argv
NOW = "--now" in sys.argv
WAL = "--wal" in sys.argv
def opt(n, d=""):
    for a in sys.argv:
        if a.startswith(f"--{n}="): return a.split("=", 1)[1].replace("+", " ")
    return d
XF_, WF_ = opt("xf"), opt("wf")
NOS = "--nos" in sys.argv
ROT = opt("rot", "9")
STOP = None
for a in sys.argv:
    if a.startswith("--stop="): STOP = a.split("=")[1]

F1, F2, CAND, FY, GG, PP, YY = 0x0, 0x8000, 0x10000, 0x11000, 0x14000, 0x18000, 0x28000
QKV, XP, OM, OX = 0x100000, 0x700000, 0x880000, 0xA80000
PROFB = 0xB00000
WS_SIZE = 0xC00000
BIGOFF = 0x40000000
SPIN = 200000

SLOT = 34816
KP0, KP1, KX = 0, 8192, 16384
VB = 24576
VP0, VP1, VX = VB, VB + 8192 + 64, VB + 16384 + 128
BULK = 49408
R0, R1, YR = 0, 21504, 43008
RP = 336
CNT = 147968
LDS_TOTAL = 163840

def f32bits(x): return struct.unpack("<I", struct.pack("<f", x))[0]
QSCALE = f32bits(18 ** -0.5 * math.log2(math.e))
NEGBIG = f32bits(-1e30)
LOG2E = f32bits(math.log2(math.e))

L = []
def e(s): L.append("  " + s)
def lab(s): L.append(s + ":")
def c(s): L.append("  ; " + s)
def v(a, n=1): return f"v{a}" if n == 1 else f"v[{a}:{a+n-1}]"
def s_(a, n=1): return f"s{a}" if n == 1 else f"s[{a}:{a+n-1}]"
_uid = [0]
def ul(p):
    _uid[0] += 1
    return f"L_{p}_{_uid[0]}"

sWAVE, sXCD, sSLOT, sRB, sCB = 3, 4, 5, 6, 7
SX, SW, SWS, SOUT, SA, SB = 8, 12, 40, 44, 48, 52
pX, pWQKV, pWO, pWR, pWG, pWU, pWD, pGW, pOUT, pDBG, pWS = 16, 18, 20, 24, 26, 28, 30, 32, 34, 36, 38
sTAG = 56
sT = 57
sH, sJ, sI, sTB, sCS, sISS = 76, 77, 78, 79, 80, 81
sDMIN, sIDX, sKEY, sFLAG = 82, 83, 84, 85
sSTAMP = 86

PROBE = int(opt("probe", "-1"))
def stamp(k):
    if PROBE == k:
        e("s_memrealtime s[94:95]")
        e("s_waitcnt lgkmcnt(0)")
    if PROF:
        if DBGT:
            m = {1: 3, 2: 4, 5: 5, 6: 6, 7: 7, 10: 8, 12: 9, 13: 10, 15: 11, 16: 12}
            if k not in m: return
            k = m[k]
        e(f"s_memrealtime s[100:101]" if DBGT else f"s_memtime s[100:101]")
        e("s_waitcnt lgkmcnt(0)")
        e(f"v_writelane_b32 v255, s100, {k}")

def srd(base, ptr, size):
    e(f"s_mov_b32 s{base}, s{ptr}")
    e(f"s_mov_b32 s{base+1}, s{ptr+1}")
    e(f"s_mov_b32 s{base+2}, {size}")
    e(f"s_mov_b32 s{base+3}, 0x20000")

def divmod_const(dq, dr, src, d, maxv, tmp_s):
    for sh in range(16, 25):
        m = -(-(1 << sh) // d)
        if m < (1 << 24) and maxv * m < (1 << 32) and all((x * m) >> sh == x // d for x in range(maxv + 1)):
            break
    else:
        raise Exception("no magic")
    e(f"v_mul_u32_u24 v{dq}, {m}, v{src}")
    e(f"v_lshrrev_b32 v{dq}, {sh}, v{dq}")
    e(f"v_mul_u32_u24 v{dr}, {d}, v{dq}")
    e(f"v_sub_u32 v{dr}, v{src}, v{dr}")

def tag_issue(vt, vz):
    e(f"v_mov_b32 v{vz}, 0")
    e(f"global_load_dword v{vt}, v{vz}, {s_(pDBG,2)} sc1")

def tag_check(vt, vz):
    lp, done = ul("tag"), ul("tagd")
    e(f"s_mov_b32 s{sT}, 0")
    lab(lp)
    e(f"v_readfirstlane_b32 s{sTAG}, v{vt}")
    e(f"s_cmp_lg_u32 s{sTAG}, 0")
    e(f"s_cbranch_scc1 {done}")
    e(f"s_add_u32 s{sT}, s{sT}, 1")
    e(f"s_cmp_gt_u32 s{sT}, {SPIN}")
    e(f"s_cbranch_scc1 L_end")
    e(f"global_load_dword v{vt}, v{vz}, {s_(pDBG,2)} sc1")
    e("s_waitcnt vmcnt(0)")
    e(f"s_branch {lp}")
    lab(done)


def bound(cnt):
    e(f"s_add_u32 s{cnt}, s{cnt}, 1")
    e(f"s_cmp_gt_u32 s{cnt}, {SPIN}")
    e("s_cbranch_scc1 L_end")

def bf16r(r, t=None):
    e(f"v_cvt_pk_bf16_f32 v{r}, v{r}, v{r}")
    e(f"v_and_b32 v{r}, 0xffff0000, v{r}")

def sigmoid(d, x):
    e(f"v_mul_f32 v{d}, {(LOG2E ^ 0x80000000):#x}, v{x}")
    e(f"v_exp_f32 v{d}, v{d}")
    e("s_nop 0")
    e(f"v_add_f32 v{d}, 1.0, v{d}")
    e(f"v_rcp_f32 v{d}, v{d}")
    e("s_nop 0")

def row_max_u32(r):
    for k in (8, 4, 2, 1):
        e("s_nop 1")
        e(f"v_max_u32_dpp v{r}, v{r}, v{r} row_ror:{k} row_mask:0xf bank_mask:0xf")

def cross_rows(op, r, t):
    for sw in ("v_permlane16_swap_b32", "v_permlane32_swap_b32"):
        e(f"v_mov_b32 v{t}, v{r}")
        e("s_nop 1")
        e(f"{sw} v{r}, v{t}")
        e(f"{op} v{r}, v{r}, v{t}")

def cand_issue(R, va):
    e(f"v_lshlrev_b32 v{va}, 4, v1")
    e(f"s_mov_b32 s{sT}, {CAND}")
    e(f"buffer_load_dwordx4 {v(R,4)}, v{va}, {s_(SWS,4)}, s{sT} offen sc1")

def cand_check(R, va, vtag):
    lp, done = ul("cand"), ul("candd")
    e(f"s_mov_b32 s{sT+1}, 0")
    lab(lp)
    e(f"v_xor_b32 v{R+1}, v{vtag}, v{R+1}")
    e(f"v_xor_b32 v{R+3}, v{vtag}, v{R+3}")
    e(f"v_or_b32 v{R+1}, v{R+1}, v{R+3}")
    e(f"v_cmp_eq_u32 vcc, 0, v{R+1}")
    e("s_cmp_eq_u64 vcc, -1")
    e(f"s_cbranch_scc1 {done}")
    bound(sT+1)
    e(f"s_mov_b32 s{sT}, {CAND}")
    e(f"buffer_load_dwordx4 {v(R,4)}, v{va}, {s_(SWS,4)}, s{sT} offen sc1")
    e("s_waitcnt vmcnt(0)")
    e(f"s_branch {lp}")
    lab(done)
    e(f"v_max_u32 v{R}, v{R}, v{R+2}")
    row_max_u32(R)
    cross_rows("v_max_u32", R, R+1)
    e("s_nop 0")
    e(f"v_readfirstlane_b32 s{sKEY}, v{R}")
    e(f"s_and_b32 s{sIDX}, s{sKEY}, 0xffff")
    e(f"s_sub_u32 s{sIDX}, 2047, s{sIDX}")

lab(f"{NAME}_kernel")
e(f"s_memrealtime s[90:91]")
e(f"s_load_dwordx16 s[16:31], s[0:1], 0")
e(f"s_load_dwordx8 s[32:39], s[0:1], 64")
if PROF:
    e(f"s_memrealtime s[98:99]")
    e(f"s_memtime s[96:97]")
    e("v_mov_b32 v255, 0")
if PROBE > 0: e("s_mov_b32 s94, 0")
e("s_cmp_ge_u32 s2, 256")
e("s_cbranch_scc1 L_end")
e("v_lshrrev_b32 v2, 6, v0")
e("v_and_b32 v1, 63, v0")
e(f"v_readfirstlane_b32 s{sWAVE}, v2")
e(f"s_and_b32 s{sXCD}, s2, 7")
e(f"s_lshr_b32 s{sSLOT}, s2, 3")
e(f"s_and_b32 s{sRB}, s{sXCD}, 3")
e(f"s_lshl_b32 s{sRB}, s{sRB}, 2")
e(f"s_and_b32 s{sT}, s{sSLOT}, 3")
e(f"s_add_u32 s{sRB}, s{sRB}, s{sT}")
e(f"s_lshr_b32 s{sCB}, s{sXCD}, 2")
e(f"s_mul_i32 s{sCB}, s{sCB}, 6")
e(f"s_lshr_b32 s{sT+1}, s{sSLOT}, 2")
e(f"s_add_u32 s{sCB}, s{sCB}, s{sT+1}")
def kernargs_ready():
    e("s_waitcnt lgkmcnt(0)")
    if PROF:
        if DBGT:
            e("s_not_b32 s96, s98")
            e("v_writelane_b32 v255, s96, 1")
            e("v_writelane_b32 v255, s98, 2")
        else:
            e("v_writelane_b32 v255, s96, 0")
            e("v_writelane_b32 v255, s98, 31")
    srd(SX, pX, 2048 * 1152)
    srd(SW, pWQKV, 576 * 3456)
def late_srds():
    srd(SWS, pWS, WS_SIZE)
    srd(SOUT, pOUT, 2048 * 1152)
e(f"s_cmp_ge_u32 s{sSLOT}, 24")
e("s_cbranch_scc1 L_sphase")
e(f"s_cmp_lt_u32 s{sWAVE}, 4")
e("s_cbranch_scc1 L_compute")

c("---- P1 loader ----")
sLW, sSIG, sLS, sXB, sWB, sCNT = sT+2, sT+3, sT+4, sT+5, sT+6, sT+7
e(f"s_sub_u32 s{sLW}, s{sWAVE}, 4")
e("v_lshrrev_b32 v2, 3, v1")
e("v_mul_u32_u24 v2, 1152, v2")
e("v_lshrrev_b32 v3, 4, v1")
e(f"s_and_b32 s{sT+8}, s{sLW}, 1")
e(f"s_lshl_b32 s{sT+8}, s{sT+8}, 2")
e(f"v_add_u32 v3, s{sT+8}, v3")
e("v_and_b32 v4, 7, v1")
e("v_xor_b32 v3, v3, v4")
e("v_lshl_add_u32 v2, v3, 4, v2")
if ROT == "9":
    e(f"s_lshl_b32 s{sT}, s{sT}, 1")
    e(f"s_mul_i32 s{sSIG}, s{sT+1}, 3")
    e(f"s_add_u32 s{sSIG}, s{sSIG}, s{sT}")
    e(f"s_cmp_ge_u32 s{sT+1}, 3")
    e(f"s_addc_u32 s{sSIG}, s{sSIG}, 0")
    for _ in range(2):
        e(f"s_cmp_ge_u32 s{sSIG}, 9")
        e(f"s_cselect_b32 s{sT}, 9, 0")
        e(f"s_sub_u32 s{sSIG}, s{sSIG}, s{sT}")
elif ROT == "3":
    e(f"s_add_u32 s{sSIG}, s{sT}, s{sT+1}")
    for _ in range(2):
        e(f"s_cmp_ge_u32 s{sSIG}, 3")
        e(f"s_cselect_b32 s{sT}, 3, 0")
        e(f"s_sub_u32 s{sSIG}, s{sSIG}, s{sT}")
    e(f"s_mul_i32 s{sSIG}, s{sSIG}, 3")
elif ROT == "2":
    e(f"s_add_u32 s{sSIG}, s{sT}, s{sT+1}")
    e(f"s_and_b32 s{sSIG}, s{sSIG}, 1")
    e(f"s_lshl_b32 s{sSIG}, s{sSIG}, 2")
else:
    e(f"s_mov_b32 s{sSIG}, 0")
e(f"s_mul_i32 s{sXB}, s{sRB}, {128*1152}")
e(f"s_mul_i32 s{sT}, s{sLW}, 9216")
e(f"s_add_u32 s{sXB}, s{sXB}, s{sT}")
e(f"s_mul_i32 s{sWB}, s{sCB}, 288")
e(f"s_lshl_b32 s{sLS}, s{sLW}, 10")
e(f"s_lshl_b32 s{sT}, s{sLW}, 6")
e(f"v_add_u32 v5, s{sT}, v1")
for n in range(5):
    if n: e(f"v_add_u32 v5, 256, v5")
    divmod_const(6, 7, 5, 18, 64*20+63, sT)
    e(f"v_mul_u32_u24 v6, 3456, v6")
    e(f"v_lshl_add_u32 v{8+n}, v7, 4, v6")
e(f"s_mov_b32 s{sCNT}, 0")
e(f"v_mov_b32 v5, {CNT}")
e("v_mov_b32 v6, 0")
e("ds_write_b32 v5, v6")
kernargs_ready()
stamp(1)
lab("L_ld_loop")
e(f"s_lshl_b32 s{sT}, s{sSIG}, 7")
e(f"s_add_u32 s{sT}, s{sT}, s{sXB}")
e(f"s_mul_i32 s{sT+1}, s{sSIG}, {64*3456}")
e(f"s_add_u32 s{sT+1}, s{sT+1}, s{sWB}")
e(f"s_mov_b32 m0, s{sLS}")
for n in range(4):
    if n:
        e(f"s_add_u32 s{sT}, s{sT}, 36864")
        e(f"s_add_u32 m0, m0, 4096")
        e("s_nop 0")
    else:
        e("s_nop 0")
    if not NOLOAD and not NOX: e(f"buffer_load_dwordx4 v2, {s_(SX,4)}, s{sT} offen {XF_} lds")
for n in range(5):
    if n == 4:
        e(f"s_cmp_ge_u32 s{sLW}, 2")
        e("s_cbranch_scc1 L_ld_skip5")
    e(f"s_add_u32 m0, m0, 4096")
    e("s_nop 0")
    if not NOLOAD and not NOW: e(f"buffer_load_dwordx4 v{8+n}, {s_(SW,4)}, s{sT+1} offen {WF_} lds")
lab("L_ld_skip5")
e(f"s_add_u32 s{sSIG}, s{sSIG}, 1")
e(f"s_cmp_eq_u32 s{sSIG}, 9")
e(f"s_cselect_b32 s{sSIG}, 0, s{sSIG}")
e(f"s_add_u32 s{sLS}, s{sLS}, {SLOT}")
e(f"s_cmp_ge_u32 s{sLS}, {4*SLOT}")
e(f"s_cselect_b32 s{sT}, {4*SLOT}, 0")
e(f"s_sub_u32 s{sLS}, s{sLS}, s{sT}")
e(f"s_add_u32 s{sCNT}, s{sCNT}, 1")
e(f"s_cmp_lg_u32 s{sCNT}, 2")
e("s_cbranch_scc1 L_ld_n2")
stamp(2)
e("s_waitcnt vmcnt(8)")
e("s_barrier")
stamp(3)
lab("L_ld_n2")
e(f"s_cmp_lt_u32 s{sCNT}, 4")
e("s_cbranch_scc1 L_ld_loop")
lab("L_ld_nb0")
e(f"s_cmp_eq_u32 s{sCNT}, 9")
e("s_cbranch_scc1 L_ld_tail")
e("s_waitcnt vmcnt(16)")
e("s_barrier")
e("s_branch L_ld_loop")
lab("L_ld_tail")
srd(SW, pWO, 576 * 1152)
e(f"s_lshl_b32 s{sT}, s{sSLOT}, 2")
e(f"s_add_u32 s{sT}, s{sT}, s{sLW}")
e(f"s_mul_i32 s{sT}, s{sT}, {54*128}")
e("v_min_u32 v2, 53, v1")
e("v_lshlrev_b32 v2, 7, v2")
e(f"buffer_load_dword v60, v2, {s_(SW,4)}, s{sT} offen")
for n in (17, 9, 1):
    e(f"s_waitcnt vmcnt({n})")
    e("s_barrier")
stamp(4)
late_srds()
tag_issue(17, 18)
e(f"s_mov_b32 s{sISS}, 0")
e("v_lshrrev_b32 v2, 3, v1")
e(f"s_lshr_b32 s{sT}, s{sRB}, 1")
e(f"v_add_u32 v3, s{sT}, v2")
e(f"s_and_b32 s{sT}, s{sCB}, 3")
e(f"s_lshl_b32 s{sT}, s{sT}, 3")
e("v_and_b32 v4, 7, v1")
e(f"v_add_u32 v4, s{sT}, v4")
e("v_lshl_add_u32 v4, v3, 5, v4")
e("v_lshlrev_b32 v4, 7, v4")
e(f"s_lshr_b32 s{sT}, s{sCB}, 2")
e(f"s_lshl_b32 s{sT+1}, s{sT}, 4")
e(f"s_and_b32 s{sT+2}, s{sRB}, 1")
e(f"s_lshl_b32 s{sT+2}, s{sT+2}, 2")
e(f"s_add_u32 s{sT+1}, s{sT+1}, s{sT+2}")
e(f"v_add_u32 v4, s{sT+1}, v4")
e("v_lshlrev_b32 v5, 3, v2")
e("v_sub_u32 v4, v4, v5")
e(f"s_cmp_eq_u32 s{sT}, 0")
e(f"s_cselect_b32 s{sT}, 8, 0")
e(f"v_mul_u32_u24 v2, s{sT}, v2")
e("v_add_u32 v3, v3, v2")
e("v_subrev_u32 v3, 8, v3")
e("v_ashrrev_i32 v3, 31, v3")
e("v_bfi_b32 v19, v3, v4, 2.0")
e("s_barrier")
e("s_branch L_p2")

ACC = 64
def acc(tt, ct): return ACC + (ct * 4 + tt) * 4
def xf(p, tt): return 144 + 36 * p + 4 * tt
def wf(p, ct): return 160 + 36 * p + 4 * ct
XA = 2
WA = 6

def reads(p, ks, NT):
    wr = []
    for ct in range(NT):
        for wh in range(2):
            if ct < 4:
                off = ks * 9216 + wh * 4608 + 72 * (ct >> 1) + 40 * (ct & 1)
                wr.append(f"ds_read_b64_tr_b16 {v(wf(p,ct)+2*wh,2)}, v{WA+2*ks} offset:{off}")
            else:
                off = ks * 9216 + wh * 4608
                wr.append(f"ds_read_b64_tr_b16 {v(wf(p,ct)+2*wh,2)}, v{WA+2*ks+1} offset:{off}")
    xr = []
    for tt in range(4):
        for wh in range(2):
            xr.append(f"ds_read_b64 {v(xf(p,tt)+2*wh,2)}, v{XA+2*ks+wh} offset:{tt*2048}")
    return wr[:2] + xr + wr[2:]

def kstep(p, ks_next, NT, fill, late, late_at):
    rd = reads(1 - p, ks_next, NT)
    if NOREAD: rd = []
    rd = rd + list(fill)
    n = 0
    for ct in range(NT):
        for tt in range(4):
            a = acc(tt, ct)
            if not NOMFMA: e(f"v_mfma_f32_16x16x32_bf16 {v(a,4)}, {v(wf(p,ct),4)}, {v(xf(p,tt),4)}, {v(a,4)}")
            n += 1
            if n == late_at:
                assert not rd, rd
                for x in late: e(x)
            for _ in range(2):
                if rd: e(rd.pop(0))
    assert not rd

lab("L_compute")
c("---- P1 compute ----")
sMH, sNH, sDL, sIT, sSL = sT+2, sT+3, sT+4, sT+5, sT+6
e(f"s_and_b32 s{sMH}, s{sWAVE}, 1")
e(f"s_lshr_b32 s{sNH}, s{sWAVE}, 1")
e("v_and_b32 v18, 15, v1")
e("v_lshrrev_b32 v19, 4, v1")
e(f"s_lshl_b32 s{sT}, s{sMH}, 13")
e(f"v_lshl_add_u32 v10, v18, 7, s{sT}")
e("v_and_b32 v11, 1, v19")
e("v_lshl_add_u32 v10, v11, 3, v10")
e("v_lshrrev_b32 v11, 1, v19")
e("v_lshrrev_b32 v12, 1, v18")
e("v_xor_b32 v11, v11, v12")
for i in range(4):
    e(f"v_xor_b32 v12, {2*i}, v11")
    e(f"v_lshl_add_u32 v{XA+i}, v12, 4, v10")
e("v_lshrrev_b32 v10, 2, v1")
e("v_mul_u32_u24 v10, 288, v10")
e("v_and_b32 v11, 3, v1")
e(f"s_mul_i32 s{sT}, s{sNH}, 144")
e(f"s_add_u32 s{sT}, s{sT}, 16384")
e(f"v_lshl_add_u32 v{WA}, v11, 3, v10")
e(f"v_add_u32 v{WA}, s{sT}, v{WA}")
e("v_mul_u32_u24 v11, 72, v11")
e(f"v_add_u32 v{WA+1}, v10, v11")
e(f"v_add_u32 v{WA+1}, {16384+32}, v{WA+1}")
e(f"v_mov_b32 v{WA+2}, v{WA}")
e(f"v_mov_b32 v{WA+3}, v{WA+1}")
for r in range(ACC, ACC + 80): e(f"v_mov_b32 v{r}, 0")
VE, VXO = 13, 14
e(f"v_lshrrev_b32 v10, 1, v19")
e(f"v_lshlrev_b32 v{VE}, 15, v10")
e("v_and_b32 v10, 1, v19")
e(f"v_lshl_add_u32 v{VE}, v10, 8, v{VE}")
e(f"v_lshl_add_u32 v{VE}, v18, 4, v{VE}")
e(f"v_lshlrev_b32 v{VXO}, 15, v19")
e(f"v_lshl_add_u32 v{VXO}, v18, 4, v{VXO}")
kernargs_ready()
e(f"s_or_b32 s{sT}, s2, s{sWAVE}")
e(f"s_cmp_lg_u32 s{sT}, 0")
e("s_cbranch_scc1 L_notag")
e("v_mov_b32 v21, 0")
e(f"s_or_b32 s{sT+9}, s90, 1")
e(f"v_mov_b32 v20, s{sT+9}")
e("s_mov_b64 exec, 1")
e(f"global_store_dword v21, v20, {s_(pDBG,2)} sc1")
e("s_mov_b64 exec, -1")
lab("L_notag")
late_srds()
e(f"s_mov_b32 s{sISS}, 0")
e(f"s_mov_b32 s{sIT}, 0")
e(f"s_mov_b32 s{sSL}, 0")
e(f"s_cmp_eq_u32 s{sNH}, 0")
e("s_cbranch_scc0 L_cmp4")
for NT in (5, 4):
    if NT == 4: lab("L_cmp4")
    e("s_barrier")
    stamp(1)
    for r in reads(0, 0, NT): e(r)
    e("s_waitcnt lgkmcnt(0)")
    lab(f"L_cloop{NT}")
    fillA = [f"s_add_u32 s{sSL}, s{sSL}, 1", f"s_cmp_eq_u32 s{sSL}, 4", f"s_cselect_b32 s{sSL}, 0, s{sSL}",
             f"s_cselect_b32 s{sDL}, {(-4*SLOT) & 0xffffffff}, 0", f"s_add_u32 s{sDL}, s{sDL}, {SLOT}"] + \
            [f"v_add_u32 v{r}, s{sDL}, v{r}" for r in (XA, XA+1, WA, WA+1)]
    kstep(0, 1, NT, fillA, ["s_waitcnt lgkmcnt(0)", "s_barrier"], 4*NT - 1)
    fillB = [f"v_add_u32 v{r}, s{sDL}, v{r}" for r in (XA+2, XA+3, WA+2, WA+3)] + \
            [f"s_add_u32 s{sIT}, s{sIT}, 1", f"s_cmp_lt_u32 s{sIT}, 9"]
    kstep(1, 0, NT, fillB, ["s_waitcnt lgkmcnt(0)"], 4*NT - 1)
    e(f"s_cbranch_scc1 L_cloop{NT}")
    if NT == 5: e("s_branch L_cepi")
lab("L_cepi")
stamp(2)
tag_issue(17, 18)
sSO, sSC = sT+7, sT+9
assert sSC % 2 == 0
e(f"s_lshl_b32 s{sT}, s{sRB}, 11")
e(f"s_lshl_b32 s{sT+1}, s{sMH}, 10")
e(f"s_add_u32 s{sT}, s{sT}, s{sT+1}")
e(f"s_lshl_b32 s{sSO}, s{sCB}, 3")
e(f"s_lshl_b32 s{sT+1}, s{sNH}, 2")
e(f"s_add_u32 s{sSO}, s{sSO}, s{sT+1}")
e(f"s_lshl_b32 s{sSO}, s{sSO}, 16")
e(f"s_add_u32 s{sSO}, s{sSO}, s{sT}")
e(f"s_add_u32 s{sSO}, s{sSO}, {QKV}")
e(f"s_lshl_b32 s{sT+8}, s{sCB}, 17")
e(f"s_add_u32 s{sT+8}, s{sT+8}, s{sT}")
e(f"s_add_u32 s{sT+8}, s{sT+8}, {XP}")
e(f"s_cmp_lt_u32 s{sCB}, 4")
e("s_cbranch_scc0 L_noscale")
e(f"s_mov_b32 s{sSC}, {QSCALE}")
e(f"s_mov_b32 s{sSC+1}, {QSCALE}")
for r in range(ACC, ACC + 80, 2):
    e(f"v_pk_mul_f32 {v(r,2)}, {v(r,2)}, {s_(sSC,2)}")
lab("L_noscale")
q = 0
for ct in range(4):
    for pr in range(2):
        R = 20 + 4 * (q % 4); q += 1
        a, b = acc(2*pr, ct), acc(2*pr+1, ct)
        e(f"v_cvt_pk_bf16_f32 v{R}, v{a}, v{a+1}")
        e(f"v_cvt_pk_bf16_f32 v{R+2}, v{b}, v{b+1}")
        e(f"v_cvt_pk_bf16_f32 v{R+1}, v{a+2}, v{a+3}")
        e(f"v_cvt_pk_bf16_f32 v{R+3}, v{b+2}, v{b+3}")
        e("s_nop 0")
        e(f"v_permlane16_swap_b32 v{R}, v{R+2}")
        e(f"v_permlane16_swap_b32 v{R+1}, v{R+3}")
        e(f"buffer_store_dwordx4 {v(R,4)}, v{VE}, {s_(SWS,4)}, s{sSO} offen offset:{512*pr} sc1")
    e(f"s_add_u32 s{sSO}, s{sSO}, 65536")
e(f"s_cmp_eq_u32 s{sNH}, 0")
e("s_cbranch_scc0 L_noextra")
for tt in range(4):
    R = 36 + 4 * tt
    a = acc(tt, 4)
    e(f"v_cvt_pk_bf16_f32 v{R}, v{a}, v{a+1}")
    e(f"v_mov_b32 v{R+1}, 0x3f803f80")
    e(f"v_cvt_pk_bf16_f32 v{R+2}, v{a+2}, v{a+3}")
    e(f"v_mov_b32 v{R+3}, 0x3f803f80")
    e(f"buffer_store_dwordx4 {v(R,4)}, v{VXO}, {s_(SWS,4)}, s{sT+8} offen offset:{256*tt} sc1")
lab("L_noextra")
stamp(3)
e("s_branch L_p2")

lab("L_sphase")
if NOS: e("s_branch L_end")
e(f"s_mov_b32 s{sISS}, 8")

XR, WV, XS, PS, HS = 0, 36864, 40960, 43008, 147712
sS = sRB
sTOK = sCB
WT, XV, AC = 64, 160, 20
def gemv_regs(n, younger):
    for i in range(n):
        e(f"ds_read_u16 v{XV+i}, v7 offset:{16*i}")
        if i == 11: e("s_waitcnt lgkmcnt(0)")
    for i in range(8): e(f"v_mov_b32 v{AC+i}, 0")
    e("s_waitcnt lgkmcnt(0)")
    for i in range(n):
        if i % 3 == 0: e(f"s_waitcnt vmcnt({max(0, n-3-i) + younger})")
        e(f"v_lshlrev_b32 v28, 16, v{XV+i}")
        for k in range(4): e(f"v_dot2_f32_bf16 v{AC+2*k}, v{WT+4*i+k}, v{XV+i}, v{AC+2*k}")
        for k in range(4): e(f"v_dot2_f32_bf16 v{AC+2*k+1}, v{WT+4*i+k}, v28, v{AC+2*k+1}")
    e("s_nop 2")
    for i in range(4): e(f"v_permlane32_swap_b32 v{AC+i}, v{AC+i+4}")
    for i in range(4): e(f"v_add_f32 v{AC+i}, v{AC+i}, v{AC+i+4}")
    e("s_nop 0")
    for i in range(2): e(f"v_permlane16_swap_b32 v{AC+i}, v{AC+i+2}")
    for i in range(2): e(f"v_add_f32 v{AC+i}, v{AC+i}, v{AC+i+2}")
    e("s_nop 0")
    for i in range(2): e(f"v_add_f32_dpp v{AC+i}, v{AC+i}, v{AC+i} row_ror:8 row_mask:0xf bank_mask:0xf")
def col_of_lane(d, t):
    e(f"v_and_b32 v{d}, 7, v1")
    e(f"v_lshrrev_b32 v{t}, 4, v1")
    e(f"v_lshlrev_b32 v{t}, 1, v{t}")
    e(f"v_lshl_add_u32 v{d}, v{d}, 3, v{t}")
e(f"s_lshl_b32 s{sS}, s{sXCD}, 3")
e(f"s_add_u32 s{sS}, s{sS}, s{sSLOT}")
e(f"s_sub_u32 s{sS}, s{sS}, 24")
e("v_lshrrev_b32 v7, 3, v1")
e("v_mul_u32_u24 v6, 9216, v7")
e("v_and_b32 v8, 7, v1")
e("v_lshl_add_u32 v6, v8, 4, v6")
e("v_lshlrev_b32 v7, 1, v7")
e(f"v_add_u32 v7, {XS}, v7")
e(f"s_cmp_lt_u32 s{sWAVE}, 2")
e("s_cbranch_scc1 L_s_ctl")
c("---- S streamers (waves 2..7): gate / up thirds of the own 64-column block -> registers ----")
e(f"s_sub_u32 s{sT+2}, s{sWAVE}, 2")
e(f"s_cmp_ge_u32 s{sT+2}, 3")
e(f"s_cselect_b32 s{sT+3}, 3, 0")
e(f"s_sub_u32 s{sT+3}, s{sT+2}, s{sT+3}")
e(f"s_mul_i32 s{sT}, s{sT+3}, 384")
e(f"v_add_u32 v7, s{sT}, v7")
e(f"s_mul_i32 s{sT+3}, s{sT+3}, {192*9216}")
e(f"s_lshl_b32 s{sT}, s{sS}, 7")
e(f"s_add_u32 s{sT+3}, s{sT+3}, s{sT}")
e(f"s_getpc_b64 {s_(sT+5,2)}")
lab("L_pc")
e(f"s_sub_u32 s{sT+5}, s{sT+5}, L_pc-{NAME}_kernel")
e(f"s_subb_u32 s{sT+6}, s{sT+6}, 0")
e(f"s_lshl_b32 s{sT}, s{sT+2}, 6")
e(f"v_add_u32 v2, s{sT}, v1")
e("v_lshlrev_b32 v2, 7, v2")
e(f"v_min_u32 v2, L_end-{NAME}_kernel, v2")
e(f"global_load_dword v60, v2, {s_(sT+5,2)}")
kernargs_ready()
e(f"s_cmp_ge_u32 s{sT+2}, 3")
e(f"s_cselect_b32 s{SW}, s{pWU}, s{pWG}")
e(f"s_cselect_b32 s{SW+1}, s{pWU+1}, s{pWG+1}")
e(f"s_mov_b32 s{SW+2}, {576*9216}")
e("s_barrier")
for n in range(24):
    if n: e(f"s_add_u32 s{sT+3}, s{sT+3}, {8*9216}")
    e(f"buffer_load_dwordx4 {v(WT+4*n,4)}, v6, {s_(SW,4)}, s{sT+3} offen nt")
late_srds()
col_of_lane(8, 9)
e(f"s_lshl_b32 s{sT}, s{sT+2}, 8")
e(f"s_add_u32 s{sT}, s{sT}, {PS}")
e(f"v_lshl_add_u32 v8, v8, 2, s{sT}")
stamp(1)
e("s_barrier")
stamp(2)
gemv_regs(24, 0)
e("ds_write_b64 v8, v[20:21]")
e("s_waitcnt lgkmcnt(0)")
stamp(3)
e("s_barrier")
e("s_branch L_s_done")

lab("L_s_ctl")
c("---- S control waves (0,1) ----")
e(f"s_and_b32 s{sT+3}, s{sXCD}, 3")
e(f"s_lshl_b32 s{sT+3}, s{sT+3}, 9")
e(f"s_lshr_b32 s{sT}, s{sXCD}, 2")
e(f"s_lshl_b32 s{sT}, s{sT}, 8")
e(f"s_add_u32 s{sT+3}, s{sT+3}, s{sT}")
e(f"s_and_b32 s{sT}, s{sS}, 7")
e(f"s_lshl_b32 s{sT}, s{sT}, 5")
e(f"s_add_u32 s{sT+3}, s{sT+3}, s{sT}")
e(f"s_lshl_b32 s{sT}, s{sWAVE}, 4")
e(f"s_add_u32 s{sTOK}, s{sT+3}, s{sT}")
e(f"s_mul_i32 s{sT+3}, s{sTOK}, 1152")
e("v_lshlrev_b32 v2, 4, v1")
e("v_lshrrev_b32 v3, 3, v1")
e("v_lshrrev_b32 v4, 4, v1")
e("v_and_b32 v5, 7, v1")
e("v_xor_b32 v4, v4, v5")
e("v_mul_u32_u24 v3, 1152, v3")
e("v_lshl_add_u32 v3, v4, 4, v3")
e("v_add_u32 v3, 1024, v3")
e("v_xor_b32 v4, 64, v3")
e(f"s_mul_i32 m0, s{sWAVE}, 18432")
kernargs_ready()
for n in range(16):
    e(f"v_xor_b32 v{64+n}, {16*n}, v2")
    if n:
        e("s_add_u32 m0, m0, 1024")
        e(f"s_add_u32 s{sT+3}, s{sT+3}, 1152")
    e(f"buffer_load_dwordx4 v{64+n}, {s_(SX,4)}, s{sT+3} offen lds")
e("s_add_u32 m0, m0, 1024")
e(f"s_sub_u32 s{sT+3}, s{sT+3}, {15*1152}")
e(f"buffer_load_dwordx4 v3, {s_(SX,4)}, s{sT+3} offen lds")
e("s_add_u32 m0, m0, 1024")
e(f"s_add_u32 s{sT+3}, s{sT+3}, {8*1152}")
e(f"buffer_load_dwordx4 v4, {s_(SX,4)}, s{sT+3} offen lds")
e("v_lshlrev_b32 v3, 4, v1")
for k, p in enumerate((pWR, pGW)):
    srd(SW, p, 1152)
    e(f"s_mov_b32 m0, {WV + 2048*k}")
    e("s_nop 0")
    e(f"buffer_load_dwordx4 v3, {s_(SW,4)}, 0 offen lds")
    e(f"buffer_load_dwordx4 v3, {s_(SW,4)}, 0 offen offset:1024 lds")
e("s_barrier")
late_srds()
tag_issue(17, 18)
e("v_and_b32 v10, 15, v1")
e("v_lshrrev_b32 v11, 4, v1")
e("v_and_b32 v2, 1, v10")
e("v_lshlrev_b32 v2, 11, v2")
e("v_lshl_add_u32 v2, v11, 4, v2")
e(f"v_add_u32 v2, {WV}, v2")
e(f"s_mul_i32 s{sT}, s{sWAVE}, 18432")
e(f"v_lshl_add_u32 v3, v10, 10, s{sT}")
e("v_xor_b32 v4, v10, v11")
for k in range(4):
    e(f"v_xor_b32 v5, {4*k}, v4")
    e(f"v_lshl_add_u32 v{40+k}, v5, 4, v3")
e(f"s_add_u32 s{sT}, s{sT}, 16384")
e(f"v_lshl_add_u32 v3, v10, 7, s{sT}")
e("v_lshrrev_b32 v4, 1, v10")
e("v_xor_b32 v4, v4, v11")
e("v_xor_b32 v5, 4, v4")
e("v_lshl_add_u32 v44, v4, 4, v3")
e("v_lshl_add_u32 v45, v5, 4, v3")
e("s_waitcnt vmcnt(0)")
tag_check(17, 18)
e(f"v_mov_b32 v17, s{sTAG}")
stamp(1)
for ks in range(18):
    e(f"ds_read_b128 {v(64+8*ks,4)}, v2 offset:{ks*64}")
    e(f"ds_read_b128 {v(68+8*ks,4)}, v{40+(ks&3)} offset:{(ks>>2)*256}" if ks < 16 else f"ds_read_b128 {v(68+8*ks,4)}, v{44+(ks&1)}")
    if ks % 6 == 5:
        e("s_waitcnt lgkmcnt(0)")
        for k2 in range(ks-5, ks+1):
            e(f"v_mfma_f32_16x16x32_bf16 v[20:23], {v(64+8*k2,4)}, {v(68+8*k2,4)}, {'0' if k2 == 0 else 'v[20:23]'}")
e(f"s_mov_b32 s{sT}, s{sTOK}")
e(f"v_add_u32 v24, s{sT}, v10")
e("s_nop 6")
e("v_cvt_pk_bf16_f32 v20, v20, v20")
e("v_lshrrev_b32 v20, 16, v20")
e("v_bfe_i32 v22, v20, 15, 1")
e("v_and_b32 v22, 0x7fff, v22")
e("v_xor_b32 v20, 0x8000, v20")
e("v_xor_b32 v20, v20, v22")
e("v_sub_u32 v22, 2047, v24")
e("v_lshl_add_u32 v20, v20, 16, v22")
bf16r(21)
sigmoid(26, 21)
bf16r(26)
e("v_mov_b32 v27, v17")
e("v_lshlrev_b32 v24, 3, v24")
row_max_u32(20)
e("v_mov_b32 v21, v17")
e(f"s_lshr_b32 s{sT}, s{sT}, 1")
e(f"s_add_u32 s{sT}, s{sT}, {CAND}")
e(f"s_mov_b32 s{sT+1}, {GG}")
e("s_mov_b64 exec, 1")
e(f"buffer_store_dwordx2 v[20:21], v18, {s_(SWS,4)}, s{sT} offen sc1")
e("s_mov_b64 exec, 0xffff")
e(f"buffer_store_dwordx2 v[26:27], v24, {s_(SWS,4)}, s{sT+1} offen sc1")
e("s_mov_b64 exec, -1")
e(f"s_cmp_eq_u32 s{sWAVE}, 0")
e("s_cbranch_scc0 L_s_nocand")
cand_issue(20, 24)
e("s_waitcnt vmcnt(0)")
cand_check(20, 24, 17)
e(f"s_mul_i32 s{sT}, s{sIDX}, 1152")
e(f"s_mov_b32 m0, {XS}")
e("s_nop 0")
e(f"buffer_load_dwordx4 v24, {s_(SX,4)}, s{sT} offen lds")
e(f"buffer_load_dwordx4 v24, {s_(SX,4)}, s{sT} offen offset:1024 lds")
e("s_waitcnt vmcnt(0)")
lab("L_s_nocand")
stamp(2)
e(f"s_cmp_eq_u32 s{sWAVE}, 0")
e(f"s_cselect_b32 s{SW}, s{pWG}, s{pWU}")
e(f"s_cselect_b32 s{SW+1}, s{pWG+1}, s{pWU+1}")
e(f"s_mov_b32 s{SW+2}, {576*9216}")
e(f"s_and_b32 s{sT}, s{sS}, 7")
e(f"s_mul_i32 s{sT+1}, s{sT}, 144")
e(f"v_add_u32 v7, s{sT+1}, v7")
e(f"s_mul_i32 s{sT}, s{sT}, {72*9216}")
e(f"s_lshr_b32 s{sT+1}, s{sS}, 3")
e(f"s_lshl_b32 s{sT+1}, s{sT+1}, 7")
e(f"s_add_u32 s{sT}, s{sT}, s{sT+1}")
e(f"s_add_u32 s{sT}, s{sT}, {64*128}")
for n in range(9):
    if n: e(f"s_add_u32 s{sT}, s{sT}, {8*9216}")
    e(f"buffer_load_dwordx4 {v(WT+4*n,4)}, v6, {s_(SW,4)}, s{sT} offen nt")
col_of_lane(8, 9)
e("v_lshlrev_b32 v8, 3, v8")
e(f"s_lshl_b32 s{sT+2}, s{sS}, 10")
e(f"s_lshl_b32 s{sT+1}, s{sWAVE}, 9")
e(f"s_add_u32 s{sT+2}, s{sT+2}, s{sT+1}")
e(f"s_add_u32 s{sT+2}, s{sT+2}, {PP}")
e("s_barrier")
gemv_regs(9, 0)
e("v_mov_b32 v22, v21")
e("v_mov_b32 v21, v17")
e("v_mov_b32 v23, v17")
e(f"buffer_store_dwordx4 v[20:23], v8, {s_(SWS,4)}, s{sT+2} offen sc1")
stamp(3)
e("s_barrier")
e(f"s_cmp_eq_u32 s{sWAVE}, 0")
e("s_cbranch_scc0 L_s_done")
e("v_lshlrev_b32 v8, 2, v1")
for k in range(6): e(f"ds_read_b32 v{30+k}, v8 offset:{PS+256*k}")
e("v_lshlrev_b32 v8, 1, v1")
e(f"v_add_u32 v8, {HS}, v8")
e("s_waitcnt lgkmcnt(0)")
e("v_add_f32 v30, v30, v31")
e("v_add_f32 v33, v33, v34")
e("v_add_f32 v30, v30, v32")
e("v_add_f32 v33, v33, v35")
bf16r(30)
bf16r(33)
sigmoid(31, 30)
e("v_mul_f32 v30, v30, v31")
bf16r(30)
e("v_mul_f32 v30, v30, v33")
e("v_cvt_pk_bf16_f32 v30, v30, v30")
e("ds_write_b16 v8, v30")
lab("L_s_done")
e("s_waitcnt lgkmcnt(0)")
e("s_barrier")
stamp(4)
e("v_lshrrev_b32 v220, 3, v1")
e("v_lshlrev_b32 v220, 10, v220")
e("v_bfe_u32 v2, v1, 2, 1")
e("v_lshl_add_u32 v220, v2, 9, v220")
e("v_and_b32 v2, 3, v1")
e("v_lshl_add_u32 v220, v2, 4, v220")
e(f"s_lshr_b32 s{sT}, s{sS}, 3")
e(f"s_lshl_b32 s{sT}, s{sT}, 13")
e(f"s_and_b32 s{sT+1}, s{sS}, 7")
e(f"s_lshl_b32 s{sT+1}, s{sT+1}, 6")
e(f"s_add_u32 s{sT}, s{sT}, s{sT+1}")
e(f"s_add_u32 s{sT}, s{sT}, {PP}")
e(f"v_add_u32 v220, s{sT}, v220")
divmod_const(2, 3, 1, 9, 63, sT)
e(f"s_mul_i32 s{sT}, s{sWAVE}, 144")
e(f"v_lshl_add_u32 v3, v3, 4, s{sT}")
e(f"v_lshlrev_b32 v221, 1, v2")
e(f"s_lshl_b32 s{sT+1}, s{sS}, 6")
e(f"s_mul_i32 s{sT+2}, s{sS}, 56")
e(f"s_sub_u32 s{sT+2}, 4032, s{sT+2}")
e("v_subrev_u32 v6, 7, v2")
e("v_ashrrev_i32 v6, 31, v6")
for k, n in enumerate((0, 9, 10)):
    e(f"v_add_u32 v4, {7*n}, v2")
    e("v_subrev_u32 v5, 64, v4")
    e("v_ashrrev_i32 v5, 31, v5")
    e(f"v_bfi_b32 v5, v5, 0, s{sT+2}")
    e(f"v_add3_u32 v5, v5, v4, s{sT+1}")
    e("v_mul_u32_u24 v5, 1152, v5")
    e("v_add_u32 v5, v5, v3")
    e("v_subrev_u32 v4, 72, v4")
    e("v_ashrrev_i32 v4, 31, v4")
    e("v_and_b32 v4, v4, v6")
    e(f"v_bfi_b32 v{156+k}, v4, v5, 2.0")
tag_issue(17, 18)
e(f"buffer_load_dwordx4 v[216:219], v220, {s_(SWS,4)}, 0 offen sc1")

vQ, vL16, vKA, vKX, vVA, vHM, vQX, vOX = 2, 3, 4, 5, 6, 7, 8, 9
Q1, Q2, K1, K2, VF, PB, MX = 20, 24, 28, 32, 36, 44, 52
SB0, SB1, OA, M8, M0, BV = 64, 80, 96, 112, 128, 144
sOQ, sOK, sOKX, sBS = sT+10, sT+11, sT+12, sT+13
def SBUF(d): return SB0 if d % 2 == 0 else SB1

def cnt_wait(t, n):
    lp = ul("cnt")
    e(f"v_mov_b32 v12, {CNT}")
    e(f"s_mov_b32 s{n}, 0")
    lab(lp)
    e("ds_read_b32 v13, v12")
    bound(n)
    e("s_waitcnt lgkmcnt(0)")
    e(f"v_readfirstlane_b32 s{t}, v13")
    e(f"s_cmp_lt_u32 s{t}, 4")
    e(f"s_cbranch_scc1 {lp}")

def bulk_wo():
    e(f"s_sub_u32 s{sT}, s{sWAVE}, 4")
    e(f"s_cmp_lt_u32 s{sT}, 3")
    e("s_cbranch_scc0 L_nowo")
    srd(SW, pWO, 576 * 1152)
    e(f"s_lshr_b32 s{sT+1}, s{sSLOT}, 2")
    e(f"s_mul_i32 s{sT+1}, s{sT+1}, 144")
    e(f"s_mul_i32 s{sT+2}, s{sT}, {192*1152}")
    e(f"s_add_u32 s{sT+1}, s{sT+1}, s{sT+2}")
    e(f"s_mul_i32 s{sT}, s{sT}, 30720")
    e(f"s_add_u32 m0, s{sT}, {BULK}")
    for n in range(5):
        if n: e(f"v_add_u32 v10, {64*n}, v1")
        divmod_const(11, 12, 10 if n else 1, 10, 319, sT)
        e("v_mul_u32_u24 v11, 1152, v11")
        e(f"v_lshl_add_u32 v{2+n}, v12, 4, v11")
    e(f"s_cmp_eq_u32 s{sISS}, 0")
    e("s_cbranch_scc0 L_wogo")
    cnt_wait(sT, sT+2)
    lab("L_wogo")
    e(f"s_mov_b32 s{sT}, 0")
    lab("L_wo")
    for n in range(5):
        e(f"buffer_load_dwordx4 v{2+n}, {s_(SW,4)}, s{sT+1} offen lds")
        e("s_add_u32 m0, m0, 1024")
        if n < 4: e("s_nop 0")
    e(f"s_add_u32 s{sT+1}, s{sT+1}, {32*1152}")
    e(f"s_add_u32 s{sT}, s{sT}, 1")
    e(f"s_cmp_lt_u32 s{sT}, 6")
    e("s_cbranch_scc1 L_wo")
    lab("L_nowo")

def down_issue(ns):
    sk = ul("nodown")
    e(f"s_cmp_eq_u32 s{sISS}, 0")
    e(f"s_cbranch_scc1 {sk}")
    for n in ns:
        if 0 < n < 9: e(f"s_mov_b32 s{sT}, {n*7*1152}")
        e(f"buffer_load_dwordx4 {v(DW+4*n,4)}, v{156 + max(0, n-8)}, {s_(SA,4)}, {'s%d' % sT if 0 < n < 9 else '0'} offen nt")
    lab(sk)
DW = 160

lab("L_p2")
bulk_wo()
e(f"s_and_b32 s{sT}, s{sSLOT}, 3")
e(f"s_lshl_b32 s{sH}, s{sXCD}, 2")
e(f"s_add_u32 s{sH}, s{sH}, s{sT}")
e(f"s_lshr_b32 s{sCS}, s{sSLOT}, 2")
e(f"s_add_u32 s{sJ}, s{sCS}, 1")
e(f"s_and_b32 s{sJ}, s{sJ}, 7")
e(f"s_sub_u32 s{sI}, 11, s{sWAVE}")
e(f"s_cmp_lt_u32 s{sWAVE}, 4")
e(f"s_cselect_b32 s{sI}, s{sWAVE}, s{sI}")
e(f"s_lshl_b32 s{sTB}, s{sT}, 6")
e(f"s_and_b32 s{sT}, s{sXCD}, 3")
e(f"s_lshl_b32 s{sT}, s{sT}, 9")
e(f"s_add_u32 s{sTB}, s{sTB}, s{sT}")
e(f"s_lshr_b32 s{sT}, s{sXCD}, 2")
e(f"s_lshl_b32 s{sT}, s{sT}, 8")
e(f"s_add_u32 s{sTB}, s{sTB}, s{sT}")
e(f"s_sub_u32 s{sDMIN}, 8, s{sI}")
e(f"s_cmp_eq_u32 s{sJ}, 0")
e(f"s_cselect_b32 s{sDMIN}, s{sDMIN}, 0")
e(f"s_lshl_b32 s{sT+2}, s{sJ}, 1")
e(f"s_lshr_b32 s{sT+3}, s{sWAVE}, 1")
e(f"s_add_u32 s{sT+3}, s{sT+3}, s{sT+2}")
e(f"s_sub_u32 s{sT+3}, s{sT+3}, 2")
e(f"s_lshl_b32 s{sT+6}, s{sJ}, 12")
e(f"s_lshl_b32 s{sT+7}, s{sI}, 9")
e(f"s_add_u32 s{sOQ}, s{sT+6}, s{sT+7}")
e(f"s_lshl_b32 s{sT+7}, s{sWAVE}, 10")
e(f"s_add_u32 s{sT+6}, s{sT+6}, s{sT+7}")
e(f"s_sub_u32 s{sT+6}, s{sT+6}, 4096")
e(f"s_lshl_b32 s{sT+7}, s{sH}, 16")
e(f"s_add_u32 s{sOK}, s{sT+6}, s{sT+7}")
e(f"s_add_u32 s{sOK}, s{sOK}, {QKV + 32*65536}")
e(f"s_lshr_b32 s{sT+8}, s{sH}, 1")
e(f"s_lshl_b32 s{sT+8}, s{sT+8}, 15")
e(f"s_add_u32 s{sOKX}, s{sT+6}, s{sT+8}")
e(f"s_add_u32 s{sOKX}, s{sOKX}, {XP + 16*32768}")
e(f"s_cmp_lt_i32 s{sT+3}, 0")
e(f"s_cselect_b32 s{sOK}, {BIGOFF}, s{sOK}")
e(f"s_cselect_b32 s{sOKX}, {BIGOFF}, s{sOKX}")
e("v_and_b32 v10, 31, v1")
e("v_lshrrev_b32 v11, 5, v1")
e(f"v_lshlrev_b32 v{vL16}, 4, v1")
e(f"v_lshlrev_b32 v{vQ}, 15, v11")
e(f"v_lshl_add_u32 v{vQ}, v10, 4, v{vQ}")
e(f"v_lshlrev_b32 v{vKA}, 13, v11")
e(f"v_lshl_add_u32 v{vKA}, v10, 4, v{vKA}")
e(f"s_lshl_b32 s{sT}, s{sI}, 9")
e(f"v_add_u32 v{vKA}, s{sT}, v{vKA}")
e(f"s_and_b32 s{sT+2}, s{sH}, 1")
e(f"s_lshl_b32 s{sT+2}, s{sT+2}, 3")
e(f"s_add_u32 s{sT+3}, s{sT}, s{sT+2}")
e(f"s_add_u32 s{sT+4}, s{sT+3}, {KX}")
e(f"v_lshl_add_u32 v{vKX}, v10, 4, s{sT+4}")
e(f"v_subrev_u32 v{vHM}, 1, v11")
e(f"v_lshlrev_b32 v12, 30, v11")
e(f"v_lshl_add_u32 v{vQX}, v10, 4, v12")
e(f"v_lshl_add_u32 v{vOX}, v10, 2, v12")
e("v_bfe_u32 v12, v1, 2, 2")
e("v_lshl_add_u32 v12, v11, 2, v12")
e("v_lshlrev_b32 v12, 4, v12")
e("v_bfe_u32 v13, v1, 1, 1")
e(f"v_mul_u32_u24 v13, {VP1-VP0}, v13")
e("v_and_b32 v14, 1, v1")
e("v_lshl_add_u32 v13, v14, 3, v13")
e(f"v_add_u32 v13, {VP0}, v13")
e(f"s_add_u32 s{sT+4}, s{sT+2}, {VX}")
e(f"v_sub_u32 v14, s{sT+4}, v13")
e("v_bfe_u32 v15, v1, 4, 1")
e("v_mul_u32_u24 v14, v14, v15")
e("v_add_u32 v13, v13, v14")
e(f"v_add3_u32 v{vVA}, v12, v13, s{sT}")
e("v_lshlrev_b32 v12, 2, v11")
e("v_sub_u32 v12, v10, v12")
e(f"s_mov_b32 s{sT}, {NEGBIG}")
for r in range(16):
    ko = 8 * (r >> 2) + (r & 3)
    e(f"v_subrev_u32 v13, {ko}, v12")
    e(f"v_ashrrev_i32 v13, 31, v13")
    e(f"v_and_b32 v{M8+r}, s{sT}, v13")
    e(f"v_xor_b32 v{M0+r}, s{sT}, v{M8+r}")
for r in (Q2+1, Q2+2, Q2+3, K2+2, K2+3): e(f"v_mov_b32 v{r}, 0")
for r in range(16): e(f"v_mov_b32 v{OA+r}, 0")
srd(SA, pWD, 4608 * 1152)
e("s_waitcnt vmcnt(0)")
e(f"s_or_b32 s{sT}, s{sISS}, s{sWAVE}")
e(f"s_cmp_lt_u32 s{sT}, 4")
e("s_cbranch_scc0 L_nocnt")
e(f"v_mov_b32 v12, {CNT}")
e("v_mov_b32 v13, 1")
e("s_mov_b64 exec, 1")
e("ds_add_u32 v12, v13")
e("s_mov_b64 exec, -1")
lab("L_nocnt")
tag_check(17, 18)
e(f"v_mov_b32 v17, s{sTAG}")
stamp(5)
if STOP == "p1": e("s_branch L_fin")
e(f"s_cmp_eq_u32 s{sWAVE}, 7")
e("s_cbranch_scc0 L_poll1d")
e(f"s_cmp_eq_u32 s{sISS}, 0")
e("s_cbranch_scc0 L_nosend1")
cnt_wait(sT, sT+1)
e("s_mov_b64 exec, 0xffff")
e(f"buffer_store_dword v17, v19, {s_(SWS,4)}, 0 offen sc1")
stamp(17)
lab("L_nosend1")
e("s_mov_b64 exec, 0x3ff")
e(f"s_lshl_b32 s{sT}, s{sJ}, 5")
e(f"s_add_u32 s{sT}, s{sT}, s{sH}")
e(f"s_lshl_b32 s{sT}, s{sT}, 7")
e(f"s_movk_i32 s{sT+3}, 0x3ff")
e(f"s_cmp_eq_u32 s{sJ}, 0")
e(f"s_cselect_b32 s{sT+3}, 0x333, s{sT+3}")
e("v_lshlrev_b32 v16, 2, v1")
e(f"s_mov_b32 s{sT+1}, 0")
lab("L_poll1")
e(f"buffer_load_dword v12, v16, {s_(SWS,4)}, s{sT} offen sc1")
e("s_waitcnt vmcnt(0)")
e("v_cmp_eq_u32 vcc, v17, v12")
e(f"s_and_b32 s{sT+4}, vcc_lo, s{sT+3}")
e(f"s_cmp_eq_u32 s{sT+4}, s{sT+3}")
e("s_cbranch_scc1 L_poll1x")
bound(sT+1)
e("s_branch L_poll1")
lab("L_poll1x")
e("s_mov_b64 exec, -1")
lab("L_poll1d")
e("s_barrier")
stamp(6)
e(f"s_lshl_b32 s{sT}, s{sH}, 16")
e(f"s_add_u32 s{sT}, s{sT}, s{sOQ}")
e(f"s_add_u32 s{sT}, s{sT}, {QKV}")
e(f"buffer_load_dwordx4 {v(Q1,4)}, v{vQ}, {s_(SWS,4)}, s{sT} offen sc1")
e(f"s_add_u32 s{sT}, s{sT+8}, s{sOQ}")
e(f"s_add_u32 s{sT}, s{sT}, s{sT+2}")
e(f"s_add_u32 s{sT}, s{sT}, {XP}")
e(f"buffer_load_dword v{Q2}, v{vQX}, {s_(SWS,4)}, s{sT} offen sc1")
e(f"s_lshl_b32 s{sT+1}, s{sWAVE}, 10")
for (ld, so, add) in ((KP0, sOK, 0), (KP1, sOK, 32768), (KX, sOKX, 0), (VP0, sOK, 32*65536), (VP1, sOK, 32*65536+32768), (VX, sOKX, 16*32768)):
    e(f"s_add_u32 m0, s{sT+1}, {ld}")
    e(f"s_add_u32 s{sT}, s{so}, {add}")
    e(f"buffer_load_dwordx4 v{vL16}, {s_(SWS,4)}, s{sT} offen sc1 lds")
e("s_waitcnt vmcnt(3)")
e("s_barrier")
stamp(7)
down_issue(range(0, 4))

def kread(d):
    e(f"ds_read_b128 {v(K1,4)}, v{vKA} offset:{d*512}")
    e(f"ds_read_b64 {v(K2,2)}, v{vKX} offset:{d*512}")
def qk(d):
    S = SBUF(d)
    cin = v(M8,16) if d == 8 else (v(M0,16) if d == 0 else "0")
    e(f"v_mfma_f32_32x32x16_bf16 {v(S,16)}, {v(K1,4)}, {v(Q1,4)}, {cin}")
    e(f"v_mfma_f32_32x32x16_bf16 {v(S,16)}, {v(K2,4)}, {v(Q2,4)}, {v(S,16)}")

c("pass 1: exact row max")
kread(8)
e(f"v_mov_b32 v{MX}, {NEGBIG}")
e(f"v_mov_b32 v{MX+1}, {NEGBIG}")
e("s_waitcnt lgkmcnt(0)")
qk(8)
kread(7)
e("s_nop 7")
for d in range(8, -1, -1):
    if d > 0:
        e("s_waitcnt lgkmcnt(0)")
        qk(d - 1)
        if d > 1: kread(d - 2)
        else: e("s_nop 1")
    else:
        e("s_nop 4")
    S = SBUF(d)
    for r in range(8):
        e(f"v_max3_f32 v{MX + (r & 1)}, v{MX + (r & 1)}, v{S+2*r}, v{S+2*r+1}")
    if d > 0:
        e(f"s_cmp_eq_u32 s{sDMIN}, {d}")
        e("s_cbranch_scc1 L_p1done")
lab("L_p1done")
e(f"v_max_f32 v{MX}, v{MX}, v{MX+1}")
e(f"s_waitcnt lgkmcnt(0)")
kread(8)
e(f"v_mov_b32 v{MX+1}, v{MX}")
e("s_nop 1")
e(f"v_permlane32_swap_b32 v{MX}, v{MX+1}")
e(f"v_max_f32 v{MX}, v{MX}, v{MX+1}")
e(f"v_sub_f32 v{MX}, 0, v{MX}")
e(f"v_cvt_pk_bf16_f32 v{MX+1}, v{MX}, v{MX}")
e(f"v_lshlrev_b32 v{MX+1}, 16, v{MX+1}")
e(f"v_sub_f32 v{MX+1}, v{MX}, v{MX+1}")
e(f"v_cvt_pk_bf16_f32 v{MX}, v{MX}, v{MX+1}")
e(f"v_and_b32 v{Q2+1}, v{vHM}, v{MX}")
stamp(8)
e(f"s_cmp_eq_u32 s{sISS}, 0")
e("s_cbranch_scc0 L_vw4")
e("s_waitcnt vmcnt(0)")
lab("L_vw4")
e("s_waitcnt vmcnt(4) lgkmcnt(0)")
e("s_barrier")
stamp(9)
down_issue(range(4, 8))
c("pass 2")
qk(8)
kread(7)
e("s_nop 5")
for d in range(8, -1, -1):
    for u in range(2):
        for wh in range(2):
            e(f"ds_read_b64_tr_b16 {v(VF+4*u+2*wh,2)}, v{vVA} offset:{d*512+u*256+wh*128}")
    if d > 0:
        e("s_waitcnt lgkmcnt(4)")
        qk(d - 1)
        if d > 1: kread(d - 2)
    S = SBUF(d)
    nk = 2 if d > 1 else 0
    for u in range(2):
        b = S + 8*u
        seq = [f"v_exp_f32 v{b}, v{b}", f"v_exp_f32 v{b+1}, v{b+1}", f"v_exp_f32 v{b+2}, v{b+2}"]
        for k in range(4):
            seq.append(f"v_cvt_pk_bf16_f32 v{PB+4*u+k}, v{b+2*k}, v{b+2*k+1}")
            for r in (2*k+3, 2*k+4):
                if r < 8: seq.append(f"v_exp_f32 v{b+r}, v{b+r}")
        seq.insert(len(seq)-1, f"s_waitcnt lgkmcnt({nk})" if u == 0 else "s_nop 0")
        for x in seq: e(x)
        e("s_nop 1")
        e(f"v_mfma_f32_32x32x16_bf16 {v(OA,16)}, {v(VF+4*u,4)}, {v(PB+4*u,4)}, {v(OA,16)}")
    if d > 0:
        e(f"s_cmp_eq_u32 s{sDMIN}, {d}")
        e("s_cbranch_scc1 L_p2done")
lab("L_p2done")
down_issue(range(8, 11))
e(f"s_lshl_b32 s{sT}, s{sH}, 16")
e(f"s_add_u32 s{sT}, s{sT}, s{sOQ}")
e(f"s_add_u32 s{sT}, s{sT}, {OM}")
e(f"s_lshl_b32 s{sT+1}, s{sH}, 13")
e(f"s_lshr_b32 s{sT+2}, s{sOQ}, 2")
e(f"s_add_u32 s{sT+1}, s{sT+1}, s{sT+2}")
e(f"s_add_u32 s{sT+1}, s{sT+1}, {OX}")
e("s_nop 4")
e(f"v_rcp_f32 v{MX}, v{OA+10}")
e("s_nop 0")
for r in range(10): e(f"v_mul_f32 v{OA+r}, v{MX}, v{OA+r}")
for k in range(5): e(f"v_cvt_pk_bf16_f32 v{PB+k}, v{OA+2*k}, v{OA+2*k+1}")
e(f"buffer_store_dwordx4 {v(PB,4)}, v{vQ}, {s_(SWS,4)}, s{sT} offen sc1")
e(f"buffer_store_dword v{PB+4}, v{vOX}, {s_(SWS,4)}, s{sT+1} offen sc1")
stamp(10)

vOM, vOXL, vWM, vWX, vRW, vT1, vT2, vX1, vX2, vF2, vG1, vG2 = 2, 3, 4, 5, 6, 7, 8, 9, 10, 11, 14, 15
X1, X2, G1, G2, CD = 20, 24, 28, 30, 32
OF, A3, WO = 36, 72, 92
sTT, sKH, sHASY = sT+10, sT+11, sT+12
e(f"s_and_b32 s{sTT}, s{sWAVE}, 3")
e(f"s_lshr_b32 s{sKH}, s{sWAVE}, 2")
e(f"s_mul_i32 s{sT}, s{sTB}, 1152")
e(f"s_mul_i32 s{sT+1}, s{sCS}, 144")
e(f"s_add_u32 s{sT}, s{sT}, s{sT+1}")
e(f"s_lshl_b32 s{sT+1}, s{sTB}, 3")
e(f"s_add_u32 s{sT+1}, s{sT+1}, {GG}")
e(f"s_cmp_eq_u32 s{sWAVE}, 7")
e(f"s_cselect_b32 s{sT+2}, 0, {BIGOFF}")
for (tau0, vt, vx, vg) in ((None, vT1, vX1, vG1), (512, vT2, vX2, vG2)):
    if tau0 is None: src = 0
    else:
        e(f"v_add_u32 v16, {tau0}, v1"); src = 16
    divmod_const(12, 13, src, 9, 575, sT)
    e(f"v_mul_u32_u24 v{vt}, {RP}, v12")
    e(f"v_lshl_add_u32 v{vt}, v13, 5, v{vt}")
    e(f"v_mul_u32_u24 v{vx}, 1152, v12")
    e(f"v_lshl_add_u32 v{vx}, v13, 4, v{vx}")
    e(f"v_add_u32 v{vx}, s{sT}, v{vx}")
    e(f"v_lshl_add_u32 v{vg}, v12, 3, s{sT+1}")
    if tau0 is not None:
        e(f"v_add_u32 v{vx}, s{sT+2}, v{vx}")
e(f"buffer_load_dwordx4 {v(X1,4)}, v{vX1}, {s_(SX,4)}, 0 offen")
e(f"buffer_load_dwordx4 {v(X2,4)}, v{vX2}, {s_(SX,4)}, 0 offen")
e(f"buffer_load_dwordx2 {v(G1,2)}, v{vG1}, {s_(SWS,4)}, 0 offen sc1")
e(f"buffer_load_dwordx2 {v(G2,2)}, v{vG2}, {s_(SWS,4)}, 0 offen sc1")
cand_issue(CD, 19)
e("v_and_b32 v12, 15, v1")
e("v_lshrrev_b32 v13, 4, v1")
e(f"v_lshlrev_b32 v{vOM}, 15, v13")
e(f"v_lshl_add_u32 v{vOXL}, v12, 2, v{vOM}")
e(f"v_lshl_add_u32 v{vOM}, v12, 4, v{vOM}")
e(f"s_lshl_b32 s{sT}, s{sTT}, 4")
e(f"v_add_u32 v{vRW}, s{sT}, v12")
e(f"v_mul_u32_u24 v{vRW}, {RP}, v{vRW}")
e(f"v_lshl_add_u32 v{vRW}, v13, 4, v{vRW}")
e(f"s_mul_i32 s{sT}, s{sKH}, {R1-R0}")
e(f"v_add_u32 v{vRW}, s{sT}, v{vRW}")
e(f"s_lshl_b32 s{sT+1}, s{sTT}, 4")
e(f"s_add_u32 s{sT+3}, s{sTB}, s{sT+1}")
e("v_bfe_u32 v16, v1, 2, 2")
e(f"v_mul_u32_u24 v{vWX}, 72, v13")
e(f"v_add3_u32 v{vWX}, v{vWX}, v16, 16")
e(f"v_lshrrev_b32 v{vWM}, 1, v13")
e(f"v_mul_u32_u24 v{vWM}, 20, v{vWM}")
e("v_and_b32 v13, 1, v13")
e("v_lshl_add_u32 v13, v13, 2, v16")
e(f"v_add_u32 v{vWM}, v{vWM}, v13")
e("v_and_b32 v13, 3, v1")
e("v_lshlrev_b32 v13, 3, v13")
e(f"s_mul_i32 s{sT}, s{sKH}, {288*160}")
e(f"s_add_u32 s{sT}, s{sT}, {BULK}")
e(f"v_add_u32 v13, s{sT}, v13")
e(f"s_movk_i32 s{sT}, 160")
e(f"v_mad_u32_u24 v{vWM}, v{vWM}, s{sT}, v13")
e(f"v_mad_u32_u24 v{vWX}, v{vWX}, s{sT}, v13")
e("s_waitcnt vmcnt(0)")
stamp(11)
e("s_barrier")
e(f"s_cmp_eq_u32 s{sWAVE}, 7")
e("s_cbranch_scc0 L_nosend2")
e(f"s_lshl_b32 s{sT}, s{sJ}, 12")
e(f"s_lshl_b32 s{sT+1}, s{sH}, 2")
e(f"s_add_u32 s{sT}, s{sT}, s{sT+1}")
e(f"s_add_u32 s{sT}, s{sT}, {F2}")
e(f"v_lshlrev_b32 v12, 7, v1")
e("s_mov_b64 exec, 0xffffffff")
e(f"buffer_store_dword v17, v12, {s_(SWS,4)}, s{sT} offen sc1")
e("s_mov_b64 exec, -1")
lab("L_nosend2")
cand_check(CD, 19, 17)
e(f"s_sub_u32 s{sHASY}, s{sIDX}, s{sTB}")
e(f"s_cmp_eq_u32 s{sISS}, 0")
e("s_cbranch_scc1 L_p3_main")

c("---- S workgroups: down projection of the routed token ----")
e(f"s_cmp_eq_u32 s{sWAVE}, 0")
e("s_cbranch_scc0 L_m2_nog")
e(f"s_mov_b32 s{sT+1}, 0")
lab("L_m2_poll")
e("v_xor_b32 v217, v17, v217")
e("v_xor_b32 v219, v17, v219")
e("v_or_b32 v217, v217, v219")
e("v_cmp_eq_u32 vcc, 0, v217")
e("s_cmp_eq_u64 vcc, -1")
e("s_cbranch_scc1 L_m2_got")
bound(sT+1)
e(f"buffer_load_dwordx4 v[216:219], v220, {s_(SWS,4)}, 0 offen sc1")
e("s_waitcnt vmcnt(0)")
e("s_branch L_m2_poll")
lab("L_m2_got")
for r in (216, 218):
    e("s_nop 1")
    e(f"v_add_f32_dpp v{r}, v{r}, v{r} row_ror:8 row_mask:0xf bank_mask:0xf")
    cross_rows("v_add_f32", r, 217)
    bf16r(r)
    e("s_nop 1")
    e(f"v_mov_b32_dpp v{r+1}, v{r} row_ror:12 row_mask:0xf bank_mask:0xf")
    sigmoid(44, r)
    e(f"v_mul_f32 v{r}, v{r}, v44")
    bf16r(r)
    e(f"v_mul_f32 v{r}, v{r}, v{r+1}")
e("v_cvt_pk_bf16_f32 v216, v216, v218")
e("v_subrev_u32 v217, 4, v1")
e("v_ashrrev_i32 v217, 31, v217")
e("v_and_b32 v216, v216, v217")
e(f"v_lshlrev_b32 v217, 2, v1")
e(f"v_add_u32 v217, {HS+128}, v217")
e("s_mov_b64 exec, 0xff")
e("ds_write_b32 v217, v216")
e("s_mov_b64 exec, -1")
e("s_waitcnt lgkmcnt(0)")
lab("L_m2_nog")
e("s_barrier")
e(f"v_add_u32 v221, {HS}, v221")
HV = 204
for n in range(11): e(f"ds_read_u16 v{HV+n}, v221 offset:{14*n}")
for i in range(8): e(f"v_mov_b32 v{40+i}, 0")
e("s_waitcnt lgkmcnt(0)")
for n in range(11):
    e(f"v_lshlrev_b32 v48, 16, v{HV+n}")
    for i in range(4):
        e(f"v_dot2_f32_bf16 v{40+2*i}, v{DW+4*n+i}, v{HV+n}, v{40+2*i}")
    for i in range(4):
        e(f"v_dot2_f32_bf16 v{41+2*i}, v{DW+4*n+i}, v48, v{41+2*i}")
e(f"s_lshl_b32 s{sT}, s{sWAVE}, 11")
e(f"v_lshl_add_u32 v48, v1, 5, s{sT}")
e(f"v_add_u32 v49, s{sT}, v19")
e("s_nop 0")
e("ds_write_b128 v48, v[40:43]")
e("ds_write_b128 v48, v[44:47] offset:16")
e("s_waitcnt lgkmcnt(0)")
for g7 in range(7): e(f"ds_read_b128 {v(72+4*g7,4)}, v49 offset:{288*g7}")
e(f"s_mul_i32 s{sT}, s{sRB}, 2304")
e(f"s_mul_i32 s{sT+1}, s{sWAVE}, 288")
e(f"s_add_u32 s{sT}, s{sT}, s{sT+1}")
e(f"s_add_u32 s{sT}, s{sT}, {YY}")
e("s_waitcnt lgkmcnt(0)")
for g7 in range(1, 7):
    for i in range(4): e(f"v_add_f32 v{72+i}, v{72+i}, v{72+4*g7+i}")
e("s_mov_b64 exec, 0x3ffff")
e(f"buffer_store_dwordx4 v[72:75], v19, {s_(SWS,4)}, s{sT} offen sc1")
e("s_mov_b64 exec, -1")
e("s_waitcnt vmcnt(0)")
e("s_barrier")
e(f"s_cmp_eq_u32 s{sWAVE}, 0")
e("s_cbranch_scc0 L_p3_main")
e(f"s_lshl_b32 s{sT}, s{sRB}, 2")
e(f"s_add_u32 s{sT}, s{sT}, {FY}")
e("v_lshlrev_b32 v12, 8, v1")
e("s_mov_b64 exec, 0xff")
e(f"buffer_store_dword v17, v12, {s_(SWS,4)}, s{sT} offen sc1")
e("s_mov_b64 exec, -1")

lab("L_p3_main")
stamp(12)
def wo_reads(F, ar, off, second):
    for t in range(5):
        e(f"ds_read_b64_tr_b16 {v(F+4*t,2)}, v{ar} offset:{off+32*t}")
        e(f"ds_read_b64_tr_b16 {v(F+4*t+2,2)}, v{ar} offset:{off+second+32*t}")
for sp in range(8):
    wo_reads(WO + 20*sp, vWM, 5760*sp, 1280)
e(f"s_cmp_eq_u32 s{sWAVE}, 7")
e("s_cbranch_scc0 L_poll2d")
e(f"s_lshr_b32 s{sT}, s{sTB}, 3")
e(f"s_add_u32 s{sT}, s{sT}, s{sCS}")
e(f"s_lshl_b32 s{sT}, s{sT}, 7")
e(f"s_add_u32 s{sT}, s{sT}, {F2}")
e("v_lshlrev_b32 v13, 2, v1")
e("s_mov_b64 exec, 0xffffffff")
e(f"s_mov_b32 s{sT+1}, 0")
lab("L_poll2")
e(f"buffer_load_dword v12, v13, {s_(SWS,4)}, s{sT} offen sc1")
e("s_waitcnt vmcnt(0)")
e("v_cmp_eq_u32 vcc, v17, v12")
e("s_cmp_eq_u32 vcc_lo, -1")
e("s_cbranch_scc1 L_poll2x")
bound(sT+1)
e("s_branch L_poll2")
lab("L_poll2x")
e("s_mov_b64 exec, -1")
lab("L_poll2d")
e("s_barrier")
stamp(13)
e(f"s_lshl_b32 s{sT}, s{sKH}, 20")
e(f"s_lshl_b32 s{sT+1}, s{sT+3}, 4")
e(f"s_add_u32 s{sT}, s{sT}, s{sT+1}")
e(f"s_add_u32 s{sT}, s{sT}, {OM}")
for sp in range(8):
    if sp: e(f"s_add_u32 s{sT}, s{sT}, 131072")
    e(f"buffer_load_dwordx4 {v(OF+4*sp,4)}, v{vOM}, {s_(SWS,4)}, s{sT} offen sc1")
e(f"s_lshl_b32 s{sT}, s{sKH}, 17")
e(f"s_lshl_b32 s{sT+1}, s{sT+3}, 2")
e(f"s_add_u32 s{sT}, s{sT}, s{sT+1}")
e(f"s_add_u32 s{sT}, s{sT}, {OX}")
for i in range(4):
    if i: e(f"s_add_u32 s{sT}, s{sT}, 8192")
    e(f"buffer_load_dword v{OF+32+i}, v{vOXL}, {s_(SWS,4)}, s{sT} offen sc1")
for sp in range(9):
    e(f"s_waitcnt vmcnt({11-sp if sp < 8 else 0}) lgkmcnt(0)")
    F = WO + 20*(sp % 8)
    for t in range(5):
        e(f"v_mfma_f32_16x16x32_bf16 {v(A3+4*t,4)}, {v(F+4*t,4)}, {v(OF+4*sp,4)}, {'0' if sp == 0 else v(A3+4*t,4)}")
    if sp == 0: wo_reads(WO, vWX, 0, 5760)
stamp(14)
e(f"s_cmp_lt_u32 s{sHASY}, 64")
e("s_cbranch_scc0 L_noy1")
c("gather the 64 partial y rows: wave w sums producers 8w..8w+7")
e(f"s_cmp_eq_u32 s{sWAVE}, 7")
e("s_cbranch_scc0 L_pollyd")
e(f"s_lshl_b32 s{sT}, s{sCS}, 8")
e(f"s_add_u32 s{sT}, s{sT}, {FY}")
e("v_lshlrev_b32 v12, 2, v1")
e(f"s_mov_b32 s{sT+1}, 0")
lab("L_polly")
e(f"buffer_load_dword v13, v12, {s_(SWS,4)}, s{sT} offen sc1")
e("s_waitcnt vmcnt(0)")
e("v_cmp_eq_u32 vcc, v17, v13")
e("s_cmp_eq_u64 vcc, -1")
e("s_cbranch_scc1 L_pollyd")
bound(sT+1)
e("s_branch L_polly")
lab("L_pollyd")
e("s_barrier")
e(f"s_mul_i32 s{sT}, s{sWAVE}, {8*2304}")
e(f"s_mul_i32 s{sT+1}, s{sCS}, 288")
e(f"s_add_u32 s{sT}, s{sT}, s{sT+1}")
e(f"s_add_u32 s{sT}, s{sT}, {YY}")
e("s_mov_b64 exec, 0x3ffff")
for p in range(8):
    if p: e(f"s_add_u32 s{sT}, s{sT}, 2304")
    e(f"buffer_load_dwordx4 {v(100+4*p,4)}, v19, {s_(SWS,4)}, s{sT} offen sc1")
e("s_waitcnt vmcnt(0)")
for p in range(1, 8):
    for i in range(4): e(f"v_add_f32 v{100+i}, v{100+i}, v{100+4*p+i}")
e(f"s_mul_i32 s{sT}, s{sWAVE}, 288")
e(f"s_add_u32 s{sT}, s{sT}, {YR}")
e(f"v_add_u32 v12, s{sT}, v19")
e("ds_write_b128 v12, v[100:103]")
e("s_mov_b64 exec, -1")
lab("L_noy1")
e("s_nop 4")
for t in range(5):
    e(f"ds_write_b128 v{vRW}, {v(A3+4*t,4)} offset:{64*t}")
e("s_waitcnt lgkmcnt(0)")
e("s_barrier")
stamp(15)

def unpack(d, p):
    e(f"v_lshlrev_b32 v{d}, 16, v{p}")
    e(f"v_and_b32 v{d+1}, 0xffff0000, v{p}")
def round8(B, T):
    for k in range(4): e(f"v_cvt_pk_bf16_f32 v{T+k}, v{B+2*k}, v{B+2*k+1}")
    for k in range(4): unpack(B+2*k, T+k)

def task(vt, vx, vg, X, G, nm):
    A, Bq, T = 40, 56, 64
    e(f"ds_read_b128 {v(A,4)}, v{vt} offset:{R0}")
    e(f"ds_read_b128 {v(A+4,4)}, v{vt} offset:{R0+16}")
    e(f"ds_read_b128 {v(A+8,4)}, v{vt} offset:{R1}")
    e(f"ds_read_b128 {v(A+12,4)}, v{vt} offset:{R1+16}")
    lp, done = ul("g"), ul("gd")
    e(f"s_mov_b32 s{sT}, 0")
    lab(lp)
    e(f"v_cmp_eq_u32 vcc, v17, v{G+1}")
    e("s_cmp_eq_u64 vcc, -1")
    e(f"s_cbranch_scc1 {done}")
    bound(sT)
    e(f"buffer_load_dwordx2 {v(G,2)}, v{vg}, {s_(SWS,4)}, 0 offen sc1")
    e("s_waitcnt vmcnt(0)")
    e(f"s_branch {lp}")
    lab(done)
    for k in range(4): unpack(Bq+2*k, X+k)
    e(f"v_sub_f32 v{G+1}, 1.0, v{G}")
    bf16r(G+1)
    e(f"s_cmp_lt_u32 s{sHASY}, 64")
    e(f"s_cbranch_scc0 L_noy2{nm}")
    e(f"v_subrev_u32 v68, {GG}, v{vg}")
    e(f"v_lshrrev_b32 v68, 3, v68")
    e(f"s_mul_i32 s{sT}, s{sHASY}, {RP}")
    e(f"v_subrev_u32 v69, s{sT}, v{vt}")
    e(f"v_and_b32 v69, 0x1e0, v69")
    for w in range(8):
        e(f"ds_read_b128 {v(100+8*w,4)}, v69 offset:{YR+288*w}")
        e(f"ds_read_b128 {v(104+8*w,4)}, v69 offset:{YR+288*w+16}")
        if w % 4 == 3: e("s_waitcnt lgkmcnt(0)")
    for w in range(1, 8):
        for i in range(8): e(f"v_add_f32 v{100+i}, v{100+i}, v{100+8*w+i}")
    round8(100, 110)
    e(f"s_lshr_b32 s{sT}, s{sKEY}, 16")
    e(f"s_bitcmp1_b32 s{sT}, 15")
    e(f"s_cselect_b32 s{sT+1}, 0x8000, 0xffff") if False else None
    e(f"s_cselect_b32 s{sT+1}, 0, 0x7fff")
    e(f"s_xor_b32 s{sT}, s{sT}, s{sT+1}")
    e(f"s_xor_b32 s{sT}, s{sT}, 0x8000")
    e(f"s_lshl_b32 s{sT}, s{sT}, 16")
    e(f"v_mov_b32 v108, s{sT}")
    sigmoid(109, 108)
    bf16r(109)
    for i in range(8): e(f"v_mul_f32 v{100+i}, v109, v{100+i}")
    round8(100, 110)
    for i in range(8): e(f"v_add_f32 v{100+i}, v{Bq+i}, v{100+i}")
    round8(100, 110)
    e(f"v_cmp_eq_u32 vcc, s{sIDX}, v68")
    e("s_nop 1")
    for i in range(8): e(f"v_cndmask_b32 v{Bq+i}, v{Bq+i}, v{100+i}, vcc")
    lab(f"L_noy2{nm}")
    e("s_waitcnt lgkmcnt(0)")
    for i in range(8): e(f"v_add_f32 v{A+i}, v{A+i}, v{A+8+i}")
    round8(A, T)
    for i in range(8): e(f"v_mul_f32 v{A+i}, v{G}, v{A+i}")
    for i in range(8): e(f"v_mul_f32 v{Bq+i}, v{G+1}, v{Bq+i}")
    round8(A, T)
    round8(Bq, T)
    for i in range(8): e(f"v_add_f32 v{A+i}, v{A+i}, v{Bq+i}")
    for k in range(4): e(f"v_cvt_pk_bf16_f32 v{T+k}, v{A+2*k}, v{A+2*k+1}")
    e(f"buffer_store_dwordx4 {v(T,4)}, v{vx}, {s_(SOUT,4)}, 0 offen {opt('of')}")
task(vT1, vX1, vG1, X1, G1, "a")
e(f"s_cmp_eq_u32 s{sWAVE}, 7")
e("s_cbranch_scc0 L_fin")
task(vT2, vX2, vG2, X2, G2, "b")
lab("L_fin")
stamp(16)
if PROBE >= 0:
    if PROBE == 0: e("s_mov_b32 s94, s90")
    e("s_cmp_eq_u32 s94, 0")
    e("s_cbranch_scc1 L_end")
    e(f"s_sub_u32 s94, s94, s{sTAG}")
    e("s_max_i32 s94, s94, 0")
    e("s_min_u32 s94, s94, 10000")
    e("s_lshl_b32 s94, s94, 2")
    e("s_memrealtime s[92:93]")
    e("s_waitcnt lgkmcnt(0)")
    e("s_add_u32 s94, s94, s92")
    lab("L_probe")
    e("s_memrealtime s[92:93]")
    e("s_waitcnt lgkmcnt(0)")
    e("s_sub_u32 s92, s92, s94")
    e("s_cmp_lt_i32 s92, 0")
    e("s_cbranch_scc1 L_probe")

if DBGT:
    e("v_lshlrev_b32 v2, 2, v1")
    e("s_mov_b64 exec, 0xfffe")
    e(f"global_atomic_umax v2, v255, {s_(pDBG,2)}")
elif PROF:
    e(f"s_lshl_b32 s{sT}, s2, 3")
    e(f"s_add_u32 s{sT}, s{sT}, s{sWAVE}")
    e(f"s_lshl_b32 s{sT}, s{sT}, 7")
    e(f"s_add_u32 s{sT}, s{sT}, {PROFB}")
    e("v_lshlrev_b32 v2, 2, v1")
    e("s_mov_b64 exec, 0xffffffff")
    e(f"buffer_store_dword v255, v2, {s_(SWS,4)}, s{sT} offen")
lab("L_end")
e("s_endpgm")

body = "\n".join(L)
hdr = open("cdna_kernels/" + NAME + ".s.ref").read().split("; Override launch")[0]
text = hdr + f"""; @launch grid=(256,1,1) block=(512,1,1) lds={LDS_TOTAL}
.amdgcn_target "amdgcn-amd-amdhsa--gfx950"
.text
.globl {NAME}_kernel
.p2align 8
.type {NAME}_kernel,@function
{body}
.section .rodata,"a"
.p2align 6
.amdhsa_kernel {NAME}_kernel
  .amdhsa_next_free_vgpr 256
  .amdhsa_next_free_sgpr 102
  .amdhsa_accum_offset 256
  .amdhsa_group_segment_fixed_size 0
  .amdhsa_kernarg_size 96
  .amdhsa_user_sgpr_count 2
  .amdhsa_user_sgpr_kernarg_segment_ptr 1
  .amdhsa_system_sgpr_workgroup_id_x 1
.end_amdhsa_kernel
"""
out = [a for a in sys.argv[1:] if not a.startswith("--")]
path = out[0] if out else "cdna_kernels/" + NAME + ".s"
open(path, "w").write(text)
errs = hazard.check(body)
print("\n".join(errs) if errs else "hazard check clean", file=sys.stderr)
```

```python
import sys, math, struct
import hazard

NAME = "gated_mix__sliding_block__moe_arch_mod__prompt"
DBGT = "--dbgt" in sys.argv
PROF = "--prof" in sys.argv or DBGT
NOLOAD = "--noload" in sys.argv
NOCOMP = "--nocomp" in sys.argv
NOMFMA = "--nomfma" in sys.argv
NOREAD = "--noread" in sys.argv
XNOSWZ = "--xnoswz" in sys.argv
NOX = "--nox" in sys.argv
NOW = "--now" in sys.argv
WAL = "--wal" in sys.argv
def opt(n, d=""):
    for a in sys.argv:
        if a.startswith(f"--{n}="): return a.split("=", 1)[1].replace("+", " ")
    return d
XF_, WF_ = opt("xf"), opt("wf")
NOS = "--nos" in sys.argv
LDST = "--ldst" in sys.argv
WOPF = int(opt("wopf", "5"))
SPF = opt("spf", "n") != "n"
SPF0 = int(opt("spf", "1")) if SPF else 0
B0LATE = "--b0late" in sys.argv
ROT = opt("rot", "9")
STOP = None
for a in sys.argv:
    if a.startswith("--stop="): STOP = a.split("=")[1]

F1, F2, CAND, GG, PP, HH, YY = 0x0, 0x8000, 0x10000, 0x14000, 0x18000, 0x28000, 0x38000
QKV, XP, OM, OX = 0x100000, 0x700000, 0x880000, 0xA80000
PROFB = 0xB00000
WS_SIZE = 0xC00000
BIGOFF = 0x40000000
SPIN = 200000

SLOT = 34816
KP0, KP1, KX = 0, 8192, 16384
VB = 24576
VP0, VP1, VX = VB, VB + 8192 + 64, VB + 16384 + 128
BULK = 49408
R0, R1, YR = 0, 21504, 43008
RP = 336
PS2 = 160768
CNT = 160512
LDS_TOTAL = 163840

def f32bits(x): return struct.unpack("<I", struct.pack("<f", x))[0]
QSCALE = f32bits(18 ** -0.5 * math.log2(math.e))
NEGBIG = f32bits(-1e30)
LOG2E = f32bits(math.log2(math.e))

L = []
def e(s): L.append("  " + s)
def lab(s): L.append(s + ":")
def c(s): L.append("  ; " + s)
def v(a, n=1): return f"v{a}" if n == 1 else f"v[{a}:{a+n-1}]"
def s_(a, n=1): return f"s{a}" if n == 1 else f"s[{a}:{a+n-1}]"
_uid = [0]
def ul(p):
    _uid[0] += 1
    return f"L_{p}_{_uid[0]}"

sWAVE, sXCD, sSLOT, sRB, sCB = 3, 4, 5, 6, 7
SX, SW, SWS, SOUT, SA, SB = 8, 12, 40, 44, 48, 52
pX, pWQKV, pWO, pWR, pWG, pWU, pWD, pGW, pOUT, pDBG, pWS = 16, 18, 20, 24, 26, 28, 30, 32, 34, 36, 38
sTAG = 56
sT = 57
sH, sJ, sI, sTB, sCS, sISS = 76, 77, 78, 79, 80, 81
sDMIN, sIDX, sKEY, sFLAG = 82, 83, 84, 85
sSTAMP = 86

PROBE = int(opt("probe", "-1"))
def stamp(k):
    if PROBE == k:
        e("s_memrealtime s[94:95]")
        e("s_waitcnt lgkmcnt(0)")
    if PROF:
        if DBGT:
            m = {1: 3, 2: 4, 5: 5, 6: 6, 7: 7, 10: 8, 12: 9, 13: 10, 15: 11, 16: 12}
            if k not in m: return
            k = m[k]
        e(f"s_memrealtime s[100:101]" if DBGT else f"s_memtime s[100:101]")
        e("s_waitcnt lgkmcnt(0)")
        e(f"v_writelane_b32 v255, s100, {k}")

def srd(base, ptr, size):
    e(f"s_mov_b32 s{base}, s{ptr}")
    e(f"s_mov_b32 s{base+1}, s{ptr+1}")
    e(f"s_mov_b32 s{base+2}, {size}")
    e(f"s_mov_b32 s{base+3}, 0x20000")

def divmod_const(dq, dr, src, d, maxv, tmp_s):
    for sh in range(16, 25):
        m = -(-(1 << sh) // d)
        if m < (1 << 24) and maxv * m < (1 << 32) and all((x * m) >> sh == x // d for x in range(maxv + 1)):
            break
    else:
        raise Exception("no magic")
    e(f"v_mul_u32_u24 v{dq}, {m}, v{src}")
    e(f"v_lshrrev_b32 v{dq}, {sh}, v{dq}")
    e(f"v_mul_u32_u24 v{dr}, {d}, v{dq}")
    e(f"v_sub_u32 v{dr}, v{src}, v{dr}")

def tag_issue(vt, vz):
    e(f"v_mov_b32 v{vz}, 0")
    e(f"global_load_dword v{vt}, v{vz}, {s_(pDBG,2)} sc1")

def tag_check(vt, vz):
    lp, done = ul("tag"), ul("tagd")
    e(f"s_mov_b32 s{sT}, 0")
    lab(lp)
    e(f"v_readfirstlane_b32 s{sTAG}, v{vt}")
    e(f"s_cmp_lg_u32 s{sTAG}, 0")
    e(f"s_cbranch_scc1 {done}")
    e(f"s_add_u32 s{sT}, s{sT}, 1")
    e(f"s_cmp_gt_u32 s{sT}, {SPIN}")
    e(f"s_cbranch_scc1 L_end")
    e(f"global_load_dword v{vt}, v{vz}, {s_(pDBG,2)} sc1")
    e("s_waitcnt vmcnt(0)")
    e(f"s_branch {lp}")
    lab(done)


def bound(cnt):
    e(f"s_add_u32 s{cnt}, s{cnt}, 1")
    e(f"s_cmp_gt_u32 s{cnt}, {SPIN}")
    e("s_cbranch_scc1 L_end")

def bf16r(r, t=None):
    e(f"v_cvt_pk_bf16_f32 v{r}, v{r}, v{r}")
    e(f"v_and_b32 v{r}, 0xffff0000, v{r}")

def sigmoid(d, x):
    e(f"v_mul_f32 v{d}, {(LOG2E ^ 0x80000000):#x}, v{x}")
    e(f"v_exp_f32 v{d}, v{d}")
    e("s_nop 0")
    e(f"v_add_f32 v{d}, 1.0, v{d}")
    e(f"v_rcp_f32 v{d}, v{d}")
    e("s_nop 0")

def row_max_u32(r):
    for k in (8, 4, 2, 1):
        e("s_nop 1")
        e(f"v_max_u32_dpp v{r}, v{r}, v{r} row_ror:{k} row_mask:0xf bank_mask:0xf")

def cross_rows(op, r, t):
    for sw in ("v_permlane16_swap_b32", "v_permlane32_swap_b32"):
        e(f"v_mov_b32 v{t}, v{r}")
        e("s_nop 1")
        e(f"{sw} v{r}, v{t}")
        e(f"{op} v{r}, v{r}, v{t}")

def cand_issue(R, va):
    e(f"v_lshlrev_b32 v{va}, 4, v1")
    e(f"s_mov_b32 s{sT}, {CAND}")
    e(f"buffer_load_dwordx4 {v(R,4)}, v{va}, {s_(SWS,4)}, s{sT} offen sc1")

def cand_check(R, va, vtag):
    lp, done = ul("cand"), ul("candd")
    e(f"s_mov_b32 s{sT+1}, 0")
    lab(lp)
    e(f"v_xor_b32 v{R+1}, v{vtag}, v{R+1}")
    e(f"v_xor_b32 v{R+3}, v{vtag}, v{R+3}")
    e(f"v_or_b32 v{R+1}, v{R+1}, v{R+3}")
    e(f"v_cmp_eq_u32 vcc, 0, v{R+1}")
    e("s_cmp_eq_u64 vcc, -1")
    e(f"s_cbranch_scc1 {done}")
    bound(sT+1)
    e(f"s_mov_b32 s{sT}, {CAND}")
    e(f"buffer_load_dwordx4 {v(R,4)}, v{va}, {s_(SWS,4)}, s{sT} offen sc1")
    e("s_waitcnt vmcnt(0)")
    e(f"s_branch {lp}")
    lab(done)
    e(f"v_max_u32 v{R}, v{R}, v{R+2}")
    row_max_u32(R)
    cross_rows("v_max_u32", R, R+1)
    e("s_nop 0")
    e(f"v_readfirstlane_b32 s{sKEY}, v{R}")
    e(f"s_and_b32 s{sIDX}, s{sKEY}, 0xffff")
    e(f"s_sub_u32 s{sIDX}, 2047, s{sIDX}")

WOP = 192
def wo_addr(first, nw):
    e(f"s_sub_u32 s{sT}, s{sWAVE}, {first}")
    e(f"s_lshr_b32 s{sT+1}, s{sSLOT}, 2")
    e(f"s_mul_i32 s{sT+1}, s{sT+1}, 144")
    e(f"s_andn2_b32 s{sT+1}, s{sT+1}, 63")
    e(f"s_mul_i32 s{sT+8}, s{sT}, {(576//nw)*1152}")
    e(f"s_add_u32 s{sT+1}, s{sT+1}, s{sT+8}")
    e(f"s_mul_i32 s{sT}, s{sT}, {(576//nw)*WOP}")
    e(f"s_add_u32 m0, s{sT}, {BULK}")
    for n in range(3):
        if n: e(f"v_add_u32 v10, {64*n}, v1")
        divmod_const(11, 12, 10 if n else 1, 12, 191, sT)
        e("v_mul_u32_u24 v11, 1152, v11")
        e(f"v_lshl_add_u32 v{36+n}, v12, 4, v11")
def wo_dma(periods):
    lp = ul("wo")
    e(f"s_mov_b32 s{sT}, 0")
    lab(lp)
    for n in range(3):
        e(f"buffer_load_dwordx4 v{36+n}, {s_(SB,4)}, s{sT+1} offen lds")
        e(f"s_add_u32 m0, m0, 1024")
        if n < 2: e("s_nop 0")
    e(f"s_add_u32 s{sT+1}, s{sT+1}, {16*1152}")
    e(f"s_add_u32 s{sT}, s{sT}, 1")
    e(f"s_cmp_lt_u32 s{sT}, {periods}")
    e(f"s_cbranch_scc1 {lp}")

def cnt_add():
    e(f"v_mov_b32 v12, {CNT}")
    e("v_mov_b32 v13, 1")
    e("s_mov_b64 exec, 1")
    e("ds_add_u32 v12, v13")
    e("s_mov_b64 exec, -1")
def cnt_wait(t, n, target):
    lp = ul("cnt")
    e(f"v_mov_b32 v12, {CNT}")
    e(f"s_mov_b32 s{n}, 0")
    lab(lp)
    e("ds_read_b32 v13, v12")
    bound(n)
    e("s_waitcnt lgkmcnt(0)")
    e(f"v_readfirstlane_b32 s{t}, v13")
    e(f"s_cmp_lt_u32 s{t}, {target}")
    e(f"s_cbranch_scc1 {lp}")

lab(f"{NAME}_kernel")
e(f"s_memrealtime s[90:91]")
e(f"s_load_dwordx16 s[16:31], s[0:1], 0")
e(f"s_load_dwordx8 s[32:39], s[0:1], 64")
if PROF:
    e(f"s_memrealtime s[98:99]")
    e(f"s_memtime s[96:97]")
    e("v_mov_b32 v255, 0")
if PROBE > 0: e("s_mov_b32 s94, 0")
e("s_cmp_ge_u32 s2, 256")
e("s_cbranch_scc1 L_end")
e("v_lshrrev_b32 v2, 6, v0")
e("v_and_b32 v1, 63, v0")
e(f"v_readfirstlane_b32 s{sWAVE}, v2")
e(f"s_and_b32 s{sXCD}, s2, 7")
e(f"s_lshr_b32 s{sSLOT}, s2, 3")
e(f"s_and_b32 s{sRB}, s{sXCD}, 3")
e(f"s_lshl_b32 s{sRB}, s{sRB}, 2")
e(f"s_and_b32 s{sT}, s{sSLOT}, 3")
e(f"s_add_u32 s{sRB}, s{sRB}, s{sT}")
e(f"s_lshr_b32 s{sCB}, s{sXCD}, 2")
e(f"s_mul_i32 s{sCB}, s{sCB}, 6")
e(f"s_lshr_b32 s{sT+1}, s{sSLOT}, 2")
e(f"s_add_u32 s{sCB}, s{sCB}, s{sT+1}")
def kernargs_ready():
    e("s_waitcnt lgkmcnt(0)")
    if PROF:
        if DBGT:
            e("s_not_b32 s96, s98")
            e("v_writelane_b32 v255, s96, 1")
            e("v_writelane_b32 v255, s98, 2")
        else:
            e("v_writelane_b32 v255, s96, 0")
            e("v_writelane_b32 v255, s98, 31")
    srd(SX, pX, 2048 * 1152)
    srd(SW, pWQKV, 576 * 3456)
def late_srds():
    srd(SWS, pWS, WS_SIZE)
    srd(SOUT, pOUT, 2048 * 1152)
e(f"s_cmp_ge_u32 s{sSLOT}, 24")
e("s_cbranch_scc1 L_sphase")
e(f"s_cmp_lt_u32 s{sWAVE}, 4")
e("s_cbranch_scc1 L_compute")

c("---- P1 loader ----")
sLW, sSIG, sLS, sXB, sWB, sCNT = sT+2, sT+3, sT+4, sT+5, sT+6, sT+7
e(f"s_sub_u32 s{sLW}, s{sWAVE}, 4")
e("v_lshrrev_b32 v2, 3, v1")
e("v_mul_u32_u24 v2, 1152, v2")
e("v_lshrrev_b32 v3, 4, v1")
e(f"s_and_b32 s{sT+8}, s{sLW}, 1")
e(f"s_lshl_b32 s{sT+8}, s{sT+8}, 2")
e(f"v_add_u32 v3, s{sT+8}, v3")
e("v_and_b32 v4, 7, v1")
e("v_xor_b32 v3, v3, v4")
e("v_lshl_add_u32 v2, v3, 4, v2")
if ROT == "9":
    e(f"s_lshl_b32 s{sT}, s{sT}, 1")
    e(f"s_mul_i32 s{sSIG}, s{sT+1}, 3")
    e(f"s_add_u32 s{sSIG}, s{sSIG}, s{sT}")
    e(f"s_cmp_ge_u32 s{sT+1}, 3")
    e(f"s_addc_u32 s{sSIG}, s{sSIG}, 0")
    for _ in range(2):
        e(f"s_cmp_ge_u32 s{sSIG}, 9")
        e(f"s_cselect_b32 s{sT}, 9, 0")
        e(f"s_sub_u32 s{sSIG}, s{sSIG}, s{sT}")
elif ROT == "3":
    e(f"s_add_u32 s{sSIG}, s{sT}, s{sT+1}")
    for _ in range(2):
        e(f"s_cmp_ge_u32 s{sSIG}, 3")
        e(f"s_cselect_b32 s{sT}, 3, 0")
        e(f"s_sub_u32 s{sSIG}, s{sSIG}, s{sT}")
    e(f"s_mul_i32 s{sSIG}, s{sSIG}, 3")
elif ROT == "2":
    e(f"s_add_u32 s{sSIG}, s{sT}, s{sT+1}")
    e(f"s_and_b32 s{sSIG}, s{sSIG}, 1")
    e(f"s_lshl_b32 s{sSIG}, s{sSIG}, 2")
else:
    e(f"s_mov_b32 s{sSIG}, 0")
e(f"s_mul_i32 s{sXB}, s{sRB}, {128*1152}")
e(f"s_mul_i32 s{sT}, s{sLW}, 9216")
e(f"s_add_u32 s{sXB}, s{sXB}, s{sT}")
e(f"s_mul_i32 s{sWB}, s{sCB}, 288")
e(f"s_lshl_b32 s{sLS}, s{sLW}, 10")
e(f"s_lshl_b32 s{sT}, s{sLW}, 6")
e(f"v_add_u32 v5, s{sT}, v1")
for n in range(5):
    if n: e(f"v_add_u32 v5, 256, v5")
    divmod_const(6, 7, 5, 18, 64*20+63, sT)
    e(f"v_mul_u32_u24 v6, 3456, v6")
    e(f"v_lshl_add_u32 v{8+n}, v7, 4, v6")
e(f"s_mov_b32 s{sCNT}, 0")
e(f"v_mov_b32 v5, {CNT}")
e("v_mov_b32 v6, 0")
e("ds_write_b32 v5, v6")
e(f"s_lshl_b32 s{sT+9}, s{sSLOT}, 2")
e(f"s_add_u32 s{sT+9}, s{sT+9}, s{sLW}")
e(f"s_mul_i32 s{sT+9}, s{sT+9}, {54*128}")
e("v_min_u32 v13, 53, v1")
e("v_lshlrev_b32 v13, 7, v13")
kernargs_ready()
srd(SA, pWO, 576 * 1152)
stamp(1)
lab("L_ld_loop")
e(f"s_lshl_b32 s{sT}, s{sSIG}, 7")
e(f"s_add_u32 s{sT}, s{sT}, s{sXB}")
e(f"s_mul_i32 s{sT+1}, s{sSIG}, {64*3456}")
e(f"s_add_u32 s{sT+1}, s{sT+1}, s{sWB}")
e(f"s_mov_b32 m0, s{sLS}")
for n in range(4):
    if n:
        e(f"s_add_u32 s{sT}, s{sT}, 36864")
        e(f"s_add_u32 m0, m0, 4096")
        e("s_nop 0")
    else:
        e("s_nop 0")
    if not NOLOAD and not NOX: e(f"buffer_load_dwordx4 v2, {s_(SX,4)}, s{sT} offen {XF_} lds")
for n in range(5):
    if n == 4:
        e(f"s_cmp_ge_u32 s{sLW}, 2")
        e("s_cbranch_scc1 L_ld_skip5")
    e(f"s_add_u32 m0, m0, 4096")
    e("s_nop 0")
    if not NOLOAD and not NOW: e(f"buffer_load_dwordx4 v{8+n}, {s_(SW,4)}, s{sT+1} offen {WF_} lds")
lab("L_ld_skip5")
e(f"s_add_u32 s{sSIG}, s{sSIG}, 1")
e(f"s_cmp_eq_u32 s{sSIG}, 9")
e(f"s_cselect_b32 s{sSIG}, 0, s{sSIG}")
e(f"s_add_u32 s{sLS}, s{sLS}, {SLOT}")
e(f"s_cmp_ge_u32 s{sLS}, {4*SLOT}")
e(f"s_cselect_b32 s{sT}, {4*SLOT}, 0")
e(f"s_sub_u32 s{sLS}, s{sLS}, s{sT}")
e(f"s_add_u32 s{sCNT}, s{sCNT}, 1")
e(f"s_cmp_lt_u32 s{sCNT}, 2")
e("s_cbranch_scc1 L_ld_loop")
e("s_waitcnt vmcnt(8)")
if LDST:
    e("s_memtime s[100:101]")
    e(f"s_add_u32 m0, s{sCNT}, 16")
    e("s_waitcnt lgkmcnt(0)")
    e("v_writelane_b32 v255, s100, m0")
e("s_barrier")
e(f"s_cmp_lt_u32 s{sCNT}, 9")
e("s_cbranch_scc1 L_ld_loop")
e(f"buffer_load_dword v60, v13, {s_(SA,4)}, s{sT+9} offen")
e("s_waitcnt vmcnt(1)")
e("s_barrier")
stamp(4)
late_srds()
tag_issue(17, 18)
e(f"s_mov_b32 s{sISS}, 0")
e("v_lshrrev_b32 v2, 3, v1")
e(f"s_lshr_b32 s{sT}, s{sRB}, 1")
e(f"v_add_u32 v3, s{sT}, v2")
e(f"s_and_b32 s{sT}, s{sCB}, 3")
e(f"s_lshl_b32 s{sT}, s{sT}, 3")
e("v_and_b32 v4, 7, v1")
e(f"v_add_u32 v4, s{sT}, v4")
e("v_lshl_add_u32 v4, v3, 5, v4")
e("v_lshlrev_b32 v4, 7, v4")
e(f"s_lshr_b32 s{sT}, s{sCB}, 2")
e(f"s_lshl_b32 s{sT+1}, s{sT}, 4")
e(f"s_and_b32 s{sT+2}, s{sRB}, 1")
e(f"s_lshl_b32 s{sT+2}, s{sT+2}, 2")
e(f"s_add_u32 s{sT+1}, s{sT+1}, s{sT+2}")
e(f"v_add_u32 v4, s{sT+1}, v4")
e("v_lshlrev_b32 v5, 3, v2")
e("v_sub_u32 v4, v4, v5")
e(f"s_cmp_eq_u32 s{sT}, 0")
e(f"s_cselect_b32 s{sT}, 8, 0")
e(f"v_mul_u32_u24 v2, s{sT}, v2")
e("v_add_u32 v3, v3, v2")
e("v_subrev_u32 v3, 8, v3")
e("v_ashrrev_i32 v3, 31, v3")
e("v_bfi_b32 v19, v3, v4, 2.0")
e("s_barrier")
e("s_branch L_p2")

ACC = 64
def acc(tt, ct): return ACC + (ct * 4 + tt) * 4
def xf(p, tt): return 144 + 36 * p + 4 * tt
def wf(p, ct): return 160 + 36 * p + 4 * ct
XA = 2
WA = 6

def reads(p, ks, NT):
    wr = []
    for ct in range(NT):
        for wh in range(2):
            if ct < 4:
                off = ks * 9216 + wh * 4608 + 72 * (ct >> 1) + 40 * (ct & 1)
                wr.append(f"ds_read_b64_tr_b16 {v(wf(p,ct)+2*wh,2)}, v{WA+2*ks} offset:{off}")
            else:
                off = ks * 9216 + wh * 4608
                wr.append(f"ds_read_b64_tr_b16 {v(wf(p,ct)+2*wh,2)}, v{WA+2*ks+1} offset:{off}")
    xr = []
    for tt in range(4):
        for wh in range(2):
            xr.append(f"ds_read_b64 {v(xf(p,tt)+2*wh,2)}, v{XA+2*ks+wh} offset:{tt*2048}")
    return wr[:2] + xr + wr[2:]

def kstep(p, ks_next, NT, fill, late, late_at):
    rd = reads(1 - p, ks_next, NT)
    if NOREAD: rd = []
    rd = rd + list(fill)
    n = 0
    for ct in range(NT):
        for tt in range(4):
            a = acc(tt, ct)
            if not NOMFMA: e(f"v_mfma_f32_16x16x32_bf16 {v(a,4)}, {v(wf(p,ct),4)}, {v(xf(p,tt),4)}, {v(a,4)}")
            n += 1
            if n == late_at:
                assert not rd, rd
                for x in late: e(x)
            for _ in range(2):
                if rd: e(rd.pop(0))
    assert not rd

lab("L_compute")
c("---- P1 compute ----")
sMH, sNH, sDL, sIT, sSL = sT+2, sT+3, sT+4, sT+5, sT+6
e(f"s_and_b32 s{sMH}, s{sWAVE}, 1")
e(f"s_lshr_b32 s{sNH}, s{sWAVE}, 1")
e("v_and_b32 v18, 15, v1")
e("v_lshrrev_b32 v19, 4, v1")
e(f"s_lshl_b32 s{sT}, s{sMH}, 13")
e(f"v_lshl_add_u32 v10, v18, 7, s{sT}")
e("v_and_b32 v11, 1, v19")
e("v_lshl_add_u32 v10, v11, 3, v10")
e("v_lshrrev_b32 v11, 1, v19")
e("v_lshrrev_b32 v12, 1, v18")
e("v_xor_b32 v11, v11, v12")
for i in range(4):
    e(f"v_xor_b32 v12, {2*i}, v11")
    e(f"v_lshl_add_u32 v{XA+i}, v12, 4, v10")
e("v_lshrrev_b32 v10, 2, v1")
e("v_mul_u32_u24 v10, 288, v10")
e("v_and_b32 v11, 3, v1")
e(f"s_mul_i32 s{sT}, s{sNH}, 144")
e(f"s_add_u32 s{sT}, s{sT}, 16384")
e(f"v_lshl_add_u32 v{WA}, v11, 3, v10")
e(f"v_add_u32 v{WA}, s{sT}, v{WA}")
e("v_mul_u32_u24 v11, 72, v11")
e(f"v_add_u32 v{WA+1}, v10, v11")
e(f"v_add_u32 v{WA+1}, {16384+32}, v{WA+1}")
e(f"v_mov_b32 v{WA+2}, v{WA}")
e(f"v_mov_b32 v{WA+3}, v{WA+1}")
for r in range(ACC, ACC + 80): e(f"v_mov_b32 v{r}, 0")
VE, VXO = 13, 14
e(f"v_lshrrev_b32 v10, 1, v19")
e(f"v_lshlrev_b32 v{VE}, 15, v10")
e("v_and_b32 v10, 1, v19")
e(f"v_lshl_add_u32 v{VE}, v10, 8, v{VE}")
e(f"v_lshl_add_u32 v{VE}, v18, 4, v{VE}")
e(f"v_lshlrev_b32 v{VXO}, 15, v19")
e(f"v_lshl_add_u32 v{VXO}, v18, 4, v{VXO}")
kernargs_ready()
e(f"s_or_b32 s{sT}, s2, s{sWAVE}")
e(f"s_cmp_lg_u32 s{sT}, 0")
e("s_cbranch_scc1 L_notag")
e("v_mov_b32 v21, 0")
e(f"s_or_b32 s{sT+9}, s90, 1")
e(f"v_mov_b32 v20, s{sT+9}")
e("s_mov_b64 exec, 1")
e(f"global_store_dword v21, v20, {s_(pDBG,2)} sc1")
e("s_mov_b64 exec, -1")
lab("L_notag")
late_srds()
e(f"s_mov_b32 s{sISS}, 0")
e(f"s_mov_b32 s{sIT}, 0")
e(f"s_mov_b32 s{sSL}, 0")
e(f"s_cmp_eq_u32 s{sNH}, 0")
e("s_cbranch_scc0 L_cmp4")
for NT in (5, 4):
    if NT == 4: lab("L_cmp4")
    e("s_barrier")
    stamp(1)
    for r in reads(0, 0, NT): e(r)
    e("s_waitcnt lgkmcnt(0)")
    lab(f"L_cloop{NT}")
    fillA = [f"s_add_u32 s{sSL}, s{sSL}, 1", f"s_cmp_eq_u32 s{sSL}, 4", f"s_cselect_b32 s{sSL}, 0, s{sSL}",
             f"s_cselect_b32 s{sDL}, {(-4*SLOT) & 0xffffffff}, 0", f"s_add_u32 s{sDL}, s{sDL}, {SLOT}"] + \
            [f"v_add_u32 v{r}, s{sDL}, v{r}" for r in (XA, XA+1, WA, WA+1)]
    kstep(0, 1, NT, fillA, ["s_waitcnt lgkmcnt(0)", "s_barrier"], 4*NT - 1)
    fillB = [f"v_add_u32 v{r}, s{sDL}, v{r}" for r in (XA+2, XA+3, WA+2, WA+3)] + \
            [f"s_add_u32 s{sIT}, s{sIT}, 1", f"s_cmp_lt_u32 s{sIT}, 9"]
    kstep(1, 0, NT, fillB, ["s_waitcnt lgkmcnt(0)"], 4*NT - 1)
    e(f"s_cbranch_scc1 L_cloop{NT}")
    if NT == 5: e("s_branch L_cepi")
lab("L_cepi")
stamp(2)
tag_issue(17, 18)
sSO, sSC = sT+7, sT+9
assert sSC % 2 == 0
e(f"s_lshl_b32 s{sT}, s{sRB}, 11")
e(f"s_lshl_b32 s{sT+1}, s{sMH}, 10")
e(f"s_add_u32 s{sT}, s{sT}, s{sT+1}")
e(f"s_lshl_b32 s{sSO}, s{sCB}, 3")
e(f"s_lshl_b32 s{sT+1}, s{sNH}, 2")
e(f"s_add_u32 s{sSO}, s{sSO}, s{sT+1}")
e(f"s_lshl_b32 s{sSO}, s{sSO}, 16")
e(f"s_add_u32 s{sSO}, s{sSO}, s{sT}")
e(f"s_add_u32 s{sSO}, s{sSO}, {QKV}")
e(f"s_lshl_b32 s{sT+8}, s{sCB}, 17")
e(f"s_add_u32 s{sT+8}, s{sT+8}, s{sT}")
e(f"s_add_u32 s{sT+8}, s{sT+8}, {XP}")
e(f"s_cmp_lt_u32 s{sCB}, 4")
e("s_cbranch_scc0 L_noscale")
e(f"s_mov_b32 s{sSC}, {QSCALE}")
e(f"s_mov_b32 s{sSC+1}, {QSCALE}")
for r in range(ACC, ACC + 80, 2):
    e(f"v_pk_mul_f32 {v(r,2)}, {v(r,2)}, {s_(sSC,2)}")
lab("L_noscale")
q = 0
for ct in range(4):
    for pr in range(2):
        R = 20 + 4 * (q % 4); q += 1
        a, b = acc(2*pr, ct), acc(2*pr+1, ct)
        e(f"v_cvt_pk_bf16_f32 v{R}, v{a}, v{a+1}")
        e(f"v_cvt_pk_bf16_f32 v{R+2}, v{b}, v{b+1}")
        e(f"v_cvt_pk_bf16_f32 v{R+1}, v{a+2}, v{a+3}")
        e(f"v_cvt_pk_bf16_f32 v{R+3}, v{b+2}, v{b+3}")
        e("s_nop 0")
        e(f"v_permlane16_swap_b32 v{R}, v{R+2}")
        e(f"v_permlane16_swap_b32 v{R+1}, v{R+3}")
        e(f"buffer_store_dwordx4 {v(R,4)}, v{VE}, {s_(SWS,4)}, s{sSO} offen offset:{512*pr} sc1")
    e(f"s_add_u32 s{sSO}, s{sSO}, 65536")
e(f"s_cmp_eq_u32 s{sNH}, 0")
e("s_cbranch_scc0 L_noextra")
for tt in range(4):
    R = 36 + 4 * tt
    a = acc(tt, 4)
    e(f"v_cvt_pk_bf16_f32 v{R}, v{a}, v{a+1}")
    e(f"v_mov_b32 v{R+1}, 0x3f803f80")
    e(f"v_cvt_pk_bf16_f32 v{R+2}, v{a+2}, v{a+3}")
    e(f"v_mov_b32 v{R+3}, 0x3f803f80")
    e(f"buffer_store_dwordx4 {v(R,4)}, v{VXO}, {s_(SWS,4)}, s{sT+8} offen offset:{256*tt} sc1")
lab("L_noextra")
stamp(3)
e("s_branch L_p2")

lab("L_sphase")
if NOS:
    kernargs_ready()
    late_srds()
    e("s_branch L_fin")
e(f"s_mov_b32 s{sISS}, 8")

XR, WV, XS, PS, HS = 0, 36864, 40960, 43008, 160256
sS = sRB
sTOK = sCB
WT, XV, AC = 64, 160, 20
def fold8(AC):
    for i in range(4): e(f"v_permlane32_swap_b32 v{AC+i}, v{AC+i+4}")
    for i in range(4): e(f"v_add_f32 v{AC+i}, v{AC+i}, v{AC+i+4}")
    e("s_nop 0")
    for i in range(2): e(f"v_permlane16_swap_b32 v{AC+i}, v{AC+i+2}")
    for i in range(2): e(f"v_add_f32 v{AC+i}, v{AC+i}, v{AC+i+2}")
    e("s_nop 0")
    for i in range(2): e(f"v_add_f32_dpp v{AC+i}, v{AC+i}, v{AC+i} row_ror:8 row_mask:0xf bank_mask:0xf")
def gemv_regs(n, younger, WT=WT, rd=True):
    for i in range(n if rd else 0):
        e(f"ds_read_u16 v{XV+i}, v7 offset:{16*i}")
        if i == 11: e("s_waitcnt lgkmcnt(0)")
    for i in range(8): e(f"v_mov_b32 v{AC+i}, 0")
    e("s_waitcnt lgkmcnt(0)")
    for i in range(n):
        if i % 3 == 0 and younger < 63: e(f"s_waitcnt vmcnt({max(0, n-3-i) + younger})")
        e(f"v_lshlrev_b32 v28, 16, v{XV+i}")
        for k in range(4): e(f"v_dot2_f32_bf16 v{AC+2*k}, v{WT+4*i+k}, v{XV+i}, v{AC+2*k}")
        for k in range(4): e(f"v_dot2_f32_bf16 v{AC+2*k+1}, v{WT+4*i+k}, v28, v{AC+2*k+1}")
    e("s_nop 2")
    fold8(AC)
def col_of_lane(d, t):
    e(f"v_and_b32 v{d}, 7, v1")
    e(f"v_lshrrev_b32 v{t}, 4, v1")
    e(f"v_lshlrev_b32 v{t}, 1, v{t}")
    e(f"v_lshl_add_u32 v{d}, v{d}, 3, v{t}")
e(f"s_lshl_b32 s{sS}, s{sXCD}, 3")
e(f"s_add_u32 s{sT}, s{sSLOT}, {int(opt('eperm', '0'))}")
e(f"s_and_b32 s{sT}, s{sT}, 7")
e(f"s_add_u32 s{sS}, s{sS}, s{sT}")
e("v_lshrrev_b32 v7, 3, v1")
e("v_mul_u32_u24 v6, 9216, v7")
e("v_and_b32 v8, 7, v1")
e("v_lshl_add_u32 v6, v8, 4, v6")
e("v_lshlrev_b32 v7, 1, v7")
e(f"v_add_u32 v7, {XS}, v7")
e(f"v_mov_b32 v8, {CNT}")
e("v_mov_b32 v9, 4")
e("ds_write_b32 v8, v9")
e(f"s_cmp_lt_u32 s{sWAVE}, 2")
e("s_cbranch_scc1 L_s_ctl")
c("---- S streamers (waves 2..7): gate / up thirds of the own 64-column block -> registers ----")
e(f"s_sub_u32 s{sT+2}, s{sWAVE}, 2")
e(f"s_cmp_ge_u32 s{sT+2}, 3")
e(f"s_cselect_b32 s{sT+3}, 3, 0")
e(f"s_sub_u32 s{sT+3}, s{sT+2}, s{sT+3}")
e(f"s_mov_b32 s{sT+4}, s{sT+3}")
e(f"s_mul_i32 s{sT}, s{sT+3}, 384")
e(f"v_add_u32 v7, s{sT}, v7")
e(f"s_mul_i32 s{sT+3}, s{sT+3}, {192*9216}")
e(f"s_lshl_b32 s{sT}, s{sS}, 7")
e(f"s_add_u32 s{sT+3}, s{sT+3}, s{sT}")
e(f"s_getpc_b64 {s_(sT+5,2)}")
lab("L_pc")
e(f"s_sub_u32 s{sT+5}, s{sT+5}, L_pc-{NAME}_kernel")
e(f"s_subb_u32 s{sT+6}, s{sT+6}, 0")
e(f"s_lshl_b32 s{sT}, s{sT+2}, 6")
e(f"v_add_u32 v2, s{sT}, v1")
e("v_lshlrev_b32 v2, 7, v2")
e(f"v_min_u32 v2, L_end-{NAME}_kernel, v2")
e(f"global_load_dword v60, v2, {s_(sT+5,2)}")
if SPF:
    e(f"s_and_b32 s{sT+7}, s{sS}, 7")
    e(f"s_lshl_b32 s{sT}, s{sT+7}, 6")
    e(f"v_add_u32 v2, s{sT}, v1")
    e("v_mul_u32_u24 v2, 1152, v2")
    divmod_const(3, 4, 1, 14, 63, sT)
    e(f"s_lshl_b32 s{sT}, s{sT+7}, 3")
    e(f"s_lshl_b32 s{sT+1}, s{sT+4}, 2")
    e(f"s_add_u32 s{sT}, s{sT}, s{sT+1}")
    e(f"s_sub_u32 s{sT}, s{sT}, 4")
    e("v_min_u32 v3, 3, v3")
    e(f"v_add_u32 v3, s{sT}, v3")
    e("v_mul_u32_u24 v3, 3456, v3")
    e("v_lshl_add_u32 v3, v4, 7, v3")
    e(f"s_and_b32 s{sT+7}, s{sXCD}, 3")
    e(f"s_mul_i32 s{sT+7}, s{sT+7}, {512*1152}")
    e(f"s_lshr_b32 s{sT+8}, s{sXCD}, 2")
    e(f"s_mul_i32 s{sT+8}, s{sT+8}, 1664")
    e(f"s_cmp_ge_u32 s{sT+2}, 3")
    e(f"s_cselect_b32 s{sT}, {SPF0+1}, {SPF0}")
    e(f"s_lshl_b32 s{sT+1}, s{sT}, 7")
    e(f"s_add_u32 s{sT+7}, s{sT+7}, s{sT+1}")
    e(f"s_mul_i32 s{sT+1}, s{sT}, {64*3456}")
    e(f"s_add_u32 s{sT+8}, s{sT+8}, s{sT+1}")
kernargs_ready()
if SPF:
    e(f"s_cmp_eq_u32 s{sT+4}, 0")
    e("s_cbranch_scc0 L_spf_w")
    for k in range(4):
        if k: e(f"s_add_u32 s{sT+7}, s{sT+7}, 256")
        e(f"buffer_load_dword v60, v2, {s_(SX,4)}, s{sT+7} offen")
    e("s_branch L_spf_d")
    lab("L_spf_w")
    for k in range(4):
        if k: e(f"s_add_u32 s{sT+8}, s{sT+8}, {128*3456}")
        e(f"buffer_load_dword v60, v3, {s_(SW,4)}, s{sT+8} offen")
    lab("L_spf_d")
e(f"s_cmp_ge_u32 s{sT+2}, 3")
e(f"s_cselect_b32 s{SW}, s{pWU}, s{pWG}")
e(f"s_cselect_b32 s{SW+1}, s{pWU+1}, s{pWG+1}")
e(f"s_mov_b32 s{SW+2}, {576*9216}")
e("s_barrier")
for n in range(24):
    if n: e(f"s_add_u32 s{sT+3}, s{sT+3}, {8*9216}")
    e(f"buffer_load_dwordx4 {v(WT+4*n,4)}, v6, {s_(SW,4)}, s{sT+3} offen nt")
late_srds()
col_of_lane(8, 9)
e(f"s_lshl_b32 s{sT}, s{sT+2}, 8")
e(f"s_add_u32 s{sT}, s{sT}, {PS}")
e(f"v_lshl_add_u32 v8, v8, 2, s{sT}")
stamp(1)
e("s_barrier")
stamp(2)
gemv_regs(24, 0)
e("ds_write_b64 v8, v[20:21]")
e("s_waitcnt lgkmcnt(0)")
stamp(3)
e("s_barrier")
e("s_branch L_s_done")

lab("L_s_ctl")
c("---- S control waves (0,1) ----")
e(f"s_and_b32 s{sT+3}, s{sXCD}, 3")
e(f"s_lshl_b32 s{sT+3}, s{sT+3}, 9")
e(f"s_lshr_b32 s{sT}, s{sXCD}, 2")
e(f"s_lshl_b32 s{sT}, s{sT}, 8")
e(f"s_add_u32 s{sT+3}, s{sT+3}, s{sT}")
e(f"s_and_b32 s{sT}, s{sS}, 7")
e(f"s_lshl_b32 s{sT}, s{sT}, 5")
e(f"s_add_u32 s{sT+3}, s{sT+3}, s{sT}")
e(f"s_lshl_b32 s{sT}, s{sWAVE}, 4")
e(f"s_add_u32 s{sTOK}, s{sT+3}, s{sT}")
e(f"s_mul_i32 s{sT+3}, s{sTOK}, 1152")
e("v_lshlrev_b32 v2, 4, v1")
e("v_lshrrev_b32 v3, 3, v1")
e("v_lshrrev_b32 v4, 4, v1")
e("v_and_b32 v5, 7, v1")
e("v_xor_b32 v4, v4, v5")
e("v_mul_u32_u24 v3, 1152, v3")
e("v_lshl_add_u32 v3, v4, 4, v3")
e("v_add_u32 v3, 1024, v3")
e("v_xor_b32 v4, 64, v3")
e(f"s_mul_i32 m0, s{sWAVE}, 18432")
kernargs_ready()
for n in range(16):
    e(f"v_xor_b32 v{64+n}, {16*n}, v2")
    if n:
        e("s_add_u32 m0, m0, 1024")
        e(f"s_add_u32 s{sT+3}, s{sT+3}, 1152")
    e(f"buffer_load_dwordx4 v{64+n}, {s_(SX,4)}, s{sT+3} offen lds")
e("s_add_u32 m0, m0, 1024")
e(f"s_sub_u32 s{sT+3}, s{sT+3}, {15*1152}")
e(f"buffer_load_dwordx4 v3, {s_(SX,4)}, s{sT+3} offen lds")
e("s_add_u32 m0, m0, 1024")
e(f"s_add_u32 s{sT+3}, s{sT+3}, {8*1152}")
e(f"buffer_load_dwordx4 v4, {s_(SX,4)}, s{sT+3} offen lds")
e("v_lshlrev_b32 v3, 4, v1")
for k, p in enumerate((pWR, pGW)):
    srd(SW, p, 1152)
    e(f"s_mov_b32 m0, {WV + 2048*k}")
    e("s_nop 0")
    e(f"buffer_load_dwordx4 v3, {s_(SW,4)}, 0 offen lds")
    e(f"buffer_load_dwordx4 v3, {s_(SW,4)}, 0 offen offset:1024 lds")
if not B0LATE: e("s_barrier")
late_srds()
tag_issue(17, 18)
e("v_and_b32 v10, 15, v1")
e("v_lshrrev_b32 v11, 4, v1")
e("v_and_b32 v2, 1, v10")
e("v_lshlrev_b32 v2, 11, v2")
e("v_lshl_add_u32 v2, v11, 4, v2")
e(f"v_add_u32 v2, {WV}, v2")
e(f"s_mul_i32 s{sT}, s{sWAVE}, 18432")
e(f"v_lshl_add_u32 v3, v10, 10, s{sT}")
e("v_xor_b32 v4, v10, v11")
for k in range(4):
    e(f"v_xor_b32 v5, {4*k}, v4")
    e(f"v_lshl_add_u32 v{40+k}, v5, 4, v3")
e(f"s_add_u32 s{sT}, s{sT}, 16384")
e(f"v_lshl_add_u32 v3, v10, 7, s{sT}")
e("v_lshrrev_b32 v4, 1, v10")
e("v_xor_b32 v4, v4, v11")
e("v_xor_b32 v5, 4, v4")
e("v_lshl_add_u32 v44, v4, 4, v3")
e("v_lshl_add_u32 v45, v5, 4, v3")
e("s_waitcnt vmcnt(0)")
tag_check(17, 18)
e(f"v_mov_b32 v17, s{sTAG}")
stamp(1)
for ks in range(18):
    e(f"ds_read_b128 {v(64+8*ks,4)}, v2 offset:{ks*64}")
    e(f"ds_read_b128 {v(68+8*ks,4)}, v{40+(ks&3)} offset:{(ks>>2)*256}" if ks < 16 else f"ds_read_b128 {v(68+8*ks,4)}, v{44+(ks&1)}")
    if ks % 6 == 5:
        e("s_waitcnt lgkmcnt(0)")
        for k2 in range(ks-5, ks+1):
            e(f"v_mfma_f32_16x16x32_bf16 v[20:23], {v(64+8*k2,4)}, {v(68+8*k2,4)}, {'0' if k2 == 0 else 'v[20:23]'}")
e(f"s_mov_b32 s{sT}, s{sTOK}")
e(f"v_add_u32 v24, s{sT}, v10")
e("s_nop 6")
e("v_cvt_pk_bf16_f32 v20, v20, v20")
e("v_lshrrev_b32 v20, 16, v20")
e("v_bfe_i32 v22, v20, 15, 1")
e("v_and_b32 v22, 0x7fff, v22")
e("v_xor_b32 v20, 0x8000, v20")
e("v_xor_b32 v20, v20, v22")
e("v_sub_u32 v22, 2047, v24")
e("v_lshl_add_u32 v20, v20, 16, v22")
bf16r(21)
sigmoid(26, 21)
bf16r(26)
e("v_mov_b32 v27, v17")
e("v_lshlrev_b32 v24, 3, v24")
row_max_u32(20)
e("v_mov_b32 v21, v17")
e(f"s_lshr_b32 s{sT}, s{sT}, 1")
e(f"s_add_u32 s{sT}, s{sT}, {CAND}")
e(f"s_mov_b32 s{sT+1}, {GG}")
e("s_mov_b64 exec, 1")
e(f"buffer_store_dwordx2 v[20:21], v18, {s_(SWS,4)}, s{sT} offen sc1")
e("s_mov_b64 exec, 0xffff")
e(f"buffer_store_dwordx2 v[26:27], v24, {s_(SWS,4)}, s{sT+1} offen sc1")
e("s_mov_b64 exec, -1")
if B0LATE: e("s_barrier")
e(f"s_cmp_eq_u32 s{sWAVE}, 0")
e("s_cbranch_scc0 L_s_nocand")
cand_issue(20, 24)
e("s_waitcnt vmcnt(0)")
cand_check(20, 24, 17)
e(f"s_mul_i32 s{sT}, s{sIDX}, 1152")
e(f"s_mov_b32 m0, {XS}")
e("s_nop 0")
e(f"buffer_load_dwordx4 v24, {s_(SX,4)}, s{sT} offen lds")
e(f"buffer_load_dwordx4 v24, {s_(SX,4)}, s{sT} offen offset:1024 lds")
e("s_waitcnt vmcnt(0)")
stamp(2)
e("s_barrier")
e("s_branch L_s_bh")
lab("L_s_nocand")
srd(SA, pWG, 576 * 9216)
srd(SB, pWU, 576 * 9216)
e(f"s_and_b32 s{sT}, s{sS}, 7")
e(f"s_mul_i32 s{sT+1}, s{sT}, 144")
e(f"v_add_u32 v7, s{sT+1}, v7")
e(f"s_mul_i32 s{sT}, s{sT}, {72*9216}")
e(f"s_lshr_b32 s{sT+1}, s{sS}, 3")
e(f"s_lshl_b32 s{sT+1}, s{sT+1}, 7")
e(f"s_add_u32 s{sT}, s{sT}, s{sT+1}")
e(f"s_add_u32 s{sT}, s{sT}, {64*128}")
for n in range(9):
    if n: e(f"s_add_u32 s{sT}, s{sT}, {8*9216}")
    e(f"buffer_load_dwordx4 {v(WT+4*n,4)}, v6, {s_(SA,4)}, s{sT} offen nt")
    e(f"buffer_load_dwordx4 {v(WT+36+4*n,4)}, v6, {s_(SB,4)}, s{sT} offen nt")
col_of_lane(8, 9)
e("v_lshlrev_b32 v8, 3, v8")
e(f"s_lshl_b32 s{sT+2}, s{sS}, 10")
e(f"s_add_u32 s{sT+2}, s{sT+2}, {PP}")
e("s_barrier")
e("s_waitcnt vmcnt(0)")
for m in range(2):
    gemv_regs(9, 63, WT + 36*m, m == 0)
    e("v_mov_b32 v22, v21")
    e("v_mov_b32 v21, v17")
    e("v_mov_b32 v23, v17")
    e(f"buffer_store_dwordx4 v[20:23], v8, {s_(SWS,4)}, s{sT+2} offen offset:{512*m} sc1")
    e("s_nop 1")
lab("L_s_bh")
stamp(3)
e("s_barrier")
e(f"s_cmp_eq_u32 s{sWAVE}, 0")
e("s_cbranch_scc0 L_s_done")
e("v_lshlrev_b32 v8, 2, v1")
for k in range(6): e(f"ds_read_b32 v{30+k}, v8 offset:{PS+256*k}")
e("v_lshlrev_b32 v8, 3, v1")
e(f"s_lshl_b32 s{sT}, s{sS}, 9")
e(f"s_add_u32 s{sT}, s{sT}, {HH}")
e("s_waitcnt lgkmcnt(0)")
e("v_add_f32 v30, v30, v31")
e("v_add_f32 v33, v33, v34")
e("v_add_f32 v30, v30, v32")
e("v_add_f32 v33, v33, v35")
bf16r(30)
bf16r(33)
sigmoid(31, 30)
e("v_mul_f32 v30, v30, v31")
bf16r(30)
e("v_mul_f32 v30, v30, v33")
e("v_cvt_pk_bf16_f32 v30, v30, v18")
e("v_mov_b32 v31, v17")
e(f"buffer_store_dwordx2 v[30:31], v8, {s_(SWS,4)}, s{sT} offen sc1")
lab("L_s_done")
e("s_waitcnt lgkmcnt(0)")
e("s_barrier")
stamp(4)
e("v_lshrrev_b32 v160, 3, v1")
e("v_lshlrev_b32 v160, 10, v160")
e("v_bfe_u32 v2, v1, 2, 1")
e("v_lshl_add_u32 v160, v2, 9, v160")
e("v_and_b32 v2, 3, v1")
e("v_lshl_add_u32 v160, v2, 4, v160")
e(f"s_lshr_b32 s{sT}, s{sS}, 3")
e(f"s_lshl_b32 s{sT}, s{sT}, 13")
e(f"s_and_b32 s{sT+1}, s{sS}, 7")
e(f"s_lshl_b32 s{sT+1}, s{sT+1}, 6")
e(f"s_add_u32 s{sT}, s{sT}, s{sT+1}")
e(f"s_add_u32 s{sT}, s{sT}, {PP}")
e(f"v_add_u32 v160, s{sT}, v160")
tag_issue(17, 18)

vQ, vL16, vKA, vKX, vVA, vHM, vQX, vOX = 2, 3, 4, 5, 6, 7, 8, 9
Q1, Q2, K1, K2, VF, PB, MX = 20, 24, 28, 32, 36, 44, 52
SB0, SB1, OA, M8, M0, BV = 64, 80, 96, 112, 128, 144
sOQ, sOK, sOKX = sT+10, sT+11, sT+12
sFR, sCK = sT+13, sT+14
vDA, vHA, DW, HV = 162, 163, 164, 176
def SBUF(d): return SB0 if d % 2 == 0 else SB1

lab("L_p2")
e(f"s_and_b32 s{sT}, s{sSLOT}, 3")
e(f"s_lshl_b32 s{sH}, s{sXCD}, 2")
e(f"s_add_u32 s{sH}, s{sH}, s{sT}")
e(f"s_lshr_b32 s{sCS}, s{sSLOT}, 2")
e(f"s_add_u32 s{sJ}, s{sCS}, 1")
e(f"s_and_b32 s{sJ}, s{sJ}, 7")
e(f"s_sub_u32 s{sI}, 11, s{sWAVE}")
e(f"s_cmp_lt_u32 s{sWAVE}, 4")
e(f"s_cselect_b32 s{sI}, s{sWAVE}, s{sI}")
e(f"s_lshl_b32 s{sTB}, s{sT}, 6")
e(f"s_and_b32 s{sT}, s{sXCD}, 3")
e(f"s_lshl_b32 s{sT}, s{sT}, 9")
e(f"s_add_u32 s{sTB}, s{sTB}, s{sT}")
e(f"s_lshr_b32 s{sT}, s{sXCD}, 2")
e(f"s_lshl_b32 s{sT}, s{sT}, 8")
e(f"s_add_u32 s{sTB}, s{sTB}, s{sT}")
e(f"s_sub_u32 s{sDMIN}, 8, s{sI}")
e(f"s_cmp_eq_u32 s{sJ}, 0")
e(f"s_cselect_b32 s{sDMIN}, s{sDMIN}, 0")
e(f"s_lshl_b32 s{sT+2}, s{sJ}, 1")
e(f"s_lshr_b32 s{sT+3}, s{sWAVE}, 1")
e(f"s_add_u32 s{sT+3}, s{sT+3}, s{sT+2}")
e(f"s_sub_u32 s{sT+3}, s{sT+3}, 2")
e(f"s_lshl_b32 s{sT+6}, s{sJ}, 12")
e(f"s_lshl_b32 s{sT+7}, s{sI}, 9")
e(f"s_add_u32 s{sOQ}, s{sT+6}, s{sT+7}")
e(f"s_lshl_b32 s{sT+7}, s{sWAVE}, 10")
e(f"s_add_u32 s{sT+6}, s{sT+6}, s{sT+7}")
e(f"s_sub_u32 s{sT+6}, s{sT+6}, 4096")
e(f"s_lshl_b32 s{sT+7}, s{sH}, 16")
e(f"s_add_u32 s{sOK}, s{sT+6}, s{sT+7}")
e(f"s_add_u32 s{sOK}, s{sOK}, {QKV + 32*65536}")
e(f"s_lshr_b32 s{sT+8}, s{sH}, 1")
e(f"s_lshl_b32 s{sT+8}, s{sT+8}, 15")
e(f"s_add_u32 s{sOKX}, s{sT+6}, s{sT+8}")
e(f"s_add_u32 s{sOKX}, s{sOKX}, {XP + 16*32768}")
e(f"s_cmp_lt_i32 s{sT+3}, 0")
e(f"s_cselect_b32 s{sOK}, {BIGOFF}, s{sOK}")
e(f"s_cselect_b32 s{sOKX}, {BIGOFF}, s{sOKX}")
e("v_and_b32 v10, 31, v1")
e("v_lshrrev_b32 v11, 5, v1")
e(f"v_lshlrev_b32 v{vL16}, 4, v1")
e(f"v_lshlrev_b32 v{vQ}, 15, v11")
e(f"v_lshl_add_u32 v{vQ}, v10, 4, v{vQ}")
e(f"v_lshlrev_b32 v{vKA}, 13, v11")
e(f"v_lshl_add_u32 v{vKA}, v10, 4, v{vKA}")
e(f"s_lshl_b32 s{sT}, s{sI}, 9")
e(f"v_add_u32 v{vKA}, s{sT}, v{vKA}")
e(f"s_and_b32 s{sT+2}, s{sH}, 1")
e(f"s_lshl_b32 s{sT+2}, s{sT+2}, 3")
e(f"s_add_u32 s{sT+3}, s{sT}, s{sT+2}")
e(f"s_add_u32 s{sT+4}, s{sT+3}, {KX}")
e(f"v_lshl_add_u32 v{vKX}, v10, 4, s{sT+4}")
e(f"v_subrev_u32 v{vHM}, 1, v11")
e(f"v_lshlrev_b32 v12, 30, v11")
e(f"v_lshl_add_u32 v{vQX}, v10, 4, v12")
e(f"v_lshl_add_u32 v{vOX}, v10, 2, v12")
e("v_bfe_u32 v12, v1, 2, 2")
e("v_lshl_add_u32 v12, v11, 2, v12")
e("v_lshlrev_b32 v12, 4, v12")
e("v_bfe_u32 v13, v1, 1, 1")
e(f"v_mul_u32_u24 v13, {VP1-VP0}, v13")
e("v_and_b32 v14, 1, v1")
e("v_lshl_add_u32 v13, v14, 3, v13")
e(f"v_add_u32 v13, {VP0}, v13")
e(f"s_add_u32 s{sT+4}, s{sT+2}, {VX}")
e(f"v_sub_u32 v14, s{sT+4}, v13")
e("v_bfe_u32 v15, v1, 4, 1")
e("v_mul_u32_u24 v14, v14, v15")
e("v_add_u32 v13, v13, v14")
e(f"v_add3_u32 v{vVA}, v12, v13, s{sT}")
e("v_lshlrev_b32 v12, 2, v11")
e("v_sub_u32 v12, v10, v12")
e(f"s_mov_b32 s{sT}, {NEGBIG}")
for r in range(16):
    ko = 8 * (r >> 2) + (r & 3)
    e(f"v_subrev_u32 v13, {ko}, v12")
    e(f"v_ashrrev_i32 v13, 31, v13")
    e(f"v_and_b32 v{M8+r}, s{sT}, v13")
    e(f"v_xor_b32 v{M0+r}, s{sT}, v{M8+r}")
for r in (Q2+1, Q2+2, Q2+3, K2+2, K2+3): e(f"v_mov_b32 v{r}, 0")
for r in range(16): e(f"v_mov_b32 v{OA+r}, 0")
e(f"s_lshl_b32 s{sT}, s{sSLOT}, 3")
e(f"s_add_u32 s{sT}, s{sT}, s{sXCD}")
e(f"s_cmp_ge_u32 s{sSLOT}, 28")
e(f"s_cselect_b32 s{sT+1}, 32, 0")
e(f"s_sub_u32 s{sT}, s{sT}, s{sT+1}")
e(f"s_sub_u32 s{sT+1}, s{sSLOT}, 24")
e(f"s_cmp_lt_u32 s{sT+1}, 4")
e(f"s_cselect_b32 s{sT}, 216, s{sT}")
e(f"s_mul_i32 s{sFR}, s{sT}, 7282")
e(f"s_lshr_b32 s{sFR}, s{sFR}, 16")
e(f"s_mul_i32 s{sT+1}, s{sFR}, 9")
e(f"s_sub_u32 s{sCK}, s{sT}, s{sT+1}")
srd(SA, pWD, 4608 * 1152)
e("v_lshrrev_b32 v12, 3, v1")
e(f"s_mul_i32 s{sT}, s{sFR}, 192")
e(f"s_mul_i32 s{sT+1}, s{sWAVE}, 24")
e(f"s_add_u32 s{sT}, s{sT}, s{sT+1}")
e(f"v_add_u32 v12, s{sT}, v12")
e(f"v_lshlrev_b32 v{vHA}, 3, v12")
e(f"v_mul_u32_u24 v{vDA}, 1152, v12")
e("v_and_b32 v12, 7, v1")
e(f"v_lshl_add_u32 v{vDA}, v12, 4, v{vDA}")
e("s_setprio 1")
e("s_waitcnt vmcnt(0)")
e(f"s_or_b32 s{sT}, s{sISS}, s{sWAVE}")
e(f"s_cmp_lt_u32 s{sT}, 4")
e("s_cbranch_scc0 L_nocnt")
cnt_add()
lab("L_nocnt")
tag_check(17, 18)
e(f"v_mov_b32 v17, s{sTAG}")
stamp(5)
if STOP == "p1": e("s_branch L_fin")
e(f"s_cmp_eq_u32 s{sWAVE}, 7")
e("s_cbranch_scc0 L_poll1d")
e(f"s_cmp_eq_u32 s{sISS}, 0")
e("s_cbranch_scc0 L_nosend1")
cnt_wait(sT, sT+1, 4)
e("s_mov_b64 exec, 0xffff")
e(f"buffer_store_dword v17, v19, {s_(SWS,4)}, 0 offen sc1")
stamp(17)
lab("L_nosend1")
e("s_mov_b64 exec, 0x3ff")
e(f"s_lshl_b32 s{sT}, s{sJ}, 5")
e(f"s_add_u32 s{sT}, s{sT}, s{sH}")
e(f"s_lshl_b32 s{sT}, s{sT}, 7")
e(f"s_movk_i32 s{sT+3}, 0x3ff")
e(f"s_cmp_eq_u32 s{sJ}, 0")
e(f"s_cselect_b32 s{sT+3}, 0x333, s{sT+3}")
e("v_lshlrev_b32 v16, 2, v1")
e(f"s_mov_b32 s{sT+1}, 0")
lab("L_poll1")
e(f"buffer_load_dword v12, v16, {s_(SWS,4)}, s{sT} offen sc1")
e("s_waitcnt vmcnt(0)")
e("v_cmp_eq_u32 vcc, v17, v12")
e(f"s_and_b32 s{sT+4}, vcc_lo, s{sT+3}")
e(f"s_cmp_eq_u32 s{sT+4}, s{sT+3}")
e("s_cbranch_scc1 L_poll1x")
bound(sT+1)
e("s_branch L_poll1")
lab("L_poll1x")
e("s_mov_b64 exec, -1")
lab("L_poll1d")
e("s_barrier")
stamp(6)
e(f"s_lshl_b32 s{sT}, s{sH}, 16")
e(f"s_add_u32 s{sT}, s{sT}, s{sOQ}")
e(f"s_add_u32 s{sT}, s{sT}, {QKV}")
e(f"buffer_load_dwordx4 {v(Q1,4)}, v{vQ}, {s_(SWS,4)}, s{sT} offen sc1")
e(f"s_add_u32 s{sT}, s{sT+8}, s{sOQ}")
e(f"s_add_u32 s{sT}, s{sT}, s{sT+2}")
e(f"s_add_u32 s{sT}, s{sT}, {XP}")
e(f"buffer_load_dword v{Q2}, v{vQX}, {s_(SWS,4)}, s{sT} offen sc1")
e(f"s_lshl_b32 s{sT+1}, s{sWAVE}, 10")
for (ld, so, add) in ((KP0, sOK, 0), (KP1, sOK, 32768), (KX, sOKX, 0), (VP0, sOK, 32*65536), (VP1, sOK, 32*65536+32768), (VX, sOKX, 16*32768)):
    e(f"s_add_u32 m0, s{sT+1}, {ld}")
    e(f"s_add_u32 s{sT}, s{so}, {add}")
    e(f"buffer_load_dwordx4 v{vL16}, {s_(SWS,4)}, s{sT} offen sc1 lds")
e("s_waitcnt vmcnt(3)")
e("s_barrier")
stamp(7)
e(f"s_cmp_eq_u32 s{sISS}, 0")
e("s_cbranch_scc1 L_nopp")
e(f"buffer_load_dwordx4 v[156:159], v160, {s_(SWS,4)}, 0 offen sc1")
lab("L_nopp")

def kread(d):
    e(f"ds_read_b128 {v(K1,4)}, v{vKA} offset:{d*512}")
    e(f"ds_read_b64 {v(K2,2)}, v{vKX} offset:{d*512}")
def qk(d):
    S = SBUF(d)
    cin = v(M8,16) if d == 8 else (v(M0,16) if d == 0 else "0")
    e(f"v_mfma_f32_32x32x16_bf16 {v(S,16)}, {v(K1,4)}, {v(Q1,4)}, {cin}")
    e(f"v_mfma_f32_32x32x16_bf16 {v(S,16)}, {v(K2,4)}, {v(Q2,4)}, {v(S,16)}")

c("pass 1: exact row max")
kread(8)
e(f"v_mov_b32 v{MX}, {NEGBIG}")
e(f"v_mov_b32 v{MX+1}, {NEGBIG}")
e("s_waitcnt lgkmcnt(0)")
qk(8)
kread(7)
e("s_nop 7")
for d in range(8, -1, -1):
    if d > 0:
        e("s_waitcnt lgkmcnt(0)")
        qk(d - 1)
        if d > 1: kread(d - 2)
        else: e("s_nop 1")
    else:
        e("s_nop 4")
    S = SBUF(d)
    for r in range(8):
        e(f"v_max3_f32 v{MX + (r & 1)}, v{MX + (r & 1)}, v{S+2*r}, v{S+2*r+1}")
    if d > 0:
        e(f"s_cmp_eq_u32 s{sDMIN}, {d}")
        e("s_cbranch_scc1 L_p1done")
lab("L_p1done")
e(f"v_max_f32 v{MX}, v{MX}, v{MX+1}")
e(f"s_waitcnt lgkmcnt(0)")
kread(8)
e(f"v_mov_b32 v{MX+1}, v{MX}")
e("s_nop 1")
e(f"v_permlane32_swap_b32 v{MX}, v{MX+1}")
e(f"v_max_f32 v{MX}, v{MX}, v{MX+1}")
e(f"v_sub_f32 v{MX}, 0, v{MX}")
e(f"v_cvt_pk_bf16_f32 v{MX+1}, v{MX}, v{MX}")
e(f"v_lshlrev_b32 v{MX+1}, 16, v{MX+1}")
e(f"v_sub_f32 v{MX+1}, v{MX}, v{MX+1}")
e(f"v_cvt_pk_bf16_f32 v{MX}, v{MX}, v{MX+1}")
e(f"v_and_b32 v{Q2+1}, v{vHM}, v{MX}")
stamp(8)
e(f"s_cmp_eq_u32 s{sISS}, 0")
e("s_cbranch_scc1 L_m2_nog")
e(f"s_cmp_eq_u32 s{sWAVE}, 0")
e("s_cbranch_scc0 L_m2_nog")
e(f"s_mov_b32 s{sT+1}, 0")
e("s_waitcnt vmcnt(0)")
lab("L_m2_poll")
e("v_xor_b32 v157, v17, v157")
e("v_xor_b32 v159, v17, v159")
e("v_or_b32 v157, v157, v159")
e("v_cmp_eq_u32 vcc, 0, v157")
e("s_cmp_eq_u64 vcc, -1")
e("s_cbranch_scc1 L_m2_got")
bound(sT+1)
e(f"buffer_load_dwordx4 v[156:159], v160, {s_(SWS,4)}, 0 offen sc1")
e("s_waitcnt vmcnt(0)")
e("s_branch L_m2_poll")
lab("L_m2_got")
for r in (156, 158):
    e("s_nop 1")
    e(f"v_add_f32_dpp v{r}, v{r}, v{r} row_ror:8 row_mask:0xf bank_mask:0xf")
    cross_rows("v_add_f32", r, 157)
    bf16r(r)
    e("s_nop 1")
    e(f"v_mov_b32_dpp v{r+1}, v{r} row_ror:12 row_mask:0xf bank_mask:0xf")
    sigmoid(161, r)
    e(f"v_mul_f32 v{r}, v{r}, v161")
    bf16r(r)
    e(f"v_mul_f32 v{r}, v{r}, v{r+1}")
e("v_cvt_pk_bf16_f32 v156, v156, v18")
e("v_cvt_pk_bf16_f32 v158, v158, v18")
e("v_mov_b32 v157, v17")
e("v_mov_b32 v159, v17")
e(f"s_lshl_b32 s{sT}, s{sRB}, 6")
e(f"s_add_u32 s{sT}, s{sT}, {HH + 4096*8}")
e("s_mov_b64 exec, 0xf")
e(f"buffer_store_dwordx4 v[156:159], v{vL16}, {s_(SWS,4)}, s{sT} offen sc1")
e("s_mov_b64 exec, -1")
lab("L_m2_nog")
e("s_waitcnt vmcnt(0) lgkmcnt(0)")
e("s_barrier")
stamp(9)
e(f"s_lshl_b32 s{sT}, s{sCK}, 7")
for i in range(3):
    if i: e(f"s_add_u32 s{sT}, s{sT}, {8*1152}")
    e(f"buffer_load_dwordx4 {v(DW+4*i,4)}, v{vDA}, {s_(SA,4)}, s{sT} offen nt")
c("pass 2")
qk(8)
kread(7)
e("s_nop 5")
for d in range(8, -1, -1):
    for u in range(2):
        for wh in range(2):
            e(f"ds_read_b64_tr_b16 {v(VF+4*u+2*wh,2)}, v{vVA} offset:{d*512+u*256+wh*128}")
    if d > 0:
        e("s_waitcnt lgkmcnt(4)")
        qk(d - 1)
        if d > 1: kread(d - 2)
    S = SBUF(d)
    nk = 2 if d > 1 else 0
    for u in range(2):
        b = S + 8*u
        seq = [f"v_exp_f32 v{b}, v{b}", f"v_exp_f32 v{b+1}, v{b+1}", f"v_exp_f32 v{b+2}, v{b+2}"]
        for k in range(4):
            seq.append(f"v_cvt_pk_bf16_f32 v{PB+4*u+k}, v{b+2*k}, v{b+2*k+1}")
            for r in (2*k+3, 2*k+4):
                if r < 8: seq.append(f"v_exp_f32 v{b+r}, v{b+r}")
        seq.insert(len(seq)-1, f"s_waitcnt lgkmcnt({nk})" if u == 0 else "s_nop 0")
        for x in seq: e(x)
        e("s_nop 1")
        e(f"v_mfma_f32_32x32x16_bf16 {v(OA,16)}, {v(VF+4*u,4)}, {v(PB+4*u,4)}, {v(OA,16)}")
    if d > 0:
        e(f"s_cmp_eq_u32 s{sDMIN}, {d}")
        e("s_cbranch_scc1 L_p2done")
lab("L_p2done")
e("s_setprio 0")
e(f"s_lshl_b32 s{sT}, s{sH}, 16")
e(f"s_add_u32 s{sT}, s{sT}, s{sOQ}")
e(f"s_add_u32 s{sT}, s{sT}, {OM}")
e(f"s_lshl_b32 s{sT+1}, s{sH}, 13")
e(f"s_lshr_b32 s{sT+2}, s{sOQ}, 2")
e(f"s_add_u32 s{sT+1}, s{sT+1}, s{sT+2}")
e(f"s_add_u32 s{sT+1}, s{sT+1}, {OX}")
e("s_nop 4")
e(f"v_rcp_f32 v{MX}, v{OA+10}")
e("s_nop 0")
for r in range(10): e(f"v_mul_f32 v{OA+r}, v{MX}, v{OA+r}")
for k in range(5): e(f"v_cvt_pk_bf16_f32 v{PB+k}, v{OA+2*k}, v{OA+2*k+1}")
e(f"buffer_store_dwordx4 {v(PB,4)}, v{vQ}, {s_(SWS,4)}, s{sT} offen sc1")
e(f"buffer_store_dword v{PB+4}, v{vOX}, {s_(SWS,4)}, s{sT+1} offen sc1")
stamp(10)

vOM, vOXL, vWM, vWX, vRW, vT1, vT2, vX1, vX2, vF2, vG1, vG2 = 2, 3, 4, 5, 6, 7, 8, 9, 10, 11, 14, 15
X1, X2, G1, G2, CD = 20, 24, 28, 30, 32
OF, A3, WO = 36, 72, 92
sTT, sKH, sHASY = sT+10, sT+11, sT+12
e(f"s_and_b32 s{sTT}, s{sWAVE}, 3")
e(f"s_lshr_b32 s{sKH}, s{sWAVE}, 2")
e(f"s_mul_i32 s{sT}, s{sTB}, 1152")
e(f"s_mul_i32 s{sT+1}, s{sCS}, 144")
e(f"s_add_u32 s{sT}, s{sT}, s{sT+1}")
e(f"s_lshl_b32 s{sT+1}, s{sTB}, 3")
e(f"s_add_u32 s{sT+1}, s{sT+1}, {GG}")
e(f"s_cmp_eq_u32 s{sWAVE}, 7")
e(f"s_cselect_b32 s{sT+2}, 0, {BIGOFF}")
for (tau0, vt, vx, vg) in ((None, vT1, vX1, vG1), (512, vT2, vX2, vG2)):
    if tau0 is None: src = 0
    else:
        e(f"v_add_u32 v16, {tau0}, v1"); src = 16
    divmod_const(12, 13, src, 9, 575, sT)
    e(f"v_mul_u32_u24 v{vt}, {RP}, v12")
    e(f"v_lshl_add_u32 v{vt}, v13, 5, v{vt}")
    e(f"v_mul_u32_u24 v{vx}, 1152, v12")
    e(f"v_lshl_add_u32 v{vx}, v13, 4, v{vx}")
    e(f"v_add_u32 v{vx}, s{sT}, v{vx}")
    e(f"v_lshl_add_u32 v{vg}, v12, 3, s{sT+1}")
    if tau0 is not None:
        e(f"v_add_u32 v{vx}, s{sT+2}, v{vx}")
e(f"buffer_load_dwordx4 {v(X1,4)}, v{vX1}, {s_(SX,4)}, 0 offen")
e(f"buffer_load_dwordx4 {v(X2,4)}, v{vX2}, {s_(SX,4)}, 0 offen")
e(f"buffer_load_dwordx2 {v(G1,2)}, v{vG1}, {s_(SWS,4)}, 0 offen sc1")
e(f"buffer_load_dwordx2 {v(G2,2)}, v{vG2}, {s_(SWS,4)}, 0 offen sc1")
cand_issue(CD, 19)
def h_issue():
    e(f"s_mov_b32 s{sT}, {HH}")
    for i in range(3): e(f"buffer_load_dwordx2 {v(HV+2*i,2)}, v{vHA}, {s_(SWS,4)}, s{sT} offen offset:{64*i} sc1")
h_issue()
e("v_and_b32 v12, 15, v1")
e("v_lshrrev_b32 v13, 4, v1")
e(f"v_lshlrev_b32 v{vOM}, 15, v13")
e(f"v_lshl_add_u32 v{vOXL}, v12, 2, v{vOM}")
e(f"v_lshl_add_u32 v{vOM}, v12, 4, v{vOM}")
e(f"s_lshl_b32 s{sT}, s{sTT}, 4")
e(f"v_add_u32 v{vRW}, s{sT}, v12")
e(f"v_mul_u32_u24 v{vRW}, {RP}, v{vRW}")
e(f"v_lshl_add_u32 v{vRW}, v13, 4, v{vRW}")
e(f"s_mul_i32 s{sT}, s{sKH}, {R1-R0}")
e(f"v_add_u32 v{vRW}, s{sT}, v{vRW}")
e(f"s_lshl_b32 s{sT+1}, s{sTT}, 4")
e(f"s_add_u32 s{sT+3}, s{sTB}, s{sT+1}")
e("v_bfe_u32 v16, v1, 2, 2")
e(f"v_mul_u32_u24 v{vWX}, 72, v13")
e(f"v_add3_u32 v{vWX}, v{vWX}, v16, 16")
e(f"v_lshrrev_b32 v{vWM}, 1, v13")
e(f"v_mul_u32_u24 v{vWM}, 20, v{vWM}")
e("v_and_b32 v13, 1, v13")
e("v_lshl_add_u32 v13, v13, 2, v16")
e(f"v_add_u32 v{vWM}, v{vWM}, v13")
e("v_and_b32 v13, 3, v1")
e("v_lshlrev_b32 v13, 3, v13")
e(f"s_mul_i32 s{sT}, s{sKH}, {288*WOP}")
e(f"s_mul_i32 s{sT+1}, s{sCS}, 144")
e(f"s_and_b32 s{sT+1}, s{sT+1}, 63")
e(f"s_add_u32 s{sT}, s{sT}, s{sT+1}")
e(f"s_add_u32 s{sT}, s{sT}, {BULK}")
e(f"v_add_u32 v13, s{sT}, v13")
e(f"s_movk_i32 s{sT}, {WOP}")
e(f"v_mad_u32_u24 v{vWM}, v{vWM}, s{sT}, v13")
e(f"v_mad_u32_u24 v{vWX}, v{vWX}, s{sT}, v13")
e("s_waitcnt vmcnt(0)")
cnt_add()
stamp(11)
e(f"s_cmp_lt_u32 s{sWAVE}, 4")
e("s_cbranch_scc0 L_nowo")
e("v_mov_b32 v39, v10")
srd(SB, pWO, 576 * 1152)
wo_addr(0, 4)
wo_dma(9)
e("v_mov_b32 v10, v39")
lab("L_nowo")
e(f"s_cmp_eq_u32 s{sWAVE}, 7")
e("s_cbranch_scc0 L_nosend2")
cnt_wait(sT, sT+1, 12)
e(f"s_lshl_b32 s{sT}, s{sJ}, 12")
e(f"s_lshl_b32 s{sT+1}, s{sH}, 2")
e(f"s_add_u32 s{sT}, s{sT}, s{sT+1}")
e(f"s_add_u32 s{sT}, s{sT}, {F2}")
e(f"v_lshlrev_b32 v12, 7, v1")
e("s_mov_b64 exec, 0xffffffff")
e(f"buffer_store_dword v17, v12, {s_(SWS,4)}, s{sT} offen sc1")
e("s_mov_b64 exec, -1")
lab("L_nosend2")
cand_check(CD, 19, 17)
e(f"s_sub_u32 s{sHASY}, s{sIDX}, s{sTB}")
c("---- this workgroup's unit of the routed token's down projection ----")
e(f"s_cmp_lt_u32 s{sFR}, 24")
e("s_cbranch_scc0 L_p3_main")
e(f"s_mov_b32 s{sT+1}, 0")
lab("L_h_chk")
for i in range(3): e(f"v_xor_b32 v{HV+2*i+1}, v17, v{HV+2*i+1}")
e(f"v_or3_b32 v{HV+1}, v{HV+1}, v{HV+3}, v{HV+5}")
e(f"v_cmp_eq_u32 vcc, 0, v{HV+1}")
e("s_cmp_eq_u64 vcc, -1")
e("s_cbranch_scc1 L_h_ok")
bound(sT+1)
h_issue()
e("s_waitcnt vmcnt(0)")
e("s_branch L_h_chk")
lab("L_h_ok")
for i in range(3):
    e(f"v_lshlrev_b32 v{HV+2*i+1}, 16, v{HV+2*i}")
    for k in range(4): e(f"v_dot2_f32_bf16 v{40+2*k}, v{DW+4*i+k}, v{HV+2*i}, {'0' if i == 0 else 'v%d' % (40+2*k)}")
    for k in range(4): e(f"v_dot2_f32_bf16 v{41+2*k}, v{DW+4*i+k}, v{HV+2*i+1}, {'0' if i == 0 else 'v%d' % (41+2*k)}")
col_of_lane(48, 49)
e(f"s_lshl_b32 s{sT}, s{sWAVE}, 8")
e(f"s_add_u32 s{sT}, s{sT}, {PS2}")
e(f"v_lshl_add_u32 v48, v48, 2, s{sT}")
fold8(40)
e("ds_write_b64 v48, v[40:41]")
e("s_waitcnt lgkmcnt(0)")

lab("L_p3_main")
e(f"s_cmp_lt_u32 s{sWAVE}, 4")
e("s_cbranch_scc0 L_c2")
e("s_waitcnt vmcnt(0)")
lab("L_c2")
e("s_barrier")
stamp(12)
e(f"s_cmp_eq_u32 s{sWAVE}, 6")
e("s_cbranch_scc0 L_noy0")
e(f"s_cmp_lt_u32 s{sFR}, 24")
e("s_cbranch_scc0 L_noy0")
e("v_lshlrev_b32 v12, 2, v1")
e(f"v_add_u32 v12, {PS2}, v12")
for w in range(8): e(f"ds_read_b32 v{40+w}, v12 offset:{256*w}")
e(f"s_mul_i32 s{sT}, s{sFR}, 4608")
e(f"s_lshl_b32 s{sT+1}, s{sCK}, 9")
e(f"s_add_u32 s{sT}, s{sT}, s{sT+1}")
e(f"s_add_u32 s{sT}, s{sT}, {YY}")
e("v_lshlrev_b32 v12, 3, v1")
e("s_waitcnt lgkmcnt(0)")
for w in range(1, 8): e(f"v_add_f32 v40, v40, v{40+w}")
e("v_mov_b32 v41, v17")
e(f"buffer_store_dwordx2 v[40:41], v12, {s_(SWS,4)}, s{sT} offen sc1")
lab("L_noy0")
def wo_reads(F, ar, off, second):
    for t in range(5):
        e(f"ds_read_b64_tr_b16 {v(F+4*t,2)}, v{ar} offset:{off+32*t}")
        e(f"ds_read_b64_tr_b16 {v(F+4*t+2,2)}, v{ar} offset:{off+second+32*t}")
for sp in range(8):
    e(f"s_add_u32 s{sT}, s{sCS}, {sp}")
    e(f"s_and_b32 s{sT}, s{sT}, 7")
    e(f"s_mul_i32 s{sT}, s{sT}, {36*WOP}")
    e(f"v_add_u32 v{12+(sp&1)}, s{sT}, v{vWM}")
    wo_reads(WO + 20*sp, 12+(sp&1), 0, 8*WOP)
e(f"s_cmp_eq_u32 s{sWAVE}, 7")
e("s_cbranch_scc0 L_poll2d")
e(f"s_lshr_b32 s{sT}, s{sTB}, 3")
e(f"s_add_u32 s{sT}, s{sT}, s{sCS}")
e(f"s_lshl_b32 s{sT}, s{sT}, 7")
e(f"s_add_u32 s{sT}, s{sT}, {F2}")
e("v_lshlrev_b32 v13, 2, v1")
e("s_mov_b64 exec, 0xffffffff")
e(f"s_mov_b32 s{sT+1}, 0")
lab("L_poll2")
e(f"buffer_load_dword v12, v13, {s_(SWS,4)}, s{sT} offen sc1")
e("s_waitcnt vmcnt(0)")
e("v_cmp_eq_u32 vcc, v17, v12")
e("s_cmp_eq_u32 vcc_lo, -1")
e("s_cbranch_scc1 L_poll2x")
bound(sT+1)
e("s_branch L_poll2")
lab("L_poll2x")
e("s_mov_b64 exec, -1")
lab("L_poll2d")
e("s_barrier")
stamp(13)
e(f"s_lshl_b32 s{sT}, s{sKH}, 20")
e(f"s_lshl_b32 s{sT+1}, s{sT+3}, 4")
e(f"s_add_u32 s{sT}, s{sT}, s{sT+1}")
e(f"s_add_u32 s{sT}, s{sT}, {OM}")
for sp in range(8):
    e(f"s_add_u32 s{sT+1}, s{sCS}, {sp}")
    e(f"s_and_b32 s{sT+1}, s{sT+1}, 7")
    e(f"s_lshl_b32 s{sT+1}, s{sT+1}, 17")
    e(f"s_add_u32 s{sT+1}, s{sT+1}, s{sT}")
    e(f"buffer_load_dwordx4 {v(OF+4*sp,4)}, v{vOM}, {s_(SWS,4)}, s{sT+1} offen sc1")
e(f"s_lshl_b32 s{sT}, s{sKH}, 17")
e(f"s_lshl_b32 s{sT+1}, s{sT+3}, 2")
e(f"s_add_u32 s{sT}, s{sT}, s{sT+1}")
e(f"s_add_u32 s{sT}, s{sT}, {OX}")
for i in range(4):
    if i: e(f"s_add_u32 s{sT}, s{sT}, 8192")
    e(f"buffer_load_dword v{OF+32+i}, v{vOXL}, {s_(SWS,4)}, s{sT} offen sc1")
for sp in range(9):
    e(f"s_waitcnt vmcnt({11-sp if sp < 8 else 0}) lgkmcnt(0)")
    F = WO + 20*(sp % 8)
    for t in range(5):
        e(f"v_mfma_f32_16x16x32_bf16 {v(A3+4*t,4)}, {v(F+4*t,4)}, {v(OF+4*sp,4)}, {'0' if sp == 0 else v(A3+4*t,4)}")
    if sp == 0: wo_reads(WO, vWX, 0, 36*WOP)
stamp(14)
e(f"s_cmp_lt_u32 s{sHASY}, 64")
e("s_cbranch_scc0 L_noy1")
c("gather the 24 partial y rows: wave w sums producers 3w..3w+2")
e(f"s_mul_i32 s{sT}, s{sWAVE}, {3*4608}")
e(f"s_mul_i32 s{sT+1}, s{sCS}, 576")
e(f"s_add_u32 s{sT}, s{sT}, s{sT+1}")
e(f"s_add_u32 s{sT}, s{sT}, {YY}")
e(f"s_add_u32 s{sT+2}, s{sT}, 4608")
e(f"s_add_u32 s{sT+4}, s{sT}, 9216")
e("s_mov_b32 exec_hi, 0xf")
e(f"s_mov_b32 s{sT+1}, 0")
lab("L_polly")
for p, so in enumerate((sT, sT+2, sT+4)):
    e(f"buffer_load_dwordx4 {v(100+4*p,4)}, v19, {s_(SWS,4)}, s{so} offen sc1")
e("s_waitcnt vmcnt(0)")
for p in range(3):
    e(f"v_xor_b32 v{101+4*p}, v17, v{101+4*p}")
    e(f"v_xor_b32 v{103+4*p}, v17, v{103+4*p}")
e("v_or3_b32 v101, v101, v103, v105")
e("v_or3_b32 v107, v107, v109, v111")
e("v_or_b32 v101, v101, v107")
e("v_cmp_eq_u32 vcc, 0, v101")
e("s_cmp_eq_u64 vcc, exec")
e("s_cbranch_scc1 L_pollyd")
bound(sT+1)
e("s_branch L_polly")
lab("L_pollyd")
e("v_add_f32 v100, v100, v104")
e("v_add_f32 v101, v102, v106")
e("v_add_f32 v100, v100, v108")
e("v_add_f32 v101, v101, v110")
e("v_lshrrev_b32 v13, 1, v19")
e(f"s_mul_i32 s{sT}, s{sWAVE}, 288")
e(f"s_add_u32 s{sT}, s{sT}, {YR}")
e(f"v_add_u32 v12, s{sT}, v13")
e("ds_write_b64 v12, v[100:101]")
e("s_mov_b64 exec, -1")
lab("L_noy1")
e("s_nop 4")
for t in range(5):
    e(f"ds_write_b128 v{vRW}, {v(A3+4*t,4)} offset:{64*t}")
e("s_waitcnt lgkmcnt(0)")
e("s_barrier")
stamp(15)

def unpack(d, p):
    e(f"v_lshlrev_b32 v{d}, 16, v{p}")
    e(f"v_and_b32 v{d+1}, 0xffff0000, v{p}")
def round8(B, T):
    for k in range(4): e(f"v_cvt_pk_bf16_f32 v{T+k}, v{B+2*k}, v{B+2*k+1}")
    for k in range(4): unpack(B+2*k, T+k)

def task(vt, vx, vg, X, G, nm):
    A, Bq, T = 40, 56, 64
    e(f"ds_read_b128 {v(A,4)}, v{vt} offset:{R0}")
    e(f"ds_read_b128 {v(A+4,4)}, v{vt} offset:{R0+16}")
    e(f"ds_read_b128 {v(A+8,4)}, v{vt} offset:{R1}")
    e(f"ds_read_b128 {v(A+12,4)}, v{vt} offset:{R1+16}")
    lp, done = ul("g"), ul("gd")
    e(f"s_mov_b32 s{sT}, 0")
    lab(lp)
    e(f"v_cmp_eq_u32 vcc, v17, v{G+1}")
    e("s_cmp_eq_u64 vcc, -1")
    e(f"s_cbranch_scc1 {done}")
    bound(sT)
    e(f"buffer_load_dwordx2 {v(G,2)}, v{vg}, {s_(SWS,4)}, 0 offen sc1")
    e("s_waitcnt vmcnt(0)")
    e(f"s_branch {lp}")
    lab(done)
    for k in range(4): unpack(Bq+2*k, X+k)
    e(f"v_sub_f32 v{G+1}, 1.0, v{G}")
    bf16r(G+1)
    e(f"s_cmp_lt_u32 s{sHASY}, 64")
    e(f"s_cbranch_scc0 L_noy2{nm}")
    e(f"v_subrev_u32 v68, {GG}, v{vg}")
    e(f"v_lshrrev_b32 v68, 3, v68")
    e(f"s_mul_i32 s{sT}, s{sHASY}, {RP}")
    e(f"v_subrev_u32 v69, s{sT}, v{vt}")
    e(f"v_and_b32 v69, 0x1e0, v69")
    for w in range(8):
        e(f"ds_read_b128 {v(100+8*w,4)}, v69 offset:{YR+288*w}")
        e(f"ds_read_b128 {v(104+8*w,4)}, v69 offset:{YR+288*w+16}")
        if w % 4 == 3: e("s_waitcnt lgkmcnt(0)")
    for w in range(1, 8):
        for i in range(8): e(f"v_add_f32 v{100+i}, v{100+i}, v{100+8*w+i}")
    round8(100, 110)
    e(f"s_lshr_b32 s{sT}, s{sKEY}, 16")
    e(f"s_bitcmp1_b32 s{sT}, 15")
    e(f"s_cselect_b32 s{sT+1}, 0x8000, 0xffff") if False else None
    e(f"s_cselect_b32 s{sT+1}, 0, 0x7fff")
    e(f"s_xor_b32 s{sT}, s{sT}, s{sT+1}")
    e(f"s_xor_b32 s{sT}, s{sT}, 0x8000")
    e(f"s_lshl_b32 s{sT}, s{sT}, 16")
    e(f"v_mov_b32 v108, s{sT}")
    sigmoid(109, 108)
    bf16r(109)
    for i in range(8): e(f"v_mul_f32 v{100+i}, v109, v{100+i}")
    round8(100, 110)
    for i in range(8): e(f"v_add_f32 v{100+i}, v{Bq+i}, v{100+i}")
    round8(100, 110)
    e(f"v_cmp_eq_u32 vcc, s{sIDX}, v68")
    e("s_nop 1")
    for i in range(8): e(f"v_cndmask_b32 v{Bq+i}, v{Bq+i}, v{100+i}, vcc")
    lab(f"L_noy2{nm}")
    e("s_waitcnt lgkmcnt(0)")
    for i in range(8): e(f"v_add_f32 v{A+i}, v{A+i}, v{A+8+i}")
    round8(A, T)
    for i in range(8): e(f"v_mul_f32 v{A+i}, v{G}, v{A+i}")
    for i in range(8): e(f"v_mul_f32 v{Bq+i}, v{G+1}, v{Bq+i}")
    round8(A, T)
    round8(Bq, T)
    for i in range(8): e(f"v_add_f32 v{A+i}, v{A+i}, v{Bq+i}")
    for k in range(4): e(f"v_cvt_pk_bf16_f32 v{T+k}, v{A+2*k}, v{A+2*k+1}")
    e(f"buffer_store_dwordx4 {v(T,4)}, v{vx}, {s_(SOUT,4)}, 0 offen {opt('of')}")
task(vT1, vX1, vG1, X1, G1, "a")
e(f"s_cmp_eq_u32 s{sWAVE}, 7")
e("s_cbranch_scc0 L_fin")
task(vT2, vX2, vG2, X2, G2, "b")
lab("L_fin")
stamp(16)
if PROBE >= 0:
    if PROBE == 0: e("s_mov_b32 s94, s90")
    e("s_cmp_eq_u32 s94, 0")
    e("s_cbranch_scc1 L_end")
    e(f"s_sub_u32 s94, s94, s{sTAG}")
    e("s_max_i32 s94, s94, 0")
    e("s_min_u32 s94, s94, 10000")
    e("s_lshl_b32 s94, s94, 2")
    e("s_memrealtime s[92:93]")
    e("s_waitcnt lgkmcnt(0)")
    e("s_add_u32 s94, s94, s92")
    lab("L_probe")
    e("s_memrealtime s[92:93]")
    e("s_waitcnt lgkmcnt(0)")
    e("s_sub_u32 s92, s92, s94")
    e("s_cmp_lt_i32 s92, 0")
    e("s_cbranch_scc1 L_probe")

if DBGT:
    e("v_lshlrev_b32 v2, 2, v1")
    e("s_mov_b64 exec, 0xfffe")
    e(f"global_atomic_umax v2, v255, {s_(pDBG,2)}")
elif PROF:
    e(f"s_lshl_b32 s{sT}, s2, 3")
    e(f"s_add_u32 s{sT}, s{sT}, s{sWAVE}")
    e(f"s_lshl_b32 s{sT}, s{sT}, 7")
    e(f"s_add_u32 s{sT}, s{sT}, {PROFB}")
    e("v_lshlrev_b32 v2, 2, v1")
    e("s_mov_b64 exec, 0xffffffff")
    e(f"buffer_store_dword v255, v2, {s_(SWS,4)}, s{sT} offen")
lab("L_end")
e("s_endpgm")

body = "\n".join(L)
hdr = open("cdna_kernels/" + NAME + ".s.ref").read().split("; Override launch")[0]
text = hdr + f"""; @launch grid=(256,1,1) block=(512,1,1) lds={LDS_TOTAL}
.amdgcn_target "amdgcn-amd-amdhsa--gfx950"
.text
.globl {NAME}_kernel
.p2align 8
.type {NAME}_kernel,@function
{body}
.section .rodata,"a"
.p2align 6
.amdhsa_kernel {NAME}_kernel
  .amdhsa_next_free_vgpr 256
  .amdhsa_next_free_sgpr 102
  .amdhsa_accum_offset 256
  .amdhsa_group_segment_fixed_size 0
  .amdhsa_kernarg_size 96
  .amdhsa_user_sgpr_count 2
  .amdhsa_user_sgpr_kernarg_segment_ptr 1
  .amdhsa_system_sgpr_workgroup_id_x 1
.end_amdhsa_kernel
"""
out = [a for a in sys.argv[1:] if not a.startswith("--")]
path = out[0] if out else "cdna_kernels/" + NAME + ".s"
open(path, "w").write(text)
errs = hazard.check(body)
print("\n".join(errs) if errs else "hazard check clean", file=sys.stderr)
```

```python
import sys, math, struct
import hazard

NAME = "gated_mix__sliding_block__moe_arch_mod__prompt"
DBGT = "--dbgt" in sys.argv
PROF = "--prof" in sys.argv or DBGT
NOLOAD = "--noload" in sys.argv
NOCOMP = "--nocomp" in sys.argv
NOMFMA = "--nomfma" in sys.argv
NOREAD = "--noread" in sys.argv
XNOSWZ = "--xnoswz" in sys.argv
NOX = "--nox" in sys.argv
NOW = "--now" in sys.argv
WAL = "--wal" in sys.argv
def opt(n, d=""):
    for a in sys.argv:
        if a.startswith(f"--{n}="): return a.split("=", 1)[1].replace("+", " ")
    return d
XF_, WF_ = opt("xf"), opt("wf")
NOS = "--nos" in sys.argv
LDST = "--ldst" in sys.argv
NOWOS = "--nowos" in sys.argv
WOPF = int(opt("wopf", "5"))
SPF = opt("spf", "n") != "n"
SPF0 = int(opt("spf", "1")) if SPF else 0
B0LATE = "--b0late" in sys.argv
ROT = opt("rot", "9")
STOP = None
for a in sys.argv:
    if a.startswith("--stop="): STOP = a.split("=")[1]

F1, F2, CAND, GG, HH, YY, PP = 0x0, 0x8000, 0x10000, 0x14000, 0x28000, 0x38000, 0x60000
QKV, XP, OM, OX = 0x100000, 0x700000, 0x880000, 0xA80000
PROFB = 0xB00000
WS_SIZE = 0xC00000
BIGOFF = 0x40000000
SPIN = 200000

SLOT = 34816
KP0, KP1, KX = 0, 8192, 16384
VB = 24576
VP0, VP1, VX = VB, VB + 8192 + 64, VB + 16384 + 128
BULK = 49408
R0, R1, YR = 0, 21504, 43008
RP = 336
PS2 = 160768
CNT = 160512
LDS_TOTAL = 163840

def f32bits(x): return struct.unpack("<I", struct.pack("<f", x))[0]
QSCALE = f32bits(18 ** -0.5 * math.log2(math.e))
NEGBIG = f32bits(-1e30)
LOG2E = f32bits(math.log2(math.e))

L = []
def e(s): L.append("  " + s)
def lab(s): L.append(s + ":")
def c(s): L.append("  ; " + s)
def v(a, n=1): return f"v{a}" if n == 1 else f"v[{a}:{a+n-1}]"
def s_(a, n=1): return f"s{a}" if n == 1 else f"s[{a}:{a+n-1}]"
_uid = [0]
def ul(p):
    _uid[0] += 1
    return f"L_{p}_{_uid[0]}"

sWAVE, sXCD, sSLOT, sRB, sCB = 3, 4, 5, 6, 7
SX, SW, SWS, SOUT, SA, SB = 8, 12, 40, 44, 48, 52
pX, pWQKV, pWO, pWR, pWG, pWU, pWD, pGW, pOUT, pDBG, pWS = 16, 18, 20, 24, 26, 28, 30, 32, 34, 36, 38
sTAG = 56
sT = 57
sH, sJ, sI, sTB, sCS, sISS = 76, 77, 78, 79, 80, 81
sDMIN, sIDX, sKEY, sFLAG = 82, 83, 84, 85
sSTAMP = 86

PROBE = int(opt("probe", "-1"))
def stamp(k):
    if PROBE == k:
        e("s_memrealtime s[94:95]")
        e("s_waitcnt lgkmcnt(0)")
    if PROF:
        if DBGT:
            m = {1: 3, 2: 4, 5: 5, 6: 6, 7: 7, 10: 8, 12: 9, 13: 10, 15: 11, 16: 12}
            if k not in m: return
            k = m[k]
        e(f"s_memrealtime s[100:101]" if DBGT else f"s_memtime s[100:101]")
        e("s_waitcnt lgkmcnt(0)")
        e(f"v_writelane_b32 v255, s100, {k}")

def srd(base, ptr, size):
    e(f"s_mov_b32 s{base}, s{ptr}")
    e(f"s_mov_b32 s{base+1}, s{ptr+1}")
    e(f"s_mov_b32 s{base+2}, {size}")
    e(f"s_mov_b32 s{base+3}, 0x20000")

def divmod_const(dq, dr, src, d, maxv, tmp_s):
    for sh in range(16, 25):
        m = -(-(1 << sh) // d)
        if m < (1 << 24) and maxv * m < (1 << 32) and all((x * m) >> sh == x // d for x in range(maxv + 1)):
            break
    else:
        raise Exception("no magic")
    e(f"v_mul_u32_u24 v{dq}, {m}, v{src}")
    e(f"v_lshrrev_b32 v{dq}, {sh}, v{dq}")
    e(f"v_mul_u32_u24 v{dr}, {d}, v{dq}")
    e(f"v_sub_u32 v{dr}, v{src}, v{dr}")

def tag_issue(vt, vz):
    e(f"v_mov_b32 v{vz}, 0")
    e(f"global_load_dword v{vt}, v{vz}, {s_(pDBG,2)} sc1")

def tag_check(vt, vz):
    lp, done = ul("tag"), ul("tagd")
    e(f"s_mov_b32 s{sT}, 0")
    lab(lp)
    e(f"v_readfirstlane_b32 s{sTAG}, v{vt}")
    e(f"s_cmp_lg_u32 s{sTAG}, 0")
    e(f"s_cbranch_scc1 {done}")
    e(f"s_add_u32 s{sT}, s{sT}, 1")
    e(f"s_cmp_gt_u32 s{sT}, {SPIN}")
    e(f"s_cbranch_scc1 L_end")
    e(f"global_load_dword v{vt}, v{vz}, {s_(pDBG,2)} sc1")
    e("s_waitcnt vmcnt(0)")
    e(f"s_branch {lp}")
    lab(done)


def bound(cnt):
    e(f"s_add_u32 s{cnt}, s{cnt}, 1")
    e(f"s_cmp_gt_u32 s{cnt}, {SPIN}")
    e("s_cbranch_scc1 L_end")

def bf16r(r, t=None):
    e(f"v_cvt_pk_bf16_f32 v{r}, v{r}, v{r}")
    e(f"v_and_b32 v{r}, 0xffff0000, v{r}")

def sigmoid(d, x):
    e(f"v_mul_f32 v{d}, {(LOG2E ^ 0x80000000):#x}, v{x}")
    e(f"v_exp_f32 v{d}, v{d}")
    e("s_nop 0")
    e(f"v_add_f32 v{d}, 1.0, v{d}")
    e(f"v_rcp_f32 v{d}, v{d}")
    e("s_nop 0")

def row_max_u32(r):
    for k in (8, 4, 2, 1):
        e("s_nop 1")
        e(f"v_max_u32_dpp v{r}, v{r}, v{r} row_ror:{k} row_mask:0xf bank_mask:0xf")

def cross_rows(op, r, t):
    for sw in ("v_permlane16_swap_b32", "v_permlane32_swap_b32"):
        e(f"v_mov_b32 v{t}, v{r}")
        e("s_nop 1")
        e(f"{sw} v{r}, v{t}")
        e(f"{op} v{r}, v{r}, v{t}")

def cand_issue(R, va):
    e(f"v_lshlrev_b32 v{va}, 4, v1")
    e(f"s_mov_b32 s{sT}, {CAND}")
    e(f"buffer_load_dwordx4 {v(R,4)}, v{va}, {s_(SWS,4)}, s{sT} offen sc1")

def cand_check(R, va, vtag):
    lp, done = ul("cand"), ul("candd")
    e(f"s_mov_b32 s{sT+1}, 0")
    lab(lp)
    e(f"v_xor_b32 v{R+1}, v{vtag}, v{R+1}")
    e(f"v_xor_b32 v{R+3}, v{vtag}, v{R+3}")
    e(f"v_or_b32 v{R+1}, v{R+1}, v{R+3}")
    e(f"v_cmp_eq_u32 vcc, 0, v{R+1}")
    e("s_cmp_eq_u64 vcc, -1")
    e(f"s_cbranch_scc1 {done}")
    bound(sT+1)
    e(f"s_mov_b32 s{sT}, {CAND}")
    e(f"buffer_load_dwordx4 {v(R,4)}, v{va}, {s_(SWS,4)}, s{sT} offen sc1")
    e("s_waitcnt vmcnt(0)")
    e(f"s_branch {lp}")
    lab(done)
    e(f"v_max_u32 v{R}, v{R}, v{R+2}")
    row_max_u32(R)
    cross_rows("v_max_u32", R, R+1)
    e("s_nop 0")
    e(f"v_readfirstlane_b32 s{sKEY}, v{R}")
    e(f"s_and_b32 s{sIDX}, s{sKEY}, 0xffff")
    e(f"s_sub_u32 s{sIDX}, 2047, s{sIDX}")

WOP = 160
def cnt_add(off=0):
    e(f"v_mov_b32 v12, {CNT + off}")
    e("v_mov_b32 v13, 1")
    e("s_mov_b64 exec, 1")
    e("ds_add_u32 v12, v13")
    e("s_mov_b64 exec, -1")
def cnt_wait(t, n, target, off=0):
    lp = ul("cnt")
    e(f"v_mov_b32 v12, {CNT + off}")
    e(f"s_mov_b32 s{n}, 0")
    lab(lp)
    e("ds_read_b32 v13, v12")
    bound(n)
    e("s_waitcnt lgkmcnt(0)")
    e(f"v_readfirstlane_b32 s{t}, v13")
    e(f"s_cmp_lt_u32 s{t}, {target}")
    e(f"s_cbranch_scc1 {lp}")

lab(f"{NAME}_kernel")
e(f"s_memrealtime s[90:91]")
e(f"s_load_dwordx16 s[16:31], s[0:1], 0")
e(f"s_load_dwordx8 s[32:39], s[0:1], 64")
if PROF:
    e(f"s_memrealtime s[98:99]")
    e(f"s_memtime s[96:97]")
    e("v_mov_b32 v255, 0")
if PROBE > 0: e("s_mov_b32 s94, 0")
e("s_cmp_ge_u32 s2, 256")
e("s_cbranch_scc1 L_end")
e("v_lshrrev_b32 v2, 6, v0")
e("v_and_b32 v1, 63, v0")
e(f"v_readfirstlane_b32 s{sWAVE}, v2")
e(f"s_and_b32 s{sXCD}, s2, 7")
e(f"s_lshr_b32 s{sSLOT}, s2, 3")
e(f"s_and_b32 s{sRB}, s{sXCD}, 3")
e(f"s_lshl_b32 s{sRB}, s{sRB}, 2")
e(f"s_and_b32 s{sT}, s{sSLOT}, 3")
e(f"s_add_u32 s{sRB}, s{sRB}, s{sT}")
e(f"s_lshr_b32 s{sCB}, s{sXCD}, 2")
e(f"s_mul_i32 s{sCB}, s{sCB}, 6")
e(f"s_lshr_b32 s{sT+1}, s{sSLOT}, 2")
e(f"s_add_u32 s{sCB}, s{sCB}, s{sT+1}")
def kernargs_ready():
    e("s_waitcnt lgkmcnt(0)")
    if PROF:
        if DBGT:
            e("s_not_b32 s96, s98")
            e("v_writelane_b32 v255, s96, 1")
            e("v_writelane_b32 v255, s98, 2")
        else:
            e("v_writelane_b32 v255, s96, 0")
            e("v_writelane_b32 v255, s98, 31")
    srd(SX, pX, 2048 * 1152)
    srd(SW, pWQKV, 576 * 3456)
def late_srds():
    srd(SWS, pWS, WS_SIZE)
    srd(SOUT, pOUT, 2048 * 1152)
e(f"s_cmp_ge_u32 s{sSLOT}, 24")
e("s_cbranch_scc1 L_sphase")
e(f"s_cmp_lt_u32 s{sWAVE}, 4")
e("s_cbranch_scc1 L_compute")

c("---- P1 loader ----")
sLW, sSIG, sLS, sXB, sWB, sCNT = sT+2, sT+3, sT+4, sT+5, sT+6, sT+7
e(f"s_sub_u32 s{sLW}, s{sWAVE}, 4")
e("v_lshrrev_b32 v2, 3, v1")
e("v_mul_u32_u24 v2, 1152, v2")
e("v_lshrrev_b32 v3, 4, v1")
e(f"s_and_b32 s{sT+8}, s{sLW}, 1")
e(f"s_lshl_b32 s{sT+8}, s{sT+8}, 2")
e(f"v_add_u32 v3, s{sT+8}, v3")
e("v_and_b32 v4, 7, v1")
e("v_xor_b32 v3, v3, v4")
e("v_lshl_add_u32 v2, v3, 4, v2")
if ROT == "9":
    e(f"s_lshl_b32 s{sT}, s{sT}, 1")
    e(f"s_mul_i32 s{sSIG}, s{sT+1}, 3")
    e(f"s_add_u32 s{sSIG}, s{sSIG}, s{sT}")
    e(f"s_cmp_ge_u32 s{sT+1}, 3")
    e(f"s_addc_u32 s{sSIG}, s{sSIG}, 0")
    for _ in range(2):
        e(f"s_cmp_ge_u32 s{sSIG}, 9")
        e(f"s_cselect_b32 s{sT}, 9, 0")
        e(f"s_sub_u32 s{sSIG}, s{sSIG}, s{sT}")
elif ROT == "3":
    e(f"s_add_u32 s{sSIG}, s{sT}, s{sT+1}")
    for _ in range(2):
        e(f"s_cmp_ge_u32 s{sSIG}, 3")
        e(f"s_cselect_b32 s{sT}, 3, 0")
        e(f"s_sub_u32 s{sSIG}, s{sSIG}, s{sT}")
    e(f"s_mul_i32 s{sSIG}, s{sSIG}, 3")
elif ROT == "2":
    e(f"s_add_u32 s{sSIG}, s{sT}, s{sT+1}")
    e(f"s_and_b32 s{sSIG}, s{sSIG}, 1")
    e(f"s_lshl_b32 s{sSIG}, s{sSIG}, 2")
else:
    e(f"s_mov_b32 s{sSIG}, 0")
e(f"s_mul_i32 s{sXB}, s{sRB}, {128*1152}")
e(f"s_mul_i32 s{sT}, s{sLW}, 9216")
e(f"s_add_u32 s{sXB}, s{sXB}, s{sT}")
e(f"s_mul_i32 s{sWB}, s{sCB}, 288")
e(f"s_lshl_b32 s{sLS}, s{sLW}, 10")
e(f"s_lshl_b32 s{sT}, s{sLW}, 6")
e(f"v_add_u32 v5, s{sT}, v1")
for n in range(5):
    if n: e(f"v_add_u32 v5, 256, v5")
    divmod_const(6, 7, 5, 18, 64*20+63, sT)
    e(f"v_mul_u32_u24 v6, 3456, v6")
    e(f"v_lshl_add_u32 v{8+n}, v7, 4, v6")
e(f"s_mov_b32 s{sCNT}, 0")
e(f"v_mov_b32 v5, {CNT}")
e("v_mov_b32 v6, 0")
e("v_mov_b32 v7, 0")
e("ds_write_b64 v5, v[6:7]")
e(f"s_lshl_b32 s{sT+9}, s{sSLOT}, 2")
e(f"s_add_u32 s{sT+9}, s{sT+9}, s{sLW}")
e(f"s_mul_i32 s{sT+9}, s{sT+9}, {54*128}")
e("v_min_u32 v13, 53, v1")
e("v_lshlrev_b32 v13, 7, v13")
kernargs_ready()
srd(SA, pWO, 576 * 1152)
stamp(1)
lab("L_ld_loop")
e(f"s_lshl_b32 s{sT}, s{sSIG}, 7")
e(f"s_add_u32 s{sT}, s{sT}, s{sXB}")
e(f"s_mul_i32 s{sT+1}, s{sSIG}, {64*3456}")
e(f"s_add_u32 s{sT+1}, s{sT+1}, s{sWB}")
e(f"s_mov_b32 m0, s{sLS}")
for n in range(4):
    if n:
        e(f"s_add_u32 s{sT}, s{sT}, 36864")
        e(f"s_add_u32 m0, m0, 4096")
        e("s_nop 0")
    else:
        e("s_nop 0")
    if not NOLOAD and not NOX: e(f"buffer_load_dwordx4 v2, {s_(SX,4)}, s{sT} offen {XF_} lds")
for n in range(5):
    if n == 4:
        e(f"s_cmp_ge_u32 s{sLW}, 2")
        e("s_cbranch_scc1 L_ld_skip5")
    e(f"s_add_u32 m0, m0, 4096")
    e("s_nop 0")
    if not NOLOAD and not NOW: e(f"buffer_load_dwordx4 v{8+n}, {s_(SW,4)}, s{sT+1} offen {WF_} lds")
lab("L_ld_skip5")
e(f"s_add_u32 s{sSIG}, s{sSIG}, 1")
e(f"s_cmp_eq_u32 s{sSIG}, 9")
e(f"s_cselect_b32 s{sSIG}, 0, s{sSIG}")
e(f"s_add_u32 s{sLS}, s{sLS}, {SLOT}")
e(f"s_cmp_ge_u32 s{sLS}, {4*SLOT}")
e(f"s_cselect_b32 s{sT}, {4*SLOT}, 0")
e(f"s_sub_u32 s{sLS}, s{sLS}, s{sT}")
e(f"s_add_u32 s{sCNT}, s{sCNT}, 1")
e(f"s_cmp_lt_u32 s{sCNT}, 2")
e("s_cbranch_scc1 L_ld_loop")
e("s_waitcnt vmcnt(8)")
if LDST:
    e("s_memtime s[100:101]")
    e(f"s_add_u32 m0, s{sCNT}, 16")
    e("s_waitcnt lgkmcnt(0)")
    e("v_writelane_b32 v255, s100, m0")
e("s_barrier")
e(f"s_cmp_lt_u32 s{sCNT}, 9")
e("s_cbranch_scc1 L_ld_loop")
e(f"buffer_load_dword v60, v13, {s_(SA,4)}, s{sT+9} offen")
e("s_waitcnt vmcnt(1)")
e("s_barrier")
stamp(4)
late_srds()
tag_issue(17, 18)
e(f"s_mov_b32 s{sISS}, 0")
e("v_lshrrev_b32 v2, 3, v1")
e(f"s_lshr_b32 s{sT}, s{sRB}, 1")
e(f"v_add_u32 v3, s{sT}, v2")
e(f"s_and_b32 s{sT}, s{sCB}, 3")
e(f"s_lshl_b32 s{sT}, s{sT}, 3")
e("v_and_b32 v4, 7, v1")
e(f"v_add_u32 v4, s{sT}, v4")
e("v_lshl_add_u32 v4, v3, 5, v4")
e("v_lshlrev_b32 v4, 7, v4")
e(f"s_lshr_b32 s{sT}, s{sCB}, 2")
e(f"s_lshl_b32 s{sT+1}, s{sT}, 4")
e(f"s_and_b32 s{sT+2}, s{sRB}, 1")
e(f"s_lshl_b32 s{sT+2}, s{sT+2}, 2")
e(f"s_add_u32 s{sT+1}, s{sT+1}, s{sT+2}")
e(f"v_add_u32 v4, s{sT+1}, v4")
e("v_lshlrev_b32 v5, 3, v2")
e("v_sub_u32 v4, v4, v5")
e(f"s_cmp_eq_u32 s{sT}, 0")
e(f"s_cselect_b32 s{sT}, 8, 0")
e(f"v_mul_u32_u24 v2, s{sT}, v2")
e("v_add_u32 v3, v3, v2")
e("v_subrev_u32 v3, 8, v3")
e("v_ashrrev_i32 v3, 31, v3")
e("v_bfi_b32 v19, v3, v4, 2.0")
e("s_barrier")
e("s_branch L_p2")

ACC = 64
def acc(tt, ct): return ACC + (ct * 4 + tt) * 4
def xf(p, tt): return 144 + 36 * p + 4 * tt
def wf(p, ct): return 160 + 36 * p + 4 * ct
XA = 2
WA = 6

def reads(p, ks, NT):
    wr = []
    for ct in range(NT):
        for wh in range(2):
            if ct < 4:
                off = ks * 9216 + wh * 4608 + 72 * (ct >> 1) + 40 * (ct & 1)
                wr.append(f"ds_read_b64_tr_b16 {v(wf(p,ct)+2*wh,2)}, v{WA+2*ks} offset:{off}")
            else:
                off = ks * 9216 + wh * 4608
                wr.append(f"ds_read_b64_tr_b16 {v(wf(p,ct)+2*wh,2)}, v{WA+2*ks+1} offset:{off}")
    xr = []
    for tt in range(4):
        for wh in range(2):
            xr.append(f"ds_read_b64 {v(xf(p,tt)+2*wh,2)}, v{XA+2*ks+wh} offset:{tt*2048}")
    return wr[:2] + xr + wr[2:]

def kstep(p, ks_next, NT, fill, late, late_at):
    rd = reads(1 - p, ks_next, NT)
    if NOREAD: rd = []
    rd = rd + list(fill)
    n = 0
    for ct in range(NT):
        for tt in range(4):
            a = acc(tt, ct)
            if not NOMFMA: e(f"v_mfma_f32_16x16x32_bf16 {v(a,4)}, {v(wf(p,ct),4)}, {v(xf(p,tt),4)}, {v(a,4)}")
            n += 1
            if n == late_at:
                assert not rd, rd
                for x in late: e(x)
            for _ in range(2):
                if rd: e(rd.pop(0))
    assert not rd

lab("L_compute")
c("---- P1 compute ----")
sMH, sNH, sDL, sIT, sSL = sT+2, sT+3, sT+4, sT+5, sT+6
e(f"s_and_b32 s{sMH}, s{sWAVE}, 1")
e(f"s_lshr_b32 s{sNH}, s{sWAVE}, 1")
e("v_and_b32 v18, 15, v1")
e("v_lshrrev_b32 v19, 4, v1")
e(f"s_lshl_b32 s{sT}, s{sMH}, 13")
e(f"v_lshl_add_u32 v10, v18, 7, s{sT}")
e("v_and_b32 v11, 1, v19")
e("v_lshl_add_u32 v10, v11, 3, v10")
e("v_lshrrev_b32 v11, 1, v19")
e("v_lshrrev_b32 v12, 1, v18")
e("v_xor_b32 v11, v11, v12")
for i in range(4):
    e(f"v_xor_b32 v12, {2*i}, v11")
    e(f"v_lshl_add_u32 v{XA+i}, v12, 4, v10")
e("v_lshrrev_b32 v10, 2, v1")
e("v_mul_u32_u24 v10, 288, v10")
e("v_and_b32 v11, 3, v1")
e(f"s_mul_i32 s{sT}, s{sNH}, 144")
e(f"s_add_u32 s{sT}, s{sT}, 16384")
e(f"v_lshl_add_u32 v{WA}, v11, 3, v10")
e(f"v_add_u32 v{WA}, s{sT}, v{WA}")
e("v_mul_u32_u24 v11, 72, v11")
e(f"v_add_u32 v{WA+1}, v10, v11")
e(f"v_add_u32 v{WA+1}, {16384+32}, v{WA+1}")
e(f"v_mov_b32 v{WA+2}, v{WA}")
e(f"v_mov_b32 v{WA+3}, v{WA+1}")
for r in range(ACC, ACC + 80): e(f"v_mov_b32 v{r}, 0")
VE, VXO = 13, 14
e(f"v_lshrrev_b32 v10, 1, v19")
e(f"v_lshlrev_b32 v{VE}, 15, v10")
e("v_and_b32 v10, 1, v19")
e(f"v_lshl_add_u32 v{VE}, v10, 8, v{VE}")
e(f"v_lshl_add_u32 v{VE}, v18, 4, v{VE}")
e(f"v_lshlrev_b32 v{VXO}, 15, v19")
e(f"v_lshl_add_u32 v{VXO}, v18, 4, v{VXO}")
kernargs_ready()
e(f"s_or_b32 s{sT}, s2, s{sWAVE}")
e(f"s_cmp_lg_u32 s{sT}, 0")
e("s_cbranch_scc1 L_notag")
e("v_mov_b32 v21, 0")
e(f"s_or_b32 s{sT+9}, s90, 1")
e(f"v_mov_b32 v20, s{sT+9}")
e("s_mov_b64 exec, 1")
e(f"global_store_dword v21, v20, {s_(pDBG,2)} sc1")
e("s_mov_b64 exec, -1")
lab("L_notag")
late_srds()
e(f"s_mov_b32 s{sISS}, 0")
e(f"s_mov_b32 s{sIT}, 0")
e(f"s_mov_b32 s{sSL}, 0")
e(f"s_cmp_eq_u32 s{sNH}, 0")
e("s_cbranch_scc0 L_cmp4")
for NT in (5, 4):
    if NT == 4: lab("L_cmp4")
    e("s_barrier")
    stamp(1)
    for r in reads(0, 0, NT): e(r)
    e("s_waitcnt lgkmcnt(0)")
    lab(f"L_cloop{NT}")
    fillA = [f"s_add_u32 s{sSL}, s{sSL}, 1", f"s_cmp_eq_u32 s{sSL}, 4", f"s_cselect_b32 s{sSL}, 0, s{sSL}",
             f"s_cselect_b32 s{sDL}, {(-4*SLOT) & 0xffffffff}, 0", f"s_add_u32 s{sDL}, s{sDL}, {SLOT}"] + \
            [f"v_add_u32 v{r}, s{sDL}, v{r}" for r in (XA, XA+1, WA, WA+1)]
    kstep(0, 1, NT, fillA, ["s_waitcnt lgkmcnt(0)", "s_barrier"], 4*NT - 1)
    fillB = [f"v_add_u32 v{r}, s{sDL}, v{r}" for r in (XA+2, XA+3, WA+2, WA+3)] + \
            [f"s_add_u32 s{sIT}, s{sIT}, 1", f"s_cmp_lt_u32 s{sIT}, 9"]
    kstep(1, 0, NT, fillB, ["s_waitcnt lgkmcnt(0)"], 4*NT - 1)
    e(f"s_cbranch_scc1 L_cloop{NT}")
    if NT == 5: e("s_branch L_cepi")
lab("L_cepi")
stamp(2)
tag_issue(17, 18)
sSO, sSC = sT+7, sT+9
assert sSC % 2 == 0
e(f"s_lshl_b32 s{sT}, s{sRB}, 11")
e(f"s_lshl_b32 s{sT+1}, s{sMH}, 10")
e(f"s_add_u32 s{sT}, s{sT}, s{sT+1}")
e(f"s_lshl_b32 s{sSO}, s{sCB}, 3")
e(f"s_lshl_b32 s{sT+1}, s{sNH}, 2")
e(f"s_add_u32 s{sSO}, s{sSO}, s{sT+1}")
e(f"s_lshl_b32 s{sSO}, s{sSO}, 16")
e(f"s_add_u32 s{sSO}, s{sSO}, s{sT}")
e(f"s_add_u32 s{sSO}, s{sSO}, {QKV}")
e(f"s_lshl_b32 s{sT+8}, s{sCB}, 17")
e(f"s_add_u32 s{sT+8}, s{sT+8}, s{sT}")
e(f"s_add_u32 s{sT+8}, s{sT+8}, {XP}")
e(f"s_cmp_lt_u32 s{sCB}, 4")
e("s_cbranch_scc0 L_noscale")
e(f"s_mov_b32 s{sSC}, {QSCALE}")
e(f"s_mov_b32 s{sSC+1}, {QSCALE}")
for r in range(ACC, ACC + 80, 2):
    e(f"v_pk_mul_f32 {v(r,2)}, {v(r,2)}, {s_(sSC,2)}")
lab("L_noscale")
q = 0
for ct in range(4):
    for pr in range(2):
        R = 20 + 4 * (q % 4); q += 1
        a, b = acc(2*pr, ct), acc(2*pr+1, ct)
        e(f"v_cvt_pk_bf16_f32 v{R}, v{a}, v{a+1}")
        e(f"v_cvt_pk_bf16_f32 v{R+2}, v{b}, v{b+1}")
        e(f"v_cvt_pk_bf16_f32 v{R+1}, v{a+2}, v{a+3}")
        e(f"v_cvt_pk_bf16_f32 v{R+3}, v{b+2}, v{b+3}")
        e("s_nop 0")
        e(f"v_permlane16_swap_b32 v{R}, v{R+2}")
        e(f"v_permlane16_swap_b32 v{R+1}, v{R+3}")
        e(f"buffer_store_dwordx4 {v(R,4)}, v{VE}, {s_(SWS,4)}, s{sSO} offen offset:{512*pr} sc1")
    e(f"s_add_u32 s{sSO}, s{sSO}, 65536")
e(f"s_cmp_eq_u32 s{sNH}, 0")
e("s_cbranch_scc0 L_noextra")
for tt in range(4):
    R = 36 + 4 * tt
    a = acc(tt, 4)
    e(f"v_cvt_pk_bf16_f32 v{R}, v{a}, v{a+1}")
    e(f"v_mov_b32 v{R+1}, 0x3f803f80")
    e(f"v_cvt_pk_bf16_f32 v{R+2}, v{a+2}, v{a+3}")
    e(f"v_mov_b32 v{R+3}, 0x3f803f80")
    e(f"buffer_store_dwordx4 {v(R,4)}, v{VXO}, {s_(SWS,4)}, s{sT+8} offen offset:{256*tt} sc1")
lab("L_noextra")
stamp(3)
e("s_waitcnt vmcnt(0)")
cnt_add()
e("s_branch L_p2")

lab("L_sphase")
if NOS:
    kernargs_ready()
    late_srds()
    e("s_branch L_fin")
e(f"s_mov_b32 s{sISS}, 8")

XR, WV, XS, PS, HS = 0, 36864, 40960, 43008, 160256
sS = sRB
sTOK = sCB
WT, XV, AC = 64, 160, 20
def fold8(AC):
    for i in range(4): e(f"v_permlane32_swap_b32 v{AC+i}, v{AC+i+4}")
    for i in range(4): e(f"v_add_f32 v{AC+i}, v{AC+i}, v{AC+i+4}")
    e("s_nop 0")
    for i in range(2): e(f"v_permlane16_swap_b32 v{AC+i}, v{AC+i+2}")
    for i in range(2): e(f"v_add_f32 v{AC+i}, v{AC+i}, v{AC+i+2}")
    e("s_nop 0")
    for i in range(2): e(f"v_add_f32_dpp v{AC+i}, v{AC+i}, v{AC+i} row_ror:8 row_mask:0xf bank_mask:0xf")
def gemv_regs(n, younger, WT=WT, rd=True, xa=7, xstep=16, fold=True):
    for i in range(n if rd else 0):
        e(f"ds_read_u16 v{XV+i}, v{xa} offset:{xstep*i}")
        if i == 11: e("s_waitcnt lgkmcnt(0)")
    for i in range(8): e(f"v_mov_b32 v{AC+i}, 0")
    e("s_waitcnt lgkmcnt(0)")
    for i in range(n):
        if i % 3 == 0 and younger < 63: e(f"s_waitcnt vmcnt({max(0, n-3-i) + younger})")
        e(f"v_lshlrev_b32 v28, 16, v{XV+i}")
        for k in range(4): e(f"v_dot2_f32_bf16 v{AC+2*k}, v{WT+4*i+k}, v{XV+i}, v{AC+2*k}")
        for k in range(4): e(f"v_dot2_f32_bf16 v{AC+2*k+1}, v{WT+4*i+k}, v28, v{AC+2*k+1}")
    e("s_nop 2")
    if fold: fold8(AC)
def col_of_lane(d, t):
    e(f"v_and_b32 v{d}, 7, v1")
    e(f"v_lshrrev_b32 v{t}, 4, v1")
    e(f"v_lshlrev_b32 v{t}, 1, v{t}")
    e(f"v_lshl_add_u32 v{d}, v{d}, 3, v{t}")
e(f"s_lshl_b32 s{sS}, s{sXCD}, 3")
e(f"s_add_u32 s{sT}, s{sSLOT}, {int(opt('eperm', '0'))}")
e(f"s_and_b32 s{sT}, s{sT}, 7")
e(f"s_add_u32 s{sS}, s{sS}, s{sT}")
e("v_lshrrev_b32 v7, 3, v1")
e("v_mul_u32_u24 v6, 9216, v7")
e("v_and_b32 v8, 7, v1")
e("v_lshl_add_u32 v6, v8, 4, v6")
e("v_lshlrev_b32 v7, 1, v7")
e(f"v_add_u32 v7, {XS}, v7")
e(f"v_mov_b32 v8, {CNT}")
e("v_mov_b32 v10, 4")
e("v_mov_b32 v11, 0")
e("ds_write_b64 v8, v[10:11]")
e(f"s_cmp_lt_u32 s{sWAVE}, 2")
e("s_cbranch_scc1 L_s_ctl")
c("---- S streamers (waves 2..7): gate / up thirds of the own 64-column block -> registers ----")
e(f"s_sub_u32 s{sT+2}, s{sWAVE}, 2")
e(f"s_cmp_ge_u32 s{sT+2}, 3")
e(f"s_cselect_b32 s{sT+3}, 3, 0")
e(f"s_sub_u32 s{sT+3}, s{sT+2}, s{sT+3}")
e(f"s_mov_b32 s{sT+4}, s{sT+3}")
e(f"s_and_b32 s{sT}, s{sS}, 7")
e(f"s_mul_i32 s{sT}, s{sT}, 72")
e(f"s_mul_i32 s{sT+3}, s{sT+3}, 24")
e(f"s_add_u32 s{sT+3}, s{sT+3}, s{sT}")
e(f"s_lshl_b32 s{sT}, s{sT+3}, 1")
e(f"s_add_u32 s{sT}, s{sT}, {XS}")
e(f"v_mov_b32 v7, s{sT}")
e(f"s_mul_i32 s{sT+3}, s{sT+3}, 9216")
e(f"s_lshl_b32 s{sT}, s{sXCD}, 10")
e(f"s_add_u32 s{sT+3}, s{sT+3}, s{sT}")
e("v_lshlrev_b32 v6, 4, v1")
e(f"s_getpc_b64 {s_(sT+5,2)}")
lab("L_pc")
e(f"s_sub_u32 s{sT+5}, s{sT+5}, L_pc-{NAME}_kernel")
e(f"s_subb_u32 s{sT+6}, s{sT+6}, 0")
e(f"s_lshl_b32 s{sT}, s{sT+2}, 6")
e(f"v_add_u32 v2, s{sT}, v1")
e("v_lshlrev_b32 v2, 7, v2")
e(f"v_min_u32 v2, L_end-{NAME}_kernel, v2")
e(f"global_load_dword v60, v2, {s_(sT+5,2)}")
if SPF:
    e(f"s_and_b32 s{sT+7}, s{sS}, 7")
    e(f"s_lshl_b32 s{sT}, s{sT+7}, 6")
    e(f"v_add_u32 v2, s{sT}, v1")
    e("v_mul_u32_u24 v2, 1152, v2")
    divmod_const(3, 4, 1, 14, 63, sT)
    e(f"s_lshl_b32 s{sT}, s{sT+7}, 3")
    e(f"s_lshl_b32 s{sT+1}, s{sT+4}, 2")
    e(f"s_add_u32 s{sT}, s{sT}, s{sT+1}")
    e(f"s_sub_u32 s{sT}, s{sT}, 4")
    e("v_min_u32 v3, 3, v3")
    e(f"v_add_u32 v3, s{sT}, v3")
    e("v_mul_u32_u24 v3, 3456, v3")
    e("v_lshl_add_u32 v3, v4, 7, v3")
    e(f"s_and_b32 s{sT+7}, s{sXCD}, 3")
    e(f"s_mul_i32 s{sT+7}, s{sT+7}, {512*1152}")
    e(f"s_lshr_b32 s{sT+8}, s{sXCD}, 2")
    e(f"s_mul_i32 s{sT+8}, s{sT+8}, 1664")
    e(f"s_cmp_ge_u32 s{sT+2}, 3")
    e(f"s_cselect_b32 s{sT}, {SPF0+1}, {SPF0}")
    e(f"s_lshl_b32 s{sT+1}, s{sT}, 7")
    e(f"s_add_u32 s{sT+7}, s{sT+7}, s{sT+1}")
    e(f"s_mul_i32 s{sT+1}, s{sT}, {64*3456}")
    e(f"s_add_u32 s{sT+8}, s{sT+8}, s{sT+1}")
kernargs_ready()
if SPF:
    e(f"s_cmp_eq_u32 s{sT+4}, 0")
    e("s_cbranch_scc0 L_spf_w")
    for k in range(4):
        if k: e(f"s_add_u32 s{sT+7}, s{sT+7}, 256")
        e(f"buffer_load_dword v60, v2, {s_(SX,4)}, s{sT+7} offen")
    e("s_branch L_spf_d")
    lab("L_spf_w")
    for k in range(4):
        if k: e(f"s_add_u32 s{sT+8}, s{sT+8}, {128*3456}")
        e(f"buffer_load_dword v60, v3, {s_(SW,4)}, s{sT+8} offen")
    lab("L_spf_d")
e(f"s_cmp_ge_u32 s{sT+2}, 3")
e(f"s_cselect_b32 s{SW}, s{pWU}, s{pWG}")
e(f"s_cselect_b32 s{SW+1}, s{pWU+1}, s{pWG+1}")
e(f"s_mov_b32 s{SW+2}, {576*9216}")
e("s_barrier")
for n in range(24):
    if n: e(f"s_add_u32 s{sT+3}, s{sT+3}, 9216")
    e(f"buffer_load_dwordx4 {v(WT+4*n,4)}, v6, {s_(SW,4)}, s{sT+3} offen nt")
late_srds()
tag_issue(17, 18)
e(f"s_lshl_b32 s{sT}, s{sT+2}, 11")
e(f"s_add_u32 s{sT}, s{sT}, {PS}")
e(f"v_lshl_add_u32 v8, v1, 5, s{sT}")
stamp(1)
e("s_barrier")
stamp(2)
gemv_regs(24, 1, xstep=2, fold=False)
e("ds_write_b128 v8, v[20:23]")
e("ds_write_b128 v8, v[24:27] offset:16")
e("s_waitcnt vmcnt(0)")
tag_check(17, 18)
e(f"v_mov_b32 v17, s{sTAG}")
e("s_branch L_s_bh")

lab("L_s_ctl")
c("---- S control waves (0,1) ----")
e(f"s_and_b32 s{sT+3}, s{sXCD}, 3")
e(f"s_lshl_b32 s{sT+3}, s{sT+3}, 9")
e(f"s_lshr_b32 s{sT}, s{sXCD}, 2")
e(f"s_lshl_b32 s{sT}, s{sT}, 8")
e(f"s_add_u32 s{sT+3}, s{sT+3}, s{sT}")
e(f"s_and_b32 s{sT}, s{sS}, 7")
e(f"s_lshl_b32 s{sT}, s{sT}, 5")
e(f"s_add_u32 s{sT+3}, s{sT+3}, s{sT}")
e(f"s_lshl_b32 s{sT}, s{sWAVE}, 4")
e(f"s_add_u32 s{sTOK}, s{sT+3}, s{sT}")
e(f"s_mul_i32 s{sT+3}, s{sTOK}, 1152")
e("v_lshlrev_b32 v2, 4, v1")
e("v_lshrrev_b32 v3, 3, v1")
e("v_lshrrev_b32 v4, 4, v1")
e("v_and_b32 v5, 7, v1")
e("v_xor_b32 v4, v4, v5")
e("v_mul_u32_u24 v3, 1152, v3")
e("v_lshl_add_u32 v3, v4, 4, v3")
e("v_add_u32 v3, 1024, v3")
e("v_xor_b32 v4, 64, v3")
e(f"s_mul_i32 m0, s{sWAVE}, 18432")
kernargs_ready()
for n in range(16):
    e(f"v_xor_b32 v{64+n}, {16*n}, v2")
    if n:
        e("s_add_u32 m0, m0, 1024")
        e(f"s_add_u32 s{sT+3}, s{sT+3}, 1152")
    e(f"buffer_load_dwordx4 v{64+n}, {s_(SX,4)}, s{sT+3} offen lds")
e("s_add_u32 m0, m0, 1024")
e(f"s_sub_u32 s{sT+3}, s{sT+3}, {15*1152}")
e(f"buffer_load_dwordx4 v3, {s_(SX,4)}, s{sT+3} offen lds")
e("s_add_u32 m0, m0, 1024")
e(f"s_add_u32 s{sT+3}, s{sT+3}, {8*1152}")
e(f"buffer_load_dwordx4 v4, {s_(SX,4)}, s{sT+3} offen lds")
e("v_lshlrev_b32 v3, 4, v1")
for k, p in enumerate((pWR, pGW)):
    srd(SW, p, 1152)
    e(f"s_mov_b32 m0, {WV + 2048*k}")
    e("s_nop 0")
    e(f"buffer_load_dwordx4 v3, {s_(SW,4)}, 0 offen lds")
    e(f"buffer_load_dwordx4 v3, {s_(SW,4)}, 0 offen offset:1024 lds")
if not B0LATE: e("s_barrier")
late_srds()
tag_issue(17, 18)
e("v_and_b32 v10, 15, v1")
e("v_lshrrev_b32 v11, 4, v1")
e("v_and_b32 v2, 1, v10")
e("v_lshlrev_b32 v2, 11, v2")
e("v_lshl_add_u32 v2, v11, 4, v2")
e(f"v_add_u32 v2, {WV}, v2")
e(f"s_mul_i32 s{sT}, s{sWAVE}, 18432")
e(f"v_lshl_add_u32 v3, v10, 10, s{sT}")
e("v_xor_b32 v4, v10, v11")
for k in range(4):
    e(f"v_xor_b32 v5, {4*k}, v4")
    e(f"v_lshl_add_u32 v{40+k}, v5, 4, v3")
e(f"s_add_u32 s{sT}, s{sT}, 16384")
e(f"v_lshl_add_u32 v3, v10, 7, s{sT}")
e("v_lshrrev_b32 v4, 1, v10")
e("v_xor_b32 v4, v4, v11")
e("v_xor_b32 v5, 4, v4")
e("v_lshl_add_u32 v44, v4, 4, v3")
e("v_lshl_add_u32 v45, v5, 4, v3")
e("s_waitcnt vmcnt(0)")
tag_check(17, 18)
e(f"v_mov_b32 v17, s{sTAG}")
stamp(1)
for ks in range(18):
    e(f"ds_read_b128 {v(64+8*ks,4)}, v2 offset:{ks*64}")
    e(f"ds_read_b128 {v(68+8*ks,4)}, v{40+(ks&3)} offset:{(ks>>2)*256}" if ks < 16 else f"ds_read_b128 {v(68+8*ks,4)}, v{44+(ks&1)}")
    if ks % 6 == 5:
        e("s_waitcnt lgkmcnt(0)")
        for k2 in range(ks-5, ks+1):
            e(f"v_mfma_f32_16x16x32_bf16 v[20:23], {v(64+8*k2,4)}, {v(68+8*k2,4)}, {'0' if k2 == 0 else 'v[20:23]'}")
e(f"s_mov_b32 s{sT}, s{sTOK}")
e(f"v_add_u32 v24, s{sT}, v10")
e("s_nop 6")
e("v_cvt_pk_bf16_f32 v20, v20, v20")
e("v_lshrrev_b32 v20, 16, v20")
e("v_bfe_i32 v22, v20, 15, 1")
e("v_and_b32 v22, 0x7fff, v22")
e("v_xor_b32 v20, 0x8000, v20")
e("v_xor_b32 v20, v20, v22")
e("v_sub_u32 v22, 2047, v24")
e("v_lshl_add_u32 v20, v20, 16, v22")
bf16r(21)
sigmoid(26, 21)
bf16r(26)
e("v_mov_b32 v27, v17")
e("v_lshlrev_b32 v24, 3, v24")
row_max_u32(20)
e("v_mov_b32 v21, v17")
e(f"s_lshr_b32 s{sT}, s{sT}, 1")
e(f"s_add_u32 s{sT}, s{sT}, {CAND}")
e(f"s_mov_b32 s{sT+1}, {GG}")
e("s_mov_b64 exec, 1")
e(f"buffer_store_dwordx2 v[20:21], v18, {s_(SWS,4)}, s{sT} offen sc1")
e("s_mov_b64 exec, 0xffff")
e(f"buffer_store_dwordx2 v[26:27], v24, {s_(SWS,4)}, s{sT+1} offen sc1")
e("s_mov_b64 exec, -1")
if B0LATE: e("s_barrier")
e(f"s_cmp_eq_u32 s{sWAVE}, 0")
e("s_cbranch_scc0 L_s_nocand")
cand_issue(20, 24)
e("s_waitcnt vmcnt(0)")
cand_check(20, 24, 17)
e(f"s_mul_i32 s{sT}, s{sIDX}, 1152")
e(f"s_mov_b32 m0, {XS}")
e("s_nop 0")
e(f"buffer_load_dwordx4 v24, {s_(SX,4)}, s{sT} offen lds")
e(f"buffer_load_dwordx4 v24, {s_(SX,4)}, s{sT} offen offset:1024 lds")
e("s_waitcnt vmcnt(0)")
stamp(2)
e("s_barrier")
e("s_branch L_s_bh")
lab("L_s_nocand")
srd(SA, pWG, 576 * 9216)
srd(SB, pWU, 576 * 9216)
e(f"s_and_b32 s{sT}, s{sS}, 7")
e(f"s_mul_i32 s{sT+1}, s{sT}, 144")
e(f"v_add_u32 v7, s{sT+1}, v7")
e(f"s_mul_i32 s{sT}, s{sT}, {72*9216}")
e(f"s_lshr_b32 s{sT+1}, s{sS}, 3")
e(f"s_lshl_b32 s{sT+1}, s{sT+1}, 7")
e(f"s_add_u32 s{sT}, s{sT}, s{sT+1}")
e(f"s_add_u32 s{sT}, s{sT}, {64*128}")
for n in range(9):
    if n: e(f"s_add_u32 s{sT}, s{sT}, {8*9216}")
    e(f"buffer_load_dwordx4 {v(WT+4*n,4)}, v6, {s_(SA,4)}, s{sT} offen nt")
    e(f"buffer_load_dwordx4 {v(WT+36+4*n,4)}, v6, {s_(SB,4)}, s{sT} offen nt")
col_of_lane(8, 9)
e("v_lshlrev_b32 v8, 3, v8")
e(f"s_mul_i32 s{sT+2}, s{sS}, 9216")
e(f"s_add_u32 s{sT+2}, s{sT+2}, {PP + 4096}")
e(f"s_add_u32 s{sT+3}, s{sT+2}, 4608")
e("s_barrier")
e("s_waitcnt vmcnt(0)")
for m in range(2):
    gemv_regs(9, 63, WT + 36*m, m == 0)
    e("v_mov_b32 v22, v21")
    e("v_mov_b32 v21, v17")
    e("v_mov_b32 v23, v17")
    e(f"buffer_store_dwordx4 v[20:23], v8, {s_(SWS,4)}, s{sT+2+m} offen sc1")
    e("s_nop 1")
lab("L_s_bh")
stamp(3)
e("s_waitcnt lgkmcnt(0)")
e("s_barrier")
e(f"s_lshr_b32 s{sT}, s{sWAVE}, 2")
e(f"s_and_b32 s{sT+1}, s{sWAVE}, 3")
e(f"s_mul_i32 s{sT+2}, s{sT}, 6144")
e(f"s_lshl_b32 s{sT+3}, s{sT+1}, 9")
e(f"s_add_u32 s{sT+2}, s{sT+2}, s{sT+3}")
e(f"s_add_u32 s{sT+2}, s{sT+2}, {PS}")
e(f"v_lshl_add_u32 v8, v1, 3, s{sT+2}")
for k in range(3): e(f"ds_read_b64 {v(20+2*k,2)}, v8 offset:{2048*k}")
e(f"s_mul_i32 s{sT}, s{sT}, 4608")
e(f"s_lshl_b32 s{sT+1}, s{sT+1}, 10")
e(f"s_add_u32 s{sT}, s{sT}, s{sT+1}")
e(f"s_mul_i32 s{sT+1}, s{sS}, 9216")
e(f"s_add_u32 s{sT}, s{sT}, s{sT+1}")
e(f"s_add_u32 s{sT}, s{sT}, {PP}")
e("v_lshlrev_b32 v8, 4, v1")
e("s_waitcnt lgkmcnt(0)")
e("v_add_f32 v20, v20, v22")
e("v_add_f32 v22, v21, v23")
e("v_add_f32 v20, v20, v24")
e("v_add_f32 v22, v22, v25")
e("v_mov_b32 v21, v17")
e("v_mov_b32 v23, v17")
e(f"buffer_store_dwordx4 v[20:23], v8, {s_(SWS,4)}, s{sT} offen sc1")
e("s_barrier")
stamp(4)
tag_issue(17, 18)

vQ, vL16, vKA, vKX, vVA, vHM, vQX, vOX = 2, 3, 4, 5, 6, 7, 8, 9
Q1, Q2, K1, K2, VF, PB, MX = 20, 24, 28, 32, 36, 44, 52
SB0, SB1, OA, M8, M0, BV = 64, 80, 96, 112, 128, 144
sOQ, sOK, sOKX = sT+10, sT+11, sT+12
sFR, sCK = sT+13, sT+14
vDA, vHA, DW, HV = 162, 163, 164, 176
vT1, vT2, vX1, vX2, vG1, vG2 = 147, 148, 149, 150, 151, 152
X1, X2, G1, G2, CD = 56, 60, 154, 156, 248
WV5 = (144, 145, 146, 153, 158)
sWOG, sWOL, sEXACT, sPPD, sRET = sT+15, sT+16, sT+17, sT+18, 86
def SBUF(d): return SB0 if d % 2 == 0 else SB1

lab("L_p2")
e(f"s_and_b32 s{sT}, s{sSLOT}, 3")
e(f"s_lshl_b32 s{sH}, s{sXCD}, 2")
e(f"s_add_u32 s{sH}, s{sH}, s{sT}")
e(f"s_lshr_b32 s{sCS}, s{sSLOT}, 2")
e(f"s_add_u32 s{sJ}, s{sCS}, 1")
e(f"s_and_b32 s{sJ}, s{sJ}, 7")
e(f"s_sub_u32 s{sI}, 11, s{sWAVE}")
e(f"s_cmp_lt_u32 s{sWAVE}, 4")
e(f"s_cselect_b32 s{sI}, s{sWAVE}, s{sI}")
e(f"s_lshl_b32 s{sTB}, s{sT}, 6")
e(f"s_and_b32 s{sT}, s{sXCD}, 3")
e(f"s_lshl_b32 s{sT}, s{sT}, 9")
e(f"s_add_u32 s{sTB}, s{sTB}, s{sT}")
e(f"s_lshr_b32 s{sT}, s{sXCD}, 2")
e(f"s_lshl_b32 s{sT}, s{sT}, 8")
e(f"s_add_u32 s{sTB}, s{sTB}, s{sT}")
e(f"s_sub_u32 s{sDMIN}, 8, s{sI}")
e(f"s_cmp_eq_u32 s{sJ}, 0")
e(f"s_cselect_b32 s{sDMIN}, s{sDMIN}, 0")
e(f"s_lshl_b32 s{sT+6}, s{sJ}, 12")
e(f"s_lshl_b32 s{sT+7}, s{sI}, 9")
e(f"s_add_u32 s{sOQ}, s{sT+6}, s{sT+7}")
e(f"s_and_b32 s{sT+7}, s{sWAVE}, 3")
e(f"s_lshl_b32 s{sT+7}, s{sT+7}, 10")
e(f"s_add_u32 s{sT+6}, s{sT+6}, s{sT+7}")
e(f"s_lshr_b32 s{sT+5}, s{sWAVE}, 2")
e(f"s_lshl_b32 s{sT+7}, s{sT+5}, 5")
e(f"s_add_u32 s{sT+7}, s{sT+7}, s{sH}")
e(f"s_lshl_b32 s{sT+7}, s{sT+7}, 16")
e(f"s_add_u32 s{sOK}, s{sT+6}, s{sT+7}")
e(f"s_add_u32 s{sOK}, s{sOK}, {QKV + 32*65536}")
e(f"s_lshr_b32 s{sT+8}, s{sH}, 1")
e(f"s_lshl_b32 s{sT+8}, s{sT+8}, 15")
e(f"s_lshl_b32 s{sT+7}, s{sT+5}, 19")
e(f"s_add_u32 s{sOKX}, s{sT+6}, s{sT+8}")
e(f"s_add_u32 s{sOKX}, s{sOKX}, s{sT+7}")
e(f"s_add_u32 s{sOKX}, s{sOKX}, {XP + 16*32768}")
e("v_and_b32 v10, 31, v1")
e("v_lshrrev_b32 v11, 5, v1")
e(f"v_lshlrev_b32 v{vL16}, 4, v1")
e(f"v_lshlrev_b32 v{vQ}, 15, v11")
e(f"v_lshl_add_u32 v{vQ}, v10, 4, v{vQ}")
e(f"v_lshlrev_b32 v{vKA}, 13, v11")
e(f"v_lshl_add_u32 v{vKA}, v10, 4, v{vKA}")
e(f"s_lshl_b32 s{sT}, s{sI}, 9")
e(f"v_add_u32 v{vKA}, s{sT}, v{vKA}")
e(f"s_and_b32 s{sT+2}, s{sH}, 1")
e(f"s_lshl_b32 s{sT+2}, s{sT+2}, 3")
e(f"s_add_u32 s{sT+3}, s{sT}, s{sT+2}")
e(f"s_add_u32 s{sT+4}, s{sT+3}, {KX}")
e(f"v_lshl_add_u32 v{vKX}, v10, 4, s{sT+4}")
e(f"v_subrev_u32 v{vHM}, 1, v11")
e(f"v_lshlrev_b32 v12, 30, v11")
e(f"v_lshl_add_u32 v{vQX}, v10, 4, v12")
e(f"v_lshl_add_u32 v{vOX}, v10, 2, v12")
e("v_bfe_u32 v12, v1, 2, 2")
e("v_lshl_add_u32 v12, v11, 2, v12")
e("v_lshlrev_b32 v12, 4, v12")
e("v_bfe_u32 v13, v1, 1, 1")
e(f"v_mul_u32_u24 v13, {VP1-VP0}, v13")
e("v_and_b32 v14, 1, v1")
e("v_lshl_add_u32 v13, v14, 3, v13")
e(f"v_add_u32 v13, {VP0}, v13")
e(f"s_add_u32 s{sT+4}, s{sT+2}, {VX}")
e(f"v_sub_u32 v14, s{sT+4}, v13")
e("v_bfe_u32 v15, v1, 4, 1")
e("v_mul_u32_u24 v14, v14, v15")
e("v_add_u32 v13, v13, v14")
e(f"v_add3_u32 v{vVA}, v12, v13, s{sT}")
e("v_lshlrev_b32 v12, 2, v11")
e("v_sub_u32 v12, v10, v12")
e(f"s_mov_b32 s{sT}, {NEGBIG}")
for r in range(16):
    ko = 8 * (r >> 2) + (r & 3)
    e(f"v_subrev_u32 v13, {ko}, v12")
    e(f"v_ashrrev_i32 v13, 31, v13")
    e(f"v_and_b32 v{M8+r}, s{sT}, v13")
    e(f"v_xor_b32 v{M0+r}, s{sT}, v{M8+r}")
for r in (Q2+1, Q2+2, Q2+3, K2+2, K2+3): e(f"v_mov_b32 v{r}, 0")
e(f"s_lshl_b32 s{sT}, s{sSLOT}, 3")
e(f"s_add_u32 s{sT}, s{sT}, s{sXCD}")
e(f"s_cmp_ge_u32 s{sSLOT}, 28")
e(f"s_cselect_b32 s{sT+1}, 32, 0")
e(f"s_sub_u32 s{sT}, s{sT}, s{sT+1}")
e(f"s_sub_u32 s{sT+1}, s{sSLOT}, 24")
e(f"s_cmp_lt_u32 s{sT+1}, 4")
e(f"s_cselect_b32 s{sT}, 216, s{sT}")
e(f"s_mul_i32 s{sFR}, s{sT}, 7282")
e(f"s_lshr_b32 s{sFR}, s{sFR}, 16")
e(f"s_mul_i32 s{sT+1}, s{sFR}, 9")
e(f"s_sub_u32 s{sCK}, s{sT}, s{sT+1}")
srd(SA, pWD, 4608 * 1152)
e("v_lshrrev_b32 v12, 3, v1")
e(f"s_mul_i32 s{sT}, s{sFR}, 192")
e(f"s_mul_i32 s{sT+1}, s{sWAVE}, 24")
e(f"s_add_u32 s{sT}, s{sT}, s{sT+1}")
e(f"v_add_u32 v12, s{sT}, v12")
e(f"v_lshlrev_b32 v{vHA}, 3, v12")
e(f"v_mul_u32_u24 v{vDA}, 1152, v12")
e("v_and_b32 v12, 7, v1")
e(f"v_lshl_add_u32 v{vDA}, v12, 4, v{vDA}")
e(f"s_mul_i32 s{sT}, s{sTB}, 1152")
e(f"s_mul_i32 s{sT+1}, s{sCS}, 144")
e(f"s_add_u32 s{sT}, s{sT}, s{sT+1}")
e(f"s_lshl_b32 s{sT+1}, s{sTB}, 3")
e(f"s_add_u32 s{sT+1}, s{sT+1}, {GG}")
e(f"s_cmp_eq_u32 s{sWAVE}, 7")
e(f"s_cselect_b32 s{sT+3}, 0, {BIGOFF}")
for (tau0, vt, vx, vg) in ((None, vT1, vX1, vG1), (512, vT2, vX2, vG2)):
    if tau0 is None: src = 0
    else:
        e(f"v_add_u32 v16, {tau0}, v1"); src = 16
    divmod_const(12, 13, src, 9, 575, sT)
    e(f"v_mul_u32_u24 v{vt}, {RP}, v12")
    e(f"v_lshl_add_u32 v{vt}, v13, 5, v{vt}")
    e(f"v_mul_u32_u24 v{vx}, 1152, v12")
    e(f"v_lshl_add_u32 v{vx}, v13, 4, v{vx}")
    e(f"v_add_u32 v{vx}, s{sT}, v{vx}")
    e(f"v_lshl_add_u32 v{vg}, v12, 3, s{sT+1}")
    if tau0 is not None:
        e(f"v_add_u32 v{vx}, s{sT+3}, v{vx}")
srd(SB, pWO, 576 * 1152)
e(f"s_mul_i32 s{sWOG}, s{sCS}, 144")
e(f"s_mul_i32 s{sT}, s{sWAVE}, {32*1152}")
e(f"s_add_u32 s{sWOG}, s{sWOG}, s{sT}")
e(f"s_mul_i32 s{sWOL}, s{sWAVE}, {32*WOP}")
e(f"s_add_u32 s{sWOL}, s{sWOL}, {BULK}")
e(f"s_cmp_lt_u32 s{sWAVE}, 4")
e(f"s_cselect_b32 s{sWOL}, s{sWOL}, {BULK + 576*WOP}")
for n in range(5):
    if n: e(f"v_add_u32 v10, {64*n}, v1")
    divmod_const(11, 12, 10 if n else 1, 10, 319, sT)
    e("v_mul_u32_u24 v11, 1152, v11")
    e(f"v_lshl_add_u32 v{WV5[n]}, v12, 4, v11")
e(f"s_mov_b32 s{sEXACT}, 0")
e(f"s_cmp_eq_u32 s{sWAVE}, 0")
e(f"s_cselect_b32 s{sPPD}, s{sISS}, 0")
e("s_setprio 1")
e("s_waitcnt vmcnt(0)")
tag_check(17, 18)
e(f"v_mov_b32 v17, s{sTAG}")
stamp(5)
if STOP == "p1": e("s_branch L_fin")
cnt_wait(sT, sT+1, 4)
e(f"s_or_b32 s{sT}, s{sISS}, s{sWAVE}")
e(f"s_cmp_eq_u32 s{sT}, 7")
e("s_cbranch_scc0 L_nosend1")
e("s_mov_b64 exec, 0xffff")
e(f"buffer_store_dword v17, v19, {s_(SWS,4)}, 0 offen sc1")
e("s_mov_b64 exec, -1")
stamp(17)
lab("L_nosend1")
e(f"s_lshl_b32 s{sT}, s{sCK}, 7")
for i in range(3):
    if i: e(f"s_add_u32 s{sT}, s{sT}, {8*1152}")
    e(f"buffer_load_dwordx4 {v(DW+4*i,4)}, v{vDA}, {s_(SA,4)}, s{sT} offen nt")
e(f"buffer_load_dwordx4 {v(X1,4)}, v{vX1}, {s_(SX,4)}, 0 offen")
e(f"buffer_load_dwordx4 {v(X2,4)}, v{vX2}, {s_(SX,4)}, 0 offen")
e(f"buffer_load_dwordx2 {v(G1,2)}, v{vG1}, {s_(SWS,4)}, 0 offen sc1")
e(f"buffer_load_dwordx2 {v(G2,2)}, v{vG2}, {s_(SWS,4)}, 0 offen sc1")
e(f"s_mov_b32 s{sT}, {CAND}")
e(f"buffer_load_dwordx4 {v(CD,4)}, v{vL16}, {s_(SWS,4)}, s{sT} offen sc1")
e(f"s_cmp_eq_u32 s{sWAVE}, 7")
e("s_cbranch_scc0 L_poll1d")
e("s_mov_b64 exec, 0x3ff")
e(f"s_lshl_b32 s{sT}, s{sJ}, 5")
e(f"s_add_u32 s{sT}, s{sT}, s{sH}")
e(f"s_lshl_b32 s{sT}, s{sT}, 7")
e(f"s_movk_i32 s{sT+3}, 0x3ff")
e(f"s_cmp_eq_u32 s{sJ}, 0")
e(f"s_cselect_b32 s{sT+3}, 0x333, s{sT+3}")
e("v_lshlrev_b32 v16, 2, v1")
e(f"s_mov_b32 s{sT+1}, 0")
lab("L_poll1")
e(f"buffer_load_dword v12, v16, {s_(SWS,4)}, s{sT} offen sc1")
e("s_waitcnt vmcnt(0)")
e("v_cmp_eq_u32 vcc, v17, v12")
e(f"s_and_b32 s{sT+4}, vcc_lo, s{sT+3}")
e(f"s_cmp_eq_u32 s{sT+4}, s{sT+3}")
e("s_cbranch_scc1 L_poll1x")
bound(sT+1)
e("s_branch L_poll1")
lab("L_poll1x")
e("s_mov_b64 exec, -1")
lab("L_poll1d")
e("s_barrier")
stamp(6)
e(f"s_lshl_b32 s{sT}, s{sH}, 16")
e(f"s_add_u32 s{sT}, s{sT}, s{sOQ}")
e(f"s_add_u32 s{sT}, s{sT}, {QKV}")
e(f"buffer_load_dwordx4 {v(Q1,4)}, v{vQ}, {s_(SWS,4)}, s{sT} offen sc1")
e(f"s_add_u32 s{sT}, s{sT+8}, s{sOQ}")
e(f"s_add_u32 s{sT}, s{sT}, s{sT+2}")
e(f"s_add_u32 s{sT}, s{sT}, {XP}")
e(f"buffer_load_dword v{Q2}, v{vQX}, {s_(SWS,4)}, s{sT} offen sc1")
e(f"s_lshl_b32 s{sT+1}, s{sWAVE}, 10")
e(f"s_and_b32 s{sT+1}, s{sWAVE}, 3")
e(f"s_lshl_b32 s{sT+1}, s{sT+1}, 10")
e(f"s_lshr_b32 s{sT+3}, s{sWAVE}, 2")
e(f"s_cmp_eq_u32 s{sJ}, 0")
e(f"s_cselect_b32 s{sT+5}, {BIGOFF}, {(-4096) & 0xffffffff}" if False else f"s_cselect_b32 s{sT+5}, {BIGOFF + 4096}, 0")
e(f"s_sub_u32 s{sT+5}, s{sT+5}, 4096")
for half in (1, 0):
    for (kb, vb, so, add) in ((KP0, VP0, sOK, 0), (KP1, VP1, sOK, 32768), (KX, VX, sOKX, 0)):
        e(f"s_mul_i32 s{sT+4}, s{sT+3}, {vb - kb}")
        e(f"s_add_u32 s{sT+4}, s{sT+4}, s{sT+1}")
        e(f"s_add_u32 m0, s{sT+4}, {kb + 4096*half}")
        e(f"s_add_u32 s{sT}, s{so}, {add}")
        if half == 0: e(f"s_add_u32 s{sT}, s{sT}, s{sT+5}")
        e(f"buffer_load_dwordx4 v{vL16}, {s_(SWS,4)}, s{sT} offen sc1 lds")
e("s_waitcnt vmcnt(3)")
e("s_barrier")
stamp(7)
PG = 184
def pp_issue():
    e(f"s_and_b32 s{sT}, s{sRB}, 7")
    e(f"s_mul_i32 s{sT}, s{sT}, 576")
    e(f"s_mul_i32 s{sT+2}, s{sXCD}, {8*9216}")
    e(f"s_add_u32 s{sT}, s{sT}, s{sT+2}")
    e(f"s_add_u32 s{sT}, s{sT}, {PP}")
    for k in range(16):
        if k: e(f"s_add_u32 s{sT}, s{sT}, 4608")
        e(f"buffer_load_dwordx4 {v(PG+4*k,4)}, v{vL16}, {s_(SWS,4)}, s{sT} offen sc1")
def h_issue():
    e(f"s_mov_b32 s{sT}, {HH}")
    for i in range(3): e(f"buffer_load_dwordx2 {v(HV+2*i,2)}, v{vHA}, {s_(SWS,4)}, s{sT} offen offset:{64*i} sc1")
def kread(d):
    e(f"ds_read_b128 {v(K1,4)}, v{vKA} offset:{d*512}")
    e(f"ds_read_b64 {v(K2,2)}, v{vKX} offset:{d*512}")
def qk(d):
    S = SBUF(d)
    cin = v(M8,16) if d == 8 else (v(M0,16) if d == 0 else "0")
    e(f"v_mfma_f32_32x32x16_bf16 {v(S,16)}, {v(K1,4)}, {v(Q1,4)}, {cin}")
    e(f"v_mfma_f32_32x32x16_bf16 {v(S,16)}, {v(K2,4)}, {v(Q2,4)}, {v(S,16)}")

def wo_step():
    sk = ul("wos")
    e(f"s_cmp_ge_u32 s{sWOL}, {BULK + 576*WOP}")
    e(f"s_cbranch_scc1 {sk}")
    e(f"s_mov_b32 m0, s{sWOL}")
    e(f"s_add_u32 s{sWOL}, s{sWOL}, {128*WOP}")
    for n in range(5):
        e(f"buffer_load_dwordx4 v{WV5[n]}, {s_(SB,4)}, s{sWOG} offen lds")
        if n < 4:
            e("s_add_u32 m0, m0, 1024")
            e("s_nop 0")
    e(f"s_add_u32 s{sWOG}, s{sWOG}, {128*1152}")
    lab(sk)
def pp_call(k):
    e(f"s_mov_b32 s{sRET}, {k}")
    e(f"s_cmp_lg_u32 s{sPPD}, 0")
    e("s_cbranch_scc1 L_ppfin")
    lab(f"L_ppret{k}")

c("shift = max over the diagonal tile (<= the row max); checked after the pass, exact max as fallback")
kread(8)
e("s_waitcnt lgkmcnt(0)")
qk(8)
e("s_nop 11")
e(f"v_max3_f32 v{MX}, v{SB0}, v{SB0+1}, v{SB0+2}")
e(f"v_max3_f32 v{MX+1}, v{SB0+3}, v{SB0+4}, v{SB0+5}")
for r in range(3, 8):
    e(f"v_max3_f32 v{MX + (r & 1)}, v{MX + (r & 1)}, v{SB0+2*r}, v{SB0+2*r+1}")
lab("L_p1done")
e(f"v_max_f32 v{MX}, v{MX}, v{MX+1}")
e(f"v_mov_b32 v{MX+1}, v{MX}")
e("s_nop 1")
e(f"v_permlane32_swap_b32 v{MX}, v{MX+1}")
e(f"v_max_f32 v{MX}, v{MX}, v{MX+1}")
e(f"v_sub_f32 v{MX}, 0, v{MX}")
e(f"v_cvt_pk_bf16_f32 v{MX+1}, v{MX}, v{MX}")
e(f"v_lshlrev_b32 v{MX+1}, 16, v{MX+1}")
e(f"v_sub_f32 v{MX+1}, v{MX}, v{MX+1}")
e(f"v_cvt_pk_bf16_f32 v{MX}, v{MX}, v{MX+1}")
e(f"v_and_b32 v{Q2+1}, v{vHM}, v{MX}")
stamp(8)
for r in range(16): e(f"v_mov_b32 v{OA+r}, 0")
e("s_nop 0")
qk(8)
e(f"s_cmp_lg_u32 s{sEXACT}, 0")
e("s_cbranch_scc1 L_noa2")
e("s_waitcnt vmcnt(0)")
e("s_barrier")
stamp(9)
e(f"s_cmp_eq_u32 s{sPPD}, 0")
e("s_cbranch_scc1 L_noa2")
e("s_mov_b32 exec_hi, 0xf")
pp_issue()
e("s_mov_b32 exec_hi, -1")
lab("L_noa2")
kread(7)
def ex(r): e(f"v_exp_f32 v{r}, v{r}")
def cv(k, S): e(f"v_cvt_pk_bf16_f32 v{PB+k}, v{S+2*k}, v{S+2*k+1}")
def vread(d, u):
    for wh in range(2): e(f"ds_read_b64_tr_b16 {v(VF+4*u+2*wh,2)}, v{vVA} offset:{d*512+u*256+wh*128}")
def pv(u): e(f"v_mfma_f32_32x32x16_bf16 {v(OA,16)}, {v(VF+4*u,4)}, {v(PB+4*u,4)}, {v(OA,16)}")
for d in range(8, -1, -1):
    S, N = SBUF(d), SBUF(d - 1)
    cin = v(M0,16) if d == 1 else "0"
    vread(d, 0)
    e("s_waitcnt lgkmcnt(2)")
    if d > 0: e(f"v_mfma_f32_32x32x16_bf16 {v(N,16)}, {v(K1,4)}, {v(Q1,4)}, {cin}")
    if d == 8: e("s_nop 4")
    for r in range(4): ex(S + r)
    if d < 8: pv(1)
    vread(d, 1)
    cv(0, S); ex(S+4); cv(1, S); ex(S+5)
    if d > 0: e(f"v_mfma_f32_32x32x16_bf16 {v(N,16)}, {v(K2,4)}, {v(Q2,4)}, {v(N,16)}")
    if d > 1: kread(d - 2)
    ex(S+6); ex(S+7); ex(S+8); cv(2, S)
    e(f"s_waitcnt lgkmcnt({4 if d > 1 else 2})")
    cv(3, S); ex(S+9); ex(S+10)
    pv(0)
    ex(S+11); cv(4, S); ex(S+12); ex(S+13); cv(5, S); ex(S+14); ex(S+15); cv(6, S)
    if d > 0: e(f"s_cmp_eq_u32 s{sDMIN}, {d}")
    else: e("s_nop 0")
    cv(7, S)
    if d > 0: e("s_cbranch_scc1 L_p2done")
    if d >= 4 and not NOWOS: wo_step()
    if d == 5: pp_call(0)
lab("L_p2done")
e("s_waitcnt lgkmcnt(0)")
e("s_nop 0")
pv(1)
e(f"s_lshl_b32 s{sT}, s{sH}, 16")
e(f"s_add_u32 s{sT}, s{sT}, s{sOQ}")
e(f"s_add_u32 s{sT}, s{sT}, {OM}")
e(f"s_lshl_b32 s{sT+1}, s{sH}, 13")
e(f"s_lshr_b32 s{sT+2}, s{sOQ}, 2")
e(f"s_add_u32 s{sT+1}, s{sT+1}, s{sT+2}")
e(f"s_add_u32 s{sT+1}, s{sT+1}, {OX}")
e(f"s_mov_b32 s{sT+2}, 0x71800000")
e("s_nop 3")
e(f"v_max3_f32 v{MX}, abs(v{OA}), abs(v{OA+1}), abs(v{OA+2})")
for r in range(3, 11, 2): e(f"v_max3_f32 v{MX}, v{MX}, abs(v{OA+r}), abs(v{OA+r+1})")
e(f"v_cmp_gt_f32 vcc, s{sT+2}, v{MX}")
e("s_cmp_eq_u64 vcc, -1")
e("s_cbranch_scc1 L_p2ok")
e(f"s_cmp_eq_u32 s{sEXACT}, 0")
e("s_cbranch_scc1 L_exact")
lab("L_p2ok")
e("s_setprio 0")
lab("L_worest")
wo_step()
e(f"s_cmp_lt_u32 s{sWOL}, {BULK + 576*WOP}")
e("s_cbranch_scc1 L_worest")
e(f"v_rcp_f32 v{MX}, v{OA+10}")
e("s_nop 0")
for r in range(10): e(f"v_mul_f32 v{OA+r}, v{MX}, v{OA+r}")
for k in range(5): e(f"v_cvt_pk_bf16_f32 v{PB+k}, v{OA+2*k}, v{OA+2*k+1}")
e(f"buffer_store_dwordx4 {v(PB,4)}, v{vQ}, {s_(SWS,4)}, s{sT} offen sc1")
e(f"buffer_store_dword v{PB+4}, v{vOX}, {s_(SWS,4)}, s{sT+1} offen sc1")
stamp(10)
h_issue()

vOM, vOXL, vWM, vWX, vRW = 2, 19, 4, 5, 6
OF, A3, WO = 36, 72, 92
sTT, sKH, sHASY = sT+10, sT+11, sT+12
e(f"s_and_b32 s{sTT}, s{sWAVE}, 3")
e(f"s_lshr_b32 s{sKH}, s{sWAVE}, 2")
e("v_and_b32 v12, 15, v1")
e("v_lshrrev_b32 v13, 4, v1")
e(f"v_lshlrev_b32 v{vOM}, 15, v13")
e(f"v_lshl_add_u32 v{vOXL}, v12, 2, v{vOM}")
e(f"v_lshl_add_u32 v{vOM}, v12, 4, v{vOM}")
e(f"s_lshl_b32 s{sT}, s{sTT}, 4")
e(f"v_add_u32 v{vRW}, s{sT}, v12")
e(f"v_mul_u32_u24 v{vRW}, {RP}, v{vRW}")
e(f"v_lshl_add_u32 v{vRW}, v13, 4, v{vRW}")
e(f"s_mul_i32 s{sT}, s{sKH}, {R1-R0}")
e(f"v_add_u32 v{vRW}, s{sT}, v{vRW}")
e(f"s_lshl_b32 s{sT+1}, s{sTT}, 4")
e(f"s_add_u32 s{sT+3}, s{sTB}, s{sT+1}")
e("v_bfe_u32 v16, v1, 2, 2")
e(f"v_mul_u32_u24 v{vWX}, 72, v13")
e(f"v_add3_u32 v{vWX}, v{vWX}, v16, 16")
e(f"v_lshrrev_b32 v{vWM}, 1, v13")
e(f"v_mul_u32_u24 v{vWM}, 20, v{vWM}")
e("v_and_b32 v13, 1, v13")
e("v_lshl_add_u32 v13, v13, 2, v16")
e(f"v_add_u32 v{vWM}, v{vWM}, v13")
e("v_and_b32 v13, 3, v1")
e("v_lshlrev_b32 v13, 3, v13")
e(f"s_mul_i32 s{sT}, s{sKH}, {288*WOP}")
e(f"s_add_u32 s{sT}, s{sT}, {BULK}")
e(f"v_add_u32 v13, s{sT}, v13")
e(f"s_movk_i32 s{sT}, {WOP}")
e(f"v_mad_u32_u24 v{vWM}, v{vWM}, s{sT}, v13")
e(f"v_mad_u32_u24 v{vWX}, v{vWX}, s{sT}, v13")
e("s_waitcnt vmcnt(3)")
cnt_add()
stamp(11)
e(f"s_cmp_lt_u32 s{sWAVE}, 4")
e("s_cbranch_scc0 L_nocw")
cnt_add(4)
lab("L_nocw")
pp_call(1)
e(f"s_cmp_eq_u32 s{sWAVE}, 7")
e("s_cbranch_scc0 L_nosend2")
cnt_wait(sT, sT+1, 12)
e(f"s_lshl_b32 s{sT}, s{sJ}, 12")
e(f"s_lshl_b32 s{sT+1}, s{sH}, 2")
e(f"s_add_u32 s{sT}, s{sT}, s{sT+1}")
e(f"s_add_u32 s{sT}, s{sT}, {F2}")
e(f"v_lshlrev_b32 v12, 7, v1")
e("s_mov_b64 exec, 0xffffffff")
e(f"buffer_store_dword v17, v12, {s_(SWS,4)}, s{sT} offen sc1")
e("s_mov_b64 exec, -1")
lab("L_nosend2")
e("s_waitcnt vmcnt(0)")
for dst, src in zip((7, 8, 9, 10, 14, 15), (vT1, vT2, vX1, vX2, vG1, vG2)): e(f"v_mov_b32 v{dst}, v{src}")
for k in range(8): e(f"v_mov_b32 v{20+k}, v{X1+k}")
for k in range(4): e(f"v_mov_b32 v{28+k}, v{G1+k}")
vT1, vT2, vX1, vX2, vG1, vG2 = 7, 8, 9, 10, 14, 15
X1, X2, G1, G2 = 20, 24, 28, 30
cand_check(CD, vL16, 17)
e(f"s_sub_u32 s{sHASY}, s{sIDX}, s{sTB}")
c("---- this workgroup's unit of the routed token's down projection ----")
e(f"s_cmp_lt_u32 s{sFR}, 24")
e("s_cbranch_scc0 L_p3_main")
e(f"s_mov_b32 s{sT+1}, 0")
lab("L_h_chk")
for i in range(3): e(f"v_xor_b32 v{HV+2*i+1}, v17, v{HV+2*i+1}")
e(f"v_or3_b32 v{HV+1}, v{HV+1}, v{HV+3}, v{HV+5}")
e(f"v_cmp_eq_u32 vcc, 0, v{HV+1}")
e("s_cmp_eq_u64 vcc, -1")
e("s_cbranch_scc1 L_h_ok")
bound(sT+1)
h_issue()
e("s_waitcnt vmcnt(0)")
e("s_branch L_h_chk")
lab("L_h_ok")
for i in range(3):
    e(f"v_lshlrev_b32 v{HV+2*i+1}, 16, v{HV+2*i}")
    for k in range(4): e(f"v_dot2_f32_bf16 v{40+2*k}, v{DW+4*i+k}, v{HV+2*i}, {'0' if i == 0 else 'v%d' % (40+2*k)}")
    for k in range(4): e(f"v_dot2_f32_bf16 v{41+2*k}, v{DW+4*i+k}, v{HV+2*i+1}, {'0' if i == 0 else 'v%d' % (41+2*k)}")
col_of_lane(48, 49)
e(f"s_lshl_b32 s{sT}, s{sWAVE}, 8")
e(f"s_add_u32 s{sT}, s{sT}, {PS2}")
e(f"v_lshl_add_u32 v48, v48, 2, s{sT}")
fold8(40)
e("ds_write_b64 v48, v[40:41]")
e("s_waitcnt lgkmcnt(0)")

lab("L_p3_main")
cnt_wait(sT, sT+1, 4, 4)
stamp(12)
def wo_reads(F, ar, off, second):
    for t in range(5):
        e(f"ds_read_b64_tr_b16 {v(F+4*t,2)}, v{ar} offset:{off+32*t}")
        e(f"ds_read_b64_tr_b16 {v(F+4*t+2,2)}, v{ar} offset:{off+second+32*t}")
for sp in range(8):
    e(f"s_add_u32 s{sT}, s{sCS}, {sp}")
    e(f"s_and_b32 s{sT}, s{sT}, 7")
    e(f"s_mul_i32 s{sT}, s{sT}, {36*WOP}")
    e(f"v_add_u32 v{12+(sp&1)}, s{sT}, v{vWM}")
    wo_reads(WO + 20*sp, 12+(sp&1), 0, 8*WOP)
e(f"s_cmp_eq_u32 s{sWAVE}, 7")
e("s_cbranch_scc0 L_poll2d")
e(f"s_lshr_b32 s{sT}, s{sTB}, 3")
e(f"s_add_u32 s{sT}, s{sT}, s{sCS}")
e(f"s_lshl_b32 s{sT}, s{sT}, 7")
e(f"s_add_u32 s{sT}, s{sT}, {F2}")
e("v_lshlrev_b32 v13, 2, v1")
e("s_mov_b64 exec, 0xffffffff")
e(f"s_mov_b32 s{sT+1}, 0")
lab("L_poll2")
e(f"buffer_load_dword v12, v13, {s_(SWS,4)}, s{sT} offen sc1")
e("s_waitcnt vmcnt(0)")
e("v_cmp_eq_u32 vcc, v17, v12")
e("s_cmp_eq_u32 vcc_lo, -1")
e("s_cbranch_scc1 L_poll2x")
bound(sT+1)
e("s_branch L_poll2")
lab("L_poll2x")
e("s_mov_b64 exec, -1")
lab("L_poll2d")
e("s_barrier")
stamp(13)
e(f"s_cmp_eq_u32 s{sWAVE}, 3")
e("s_cbranch_scc0 L_noy0")
e(f"s_cmp_lt_u32 s{sFR}, 24")
e("s_cbranch_scc0 L_noy0")
e("v_lshlrev_b32 v12, 2, v1")
e(f"v_add_u32 v12, {PS2}, v12")
for w in range(8): e(f"ds_read_b32 v{72+w}, v12 offset:{256*w}")
e(f"s_mul_i32 s{sT}, s{sFR}, 4608")
e(f"s_lshl_b32 s{sT+1}, s{sCK}, 9")
e(f"s_add_u32 s{sT}, s{sT}, s{sT+1}")
e(f"s_add_u32 s{sT}, s{sT}, {YY}")
e("v_lshlrev_b32 v12, 3, v1")
e("s_waitcnt lgkmcnt(0)")
for w in range(1, 8): e(f"v_add_f32 v72, v72, v{72+w}")
e("v_mov_b32 v73, v17")
e(f"buffer_store_dwordx2 v[72:73], v12, {s_(SWS,4)}, s{sT} offen sc1")
lab("L_noy0")
e(f"s_lshl_b32 s{sT}, s{sKH}, 20")
e(f"s_lshl_b32 s{sT+1}, s{sT+3}, 4")
e(f"s_add_u32 s{sT}, s{sT}, s{sT+1}")
e(f"s_add_u32 s{sT}, s{sT}, {OM}")
for sp in range(8):
    e(f"s_add_u32 s{sT+1}, s{sCS}, {sp}")
    e(f"s_and_b32 s{sT+1}, s{sT+1}, 7")
    e(f"s_lshl_b32 s{sT+1}, s{sT+1}, 17")
    e(f"s_add_u32 s{sT+1}, s{sT+1}, s{sT}")
    e(f"buffer_load_dwordx4 {v(OF+4*sp,4)}, v{vOM}, {s_(SWS,4)}, s{sT+1} offen sc1")
e(f"s_lshl_b32 s{sT}, s{sKH}, 17")
e(f"s_lshl_b32 s{sT+1}, s{sT+3}, 2")
e(f"s_add_u32 s{sT}, s{sT}, s{sT+1}")
e(f"s_add_u32 s{sT}, s{sT}, {OX}")
for i in range(4):
    if i: e(f"s_add_u32 s{sT}, s{sT}, 8192")
    e(f"buffer_load_dword v{OF+32+i}, v{vOXL}, {s_(SWS,4)}, s{sT} offen sc1")
for sp in range(9):
    e(f"s_waitcnt vmcnt({11-sp if sp < 8 else 0}) lgkmcnt(0)")
    F = WO + 20*(sp % 8)
    for t in range(5):
        e(f"v_mfma_f32_16x16x32_bf16 {v(A3+4*t,4)}, {v(F+4*t,4)}, {v(OF+4*sp,4)}, {'0' if sp == 0 else v(A3+4*t,4)}")
    if sp == 0: wo_reads(WO, vWX, 0, 36*WOP)
stamp(14)
e(f"s_cmp_lt_u32 s{sHASY}, 64")
e("s_cbranch_scc0 L_noy1")
c("gather the 24 partial y rows: wave w sums producers 3w..3w+2")
e(f"s_mul_i32 s{sT}, s{sWAVE}, {3*4608}")
e(f"s_mul_i32 s{sT+1}, s{sCS}, 576")
e(f"s_add_u32 s{sT}, s{sT}, s{sT+1}")
e(f"s_add_u32 s{sT}, s{sT}, {YY}")
e(f"s_add_u32 s{sT+2}, s{sT}, 4608")
e(f"s_add_u32 s{sT+4}, s{sT}, 9216")
e("s_mov_b32 exec_hi, 0xf")
e(f"s_mov_b32 s{sT+1}, 0")
lab("L_polly")
for p, so in enumerate((sT, sT+2, sT+4)):
    e(f"buffer_load_dwordx4 {v(100+4*p,4)}, v{vL16}, {s_(SWS,4)}, s{so} offen sc1")
e("s_waitcnt vmcnt(0)")
for p in range(3):
    e(f"v_xor_b32 v{101+4*p}, v17, v{101+4*p}")
    e(f"v_xor_b32 v{103+4*p}, v17, v{103+4*p}")
e("v_or3_b32 v101, v101, v103, v105")
e("v_or3_b32 v107, v107, v109, v111")
e("v_or_b32 v101, v101, v107")
e("v_cmp_eq_u32 vcc, 0, v101")
e("s_cmp_eq_u64 vcc, exec")
e("s_cbranch_scc1 L_pollyd")
bound(sT+1)
e("s_branch L_polly")
lab("L_pollyd")
e("v_add_f32 v100, v100, v104")
e("v_add_f32 v101, v102, v106")
e("v_add_f32 v100, v100, v108")
e("v_add_f32 v101, v101, v110")
e(f"v_lshrrev_b32 v13, 1, v{vL16}")
e(f"s_mul_i32 s{sT}, s{sWAVE}, 288")
e(f"s_add_u32 s{sT}, s{sT}, {YR}")
e(f"v_add_u32 v12, s{sT}, v13")
e("ds_write_b64 v12, v[100:101]")
e("s_mov_b64 exec, -1")
lab("L_noy1")
e("s_nop 4")
for t in range(5):
    e(f"ds_write_b128 v{vRW}, {v(A3+4*t,4)} offset:{64*t}")
e("s_waitcnt lgkmcnt(0)")
e("s_barrier")
stamp(15)

def unpack(d, p):
    e(f"v_lshlrev_b32 v{d}, 16, v{p}")
    e(f"v_and_b32 v{d+1}, 0xffff0000, v{p}")
def round8(B, T):
    for k in range(4): e(f"v_cvt_pk_bf16_f32 v{T+k}, v{B+2*k}, v{B+2*k+1}")
    for k in range(4): unpack(B+2*k, T+k)

def task(vt, vx, vg, X, G, nm):
    A, Bq, T = 40, 56, 64
    e(f"ds_read_b128 {v(A,4)}, v{vt} offset:{R0}")
    e(f"ds_read_b128 {v(A+4,4)}, v{vt} offset:{R0+16}")
    e(f"ds_read_b128 {v(A+8,4)}, v{vt} offset:{R1}")
    e(f"ds_read_b128 {v(A+12,4)}, v{vt} offset:{R1+16}")
    lp, done = ul("g"), ul("gd")
    e(f"s_mov_b32 s{sT}, 0")
    lab(lp)
    e(f"v_cmp_eq_u32 vcc, v17, v{G+1}")
    e("s_cmp_eq_u64 vcc, -1")
    e(f"s_cbranch_scc1 {done}")
    bound(sT)
    e(f"buffer_load_dwordx2 {v(G,2)}, v{vg}, {s_(SWS,4)}, 0 offen sc1")
    e("s_waitcnt vmcnt(0)")
    e(f"s_branch {lp}")
    lab(done)
    for k in range(4): unpack(Bq+2*k, X+k)
    e(f"v_sub_f32 v{G+1}, 1.0, v{G}")
    bf16r(G+1)
    e(f"s_cmp_lt_u32 s{sHASY}, 64")
    e(f"s_cbranch_scc0 L_noy2{nm}")
    e(f"v_subrev_u32 v68, {GG}, v{vg}")
    e(f"v_lshrrev_b32 v68, 3, v68")
    e(f"s_mul_i32 s{sT}, s{sHASY}, {RP}")
    e(f"v_subrev_u32 v69, s{sT}, v{vt}")
    e(f"v_and_b32 v69, 0x1e0, v69")
    for w in range(8):
        e(f"ds_read_b128 {v(100+8*w,4)}, v69 offset:{YR+288*w}")
        e(f"ds_read_b128 {v(104+8*w,4)}, v69 offset:{YR+288*w+16}")
        if w % 4 == 3: e("s_waitcnt lgkmcnt(0)")
    for w in range(1, 8):
        for i in range(8): e(f"v_add_f32 v{100+i}, v{100+i}, v{100+8*w+i}")
    round8(100, 110)
    e(f"s_lshr_b32 s{sT}, s{sKEY}, 16")
    e(f"s_bitcmp1_b32 s{sT}, 15")
    e(f"s_cselect_b32 s{sT+1}, 0x8000, 0xffff") if False else None
    e(f"s_cselect_b32 s{sT+1}, 0, 0x7fff")
    e(f"s_xor_b32 s{sT}, s{sT}, s{sT+1}")
    e(f"s_xor_b32 s{sT}, s{sT}, 0x8000")
    e(f"s_lshl_b32 s{sT}, s{sT}, 16")
    e(f"v_mov_b32 v108, s{sT}")
    sigmoid(109, 108)
    bf16r(109)
    for i in range(8): e(f"v_mul_f32 v{100+i}, v109, v{100+i}")
    round8(100, 110)
    for i in range(8): e(f"v_add_f32 v{100+i}, v{Bq+i}, v{100+i}")
    round8(100, 110)
    e(f"v_cmp_eq_u32 vcc, s{sIDX}, v68")
    e("s_nop 1")
    for i in range(8): e(f"v_cndmask_b32 v{Bq+i}, v{Bq+i}, v{100+i}, vcc")
    lab(f"L_noy2{nm}")
    e("s_waitcnt lgkmcnt(0)")
    for i in range(8): e(f"v_add_f32 v{A+i}, v{A+i}, v{A+8+i}")
    round8(A, T)
    for i in range(8): e(f"v_mul_f32 v{A+i}, v{G}, v{A+i}")
    for i in range(8): e(f"v_mul_f32 v{Bq+i}, v{G+1}, v{Bq+i}")
    round8(A, T)
    round8(Bq, T)
    for i in range(8): e(f"v_add_f32 v{A+i}, v{A+i}, v{Bq+i}")
    for k in range(4): e(f"v_cvt_pk_bf16_f32 v{T+k}, v{A+2*k}, v{A+2*k+1}")
    e(f"buffer_store_dwordx4 {v(T,4)}, v{vx}, {s_(SOUT,4)}, 0 offen {opt('of')}")
task(vT1, vX1, vG1, X1, G1, "a")
e(f"s_cmp_eq_u32 s{sWAVE}, 7")
e("s_cbranch_scc0 L_fin")
task(vT2, vX2, vG2, X2, G2, "b")
lab("L_fin")
stamp(16)
if PROBE >= 0:
    if PROBE == 0: e("s_mov_b32 s94, s90")
    e("s_cmp_eq_u32 s94, 0")
    e("s_cbranch_scc1 L_end")
    e(f"s_sub_u32 s94, s94, s{sTAG}")
    e("s_max_i32 s94, s94, 0")
    e("s_min_u32 s94, s94, 10000")
    e("s_lshl_b32 s94, s94, 2")
    e("s_memrealtime s[92:93]")
    e("s_waitcnt lgkmcnt(0)")
    e("s_add_u32 s94, s94, s92")
    lab("L_probe")
    e("s_memrealtime s[92:93]")
    e("s_waitcnt lgkmcnt(0)")
    e("s_sub_u32 s92, s92, s94")
    e("s_cmp_lt_i32 s92, 0")
    e("s_cbranch_scc1 L_probe")

if DBGT:
    e("v_lshlrev_b32 v2, 2, v1")
    e("s_mov_b64 exec, 0xfffe")
    e(f"global_atomic_umax v2, v255, {s_(pDBG,2)}")
elif PROF:
    e(f"s_lshl_b32 s{sT}, s2, 3")
    e(f"s_add_u32 s{sT}, s{sT}, s{sWAVE}")
    e(f"s_lshl_b32 s{sT}, s{sT}, 7")
    e(f"s_add_u32 s{sT}, s{sT}, {PROFB}")
    e("v_lshlrev_b32 v2, 2, v1")
    e("s_mov_b64 exec, 0xffffffff")
    e(f"buffer_store_dword v255, v2, {s_(SWS,4)}, s{sT} offen")
e("s_branch L_end")
lab("L_exact")
e(f"s_mov_b32 s{sEXACT}, 1")
e(f"v_mov_b32 v{Q2+1}, 0")
c("pass 1: exact row max")
kread(8)
e(f"v_mov_b32 v{MX}, {NEGBIG}")
e(f"v_mov_b32 v{MX+1}, {NEGBIG}")
e("s_waitcnt lgkmcnt(0)")
qk(8)
kread(7)
e("s_nop 7")
for d in range(8, -1, -1):
    if d > 0:
        e("s_waitcnt lgkmcnt(0)")
        qk(d - 1)
        if d > 1: kread(d - 2)
        else: e("s_nop 1")
    else:
        e("s_nop 4")
    S = SBUF(d)
    for r in range(8):
        e(f"v_max3_f32 v{MX + (r & 1)}, v{MX + (r & 1)}, v{S+2*r}, v{S+2*r+1}")
    if d > 0:
        e(f"s_cmp_eq_u32 s{sDMIN}, {d}")
        e("s_cbranch_scc1 L_exdone")
lab("L_exdone")
e("s_waitcnt lgkmcnt(0)")
kread(8)
e("s_waitcnt lgkmcnt(0)")
e("s_branch L_p1done")
lab("L_ppfin")
e(f"s_mov_b32 s{sPPD}, 0")
e(f"s_mov_b32 s{sT+1}, 0")
e("s_mov_b32 exec_hi, 0xf")
lab("L_m2_poll")
e("s_waitcnt vmcnt(0)")
for k in range(16):
    e(f"v_xor_b32 v{PG+4*k+1}, v17, v{PG+4*k+1}")
    e(f"v_xor_b32 v{PG+4*k+3}, v17, v{PG+4*k+3}")
    if k: e(f"v_or3_b32 v{PG+1}, v{PG+1}, v{PG+4*k+1}, v{PG+4*k+3}")
e(f"v_or_b32 v{PG+1}, v{PG+1}, v{PG+3}")
e(f"v_cmp_eq_u32 vcc, 0, v{PG+1}")
e("s_cmp_eq_u64 vcc, exec")
e("s_cbranch_scc1 L_m2_got")
bound(sT+1)
pp_issue()
e("s_branch L_m2_poll")
lab("L_m2_got")
for k in range(1, 8):
    for o in (0, 2, 4, 6): e(f"v_add_f32 v{PG+o}, v{PG+o}, v{PG+8*k+o}")
for o in (0, 2):
    bf16r(PG+o)
    bf16r(PG+4+o)
    sigmoid(PG+8, PG+o)
    e(f"v_mul_f32 v{PG+o}, v{PG+o}, v{PG+8}")
    bf16r(PG+o)
    e(f"v_mul_f32 v{PG+o}, v{PG+o}, v{PG+4+o}")
    e(f"v_cvt_pk_bf16_f32 v{PG+o}, v{PG+o}, v18")
    e(f"v_mov_b32 v{PG+o+1}, v17")
e(f"s_and_b32 s{sT}, s{sRB}, 7")
e(f"s_mul_i32 s{sT}, s{sT}, 576")
e(f"v_add_u32 v{PG+8}, s{sT}, v{vL16}")
e(f"s_lshl_b32 s{sT}, s{sXCD}, 12")
e(f"s_add_u32 s{sT}, s{sT}, {HH}")
e(f"s_mul_i32 s{sT+2}, s{sXCD}, 3584")
e(f"s_sub_u32 s{sT+2}, {3584*8}, s{sT+2}")
e(f"v_subrev_u32 v{PG+9}, 4096, v{PG+8}")
e(f"v_ashrrev_i32 v{PG+9}, 31, v{PG+9}")
e(f"v_bfi_b32 v{PG+9}, v{PG+9}, 0, s{sT+2}")
e(f"v_add_u32 v{PG+8}, v{PG+8}, v{PG+9}")
e(f"buffer_store_dwordx4 {v(PG,4)}, v{PG+8}, {s_(SWS,4)}, s{sT} offen sc1")
e("s_mov_b32 exec_hi, -1")
e(f"s_cmp_eq_u32 s{sRET}, 0")
e("s_cbranch_scc1 L_ppret0")
e("s_branch L_ppret1")
lab("L_end")
e("s_endpgm")

body = "\n".join(L)
hdr = open("cdna_kernels/" + NAME + ".s.ref").read().split("; Override launch")[0]
text = hdr + f"""; @launch grid=(256,1,1) block=(512,1,1) lds={LDS_TOTAL}
.amdgcn_target "amdgcn-amd-amdhsa--gfx950"
.text
.globl {NAME}_kernel
.p2align 8
.type {NAME}_kernel,@function
{body}
.section .rodata,"a"
.p2align 6
.amdhsa_kernel {NAME}_kernel
  .amdhsa_next_free_vgpr 256
  .amdhsa_next_free_sgpr 102
  .amdhsa_accum_offset 256
  .amdhsa_group_segment_fixed_size 0
  .amdhsa_kernarg_size 96
  .amdhsa_user_sgpr_count 2
  .amdhsa_user_sgpr_kernarg_segment_ptr 1
  .amdhsa_system_sgpr_workgroup_id_x 1
.end_amdhsa_kernel
"""
out = [a for a in sys.argv[1:] if not a.startswith("--")]
path = out[0] if out else "cdna_kernels/" + NAME + ".s"
open(path, "w").write(text)
errs = hazard.check(body)
print("\n".join(errs) if errs else "hazard check clean", file=sys.stderr)
```
